```python
import torch

def _softmax(x, axis=-1):
    return torch.softmax(x, dim=axis)
def _gelu(x):
    return torch.nn.functional.gelu(x, approximate="tanh")
def _silu(x):
    return torch.nn.functional.silu(x)
def _sigmoid(x):
    return torch.sigmoid(x)
def _layernorm(x, axis=-1, eps=1e-5):
    m = x.mean(dim=axis, keepdim=True)
    v = x.var(dim=axis, keepdim=True, unbiased=False)
    return (x - m) / torch.sqrt(v + eps)
def _scatter_add(tgt, idx, src, axis=0):
    return tgt.clone().index_add_(axis, idx, src)
def _segment_sum(src, seg, n):
    out = torch.zeros((n,) + src.shape[1:], dtype=src.dtype)
    return out.index_add_(0, seg, src)
def _pad(x, pw):
    flat = tuple(v for pair in reversed(pw) for v in pair)
    return torch.nn.functional.pad(x, flat)

kernel_name = 'concat_heads__gqa_block_cached__sliding_block_cached__decode'

def setup_inputs():

    _w = (lambda a: (lambda t: t.to(torch.bfloat16) if t.is_floating_point() else t)(torch.as_tensor(a)))
    def _A_setup():
        B, Sq, D = 1, 1, 576
        Hq, Hkv, Sk, Dh = 32, 16, 32768, 128
        assert Hq % Hkv == 0, (Hq, Hkv)
        return {
            "x": _w((lambda *s: torch.randn(*s, dtype=torch.bfloat16) * 0.8)(B, Sq, D)),
            "k_cache": _w((lambda *s: torch.randn(*s, dtype=torch.bfloat16) * 1.6)(B, Hkv, Sk, Dh)),
            "v_cache": _w((lambda *s: torch.randn(*s, dtype=torch.bfloat16) * 0.2)(B, Hkv, Sk, Dh)),
            "wq": _w((lambda *s: torch.randn(*s, dtype=torch.bfloat16) * 1.6)(D, Hq * Dh) * (D ** -0.5)),
            "wo": _w((lambda *s: torch.randn(*s, dtype=torch.bfloat16) * 0.2)(Hq * Dh, D) * ((Hq * Dh) ** -0.5)),
        }
    _A_in = _A_setup()

    def _B_setup():
        B, Sq, D = 1, 1, 576
        Hq, Hkv, Sk, Dh = 32, 16, 32768, 128
        assert Hq % Hkv == 0, (Hq, Hkv)
        return {
            "x": _w((lambda *s: torch.randn(*s, dtype=torch.bfloat16) * 0.8)(B, Sq, D)),
            "k_cache": _w((lambda *s: torch.randn(*s, dtype=torch.bfloat16) * 1.6)(B, Hkv, Sk, Dh)),
            "v_cache": _w((lambda *s: torch.randn(*s, dtype=torch.bfloat16) * 0.2)(B, Hkv, Sk, Dh)),
            "wq": _w((lambda *s: torch.randn(*s, dtype=torch.bfloat16) * 1.6)(D, Hq * Dh) * (D ** -0.5)),
            "wo": _w((lambda *s: torch.randn(*s, dtype=torch.bfloat16) * 0.2)(Hq * Dh, D) * ((Hq * Dh) ** -0.5)),
        }
    _B_in = _B_setup()

    return {
        "A_x": _A_in["x"],
        "A_k_cache": _A_in["k_cache"],
        "A_v_cache": _A_in["v_cache"],
        "A_wq": _A_in["wq"],
        "A_wo": _A_in["wo"],
        "B_x": _B_in["x"],
        "B_k_cache": _B_in["k_cache"],
        "B_v_cache": _B_in["v_cache"],
        "B_wq": _B_in["wq"],
        "B_wo": _B_in["wo"],
    }

def reference(A_x, A_k_cache, A_v_cache, A_wq, A_wo, B_x, B_k_cache, B_v_cache, B_wq, B_wo):
    def _A_ref(x, k_cache, v_cache, wq, wo):
        B, Sq, D = x.shape
        Hq, Dh = 32, 128
        Hkv = k_cache.shape[1]
        rep = Hq // Hkv
        q = (lambda x, *d: x.permute(*d))((x @ wq).reshape(B, Sq, Hq, Dh), 0, 2, 1, 3)
        k = (lambda x, n, axis: torch.repeat_interleave(x, n, dim=axis))(k_cache, rep, axis=1)
        v = (lambda x, n, axis: torch.repeat_interleave(x, n, dim=axis))(v_cache, rep, axis=1)
        scores = torch.einsum("bhqd,bhkd->bhqk", q, k) * (Dh ** -0.5)
        p = _softmax(scores, axis=-1)
        o = torch.einsum("bhqk,bhkd->bhqd", p, v)
        return (lambda x, *d: x.permute(*d))(o, 0, 2, 1, 3).reshape(B, Sq, Hq * Dh) @ wo

    def _B_ref(x, k_cache, v_cache, wq, wo):
        B, Sq, D = x.shape
        Hq, Dh = 32, 128
        Hkv, Sk = k_cache.shape[1], k_cache.shape[2]
        W = min(4096, max(256, Sk // 4))
        rep = Hq // Hkv
        q = (lambda x, *d: x.permute(*d))((x @ wq).reshape(B, Sq, Hq, Dh), 0, 2, 1, 3)
        k = (lambda x, n, axis: torch.repeat_interleave(x, n, dim=axis))(k_cache[:, :, Sk - W:, :], rep, axis=1)
        v = (lambda x, n, axis: torch.repeat_interleave(x, n, dim=axis))(v_cache[:, :, Sk - W:, :], rep, axis=1)
        scores = torch.einsum("bhqd,bhkd->bhqk", q, k) * (Dh ** -0.5)
        p = _softmax(scores, axis=-1)
        o = torch.einsum("bhqk,bhkd->bhqd", p, v)
        return (lambda x, *d: x.permute(*d))(o, 0, 2, 1, 3).reshape(B, Sq, Hq * Dh) @ wo

    a = _A_ref(A_x, A_k_cache, A_v_cache, A_wq, A_wo)
    b = _B_ref(B_x, B_k_cache, B_v_cache, B_wq, B_wo)
    return torch.concatenate([a, b], axis=-1)
```

```python
import re

TRANS = ("v_exp_f32", "v_log_f32", "v_rcp_f32", "v_rsq_f32", "v_sqrt_f32", "v_sin_f32", "v_cos_f32")
_reg = re.compile(r"^(-?)([vsa])(\d+)$|^(-?)([vsa])\[(\d+):(\d+)\]$")


def regs(tok):
    tok = tok.strip()
    if tok == "vcc":
        return {"vcc"}
    if tok == "exec":
        return {"exec"}
    m = _reg.match(tok)
    if not m:
        return set()
    if m.group(2):
        return {m.group(2) + m.group(3)}
    return {m.group(5) + str(i) for i in range(int(m.group(6)), int(m.group(7)) + 1)}


class Ins:
    def __init__(self, text):
        self.text = text
        t = text.split(";")[0].strip()
        op, _, rest = t.partition(" ")
        self.op = op
        ops, depth, cur = [], 0, ""
        for ch in rest:
            if ch == "[":
                depth += 1
            if ch == "]":
                depth -= 1
            if ch == "," and depth == 0:
                ops.append(cur.strip()); cur = ""
            else:
                cur += ch
        if cur.strip():
            ops.append(cur.strip().split()[0])
        self.ops = ops
        R = [regs(o) for o in ops]
        allr = set().union(*R) if R else set()
        self.states = 1
        self.kind = "other"
        self.w, self.r, self.srcc, self.sdata = set(), set(), set(), set()
        self.dpp = "_dpp" in op
        if op == "s_nop":
            self.states = int(ops[0]) + 1
        elif op.startswith("v_mfma"):
            self.kind = "mfma"
            self.w = R[0]; self.r = R[1] | R[2]; self.srcc = R[3]
        elif op.startswith("v_permlane"):
            self.kind = "perm"
            self.w = allr; self.r = allr
        elif op.startswith(("v_readfirstlane", "v_readlane")):
            self.kind = "readlane"
            self.w = R[0]; self.r = set().union(*R[1:])
            self.lanesel = R[2] if len(R) > 2 else set()
        elif op.startswith("v_"):
            self.kind = "trans" if op.startswith(TRANS) else "valu"
            self.w = R[0]; self.r = set().union(*R[1:]) if len(R) > 1 else set()
            if op.startswith(("v_fmac", "v_writelane")):
                self.r |= R[0]
            if self.dpp and not ("bank_mask:0xf" in t and "row_mask:0xf" in t):
                self.r |= R[0]
            if "_co_" in op:
                self.w |= R[1]
        elif op.startswith(("global_load", "buffer_load")):
            self.kind = "vmem"
            if "lds" in op:
                self.r = allr
            else:
                self.w = R[0]; self.r = set().union(*R[1:])
        elif op.startswith(("global_store", "buffer_store")):
            self.kind = "vmem"
            self.r = allr
            if op.endswith(("x3", "x4")):
                self.sdata = R[1] if op.startswith("global") else R[0]
        elif op.startswith("global_atomic"):
            self.kind = "vmem"
            self.r = allr
            if len(ops) == 4:
                self.w = R[0]
        elif op.startswith("ds_"):
            self.kind = "ds"
            if op.startswith(("ds_read", "ds_bpermute", "ds_permute", "ds_swizzle")) or "rtn" in op:
                self.w = R[0]; self.r = set().union(*R[1:])
            else:
                self.r = allr
        elif op.startswith("s_"):
            self.kind = "salu"

    @property
    def isvalu(self):
        return self.kind in ("valu", "trans", "perm", "readlane")


def need(p, c):
    n = 0
    vw = {x for x in p.w if x[0] in "va" and x != "vcc"}
    sw = {x for x in p.w if x[0] == "s" or x == "vcc"}
    if p.isvalu:
        if c.isvalu and c.dpp and vw & c.r:
            n = max(n, 2)
        if c.kind == "perm" and vw & c.r:
            n = max(n, 2)
        if c.kind == "mfma" and vw & (c.r | c.srcc):
            n = max(n, 2)
        if c.kind == "readlane" and vw & c.r:
            n = max(n, 1)
        if p.kind == "trans" and c.isvalu and vw & c.r:
            n = max(n, 1)
        if sw:
            if c.kind == "readlane" and sw & c.lanesel:
                n = max(n, 4)
            if c.isvalu and sw & c.r:
                n = max(n, 2)
            if c.kind == "vmem" and sw & c.r:
                n = max(n, 5)
    if p.kind == "mfma":
        if c.kind == "mfma":
            if p.w & c.r:
                n = max(n, 8)
            if p.w & c.srcc and p.w != c.srcc:
                n = max(n, 6)
            if p.w & c.w and p.w != c.srcc:
                n = max(n, 8)
        elif c.isvalu or c.kind in ("vmem", "ds"):
            if p.w & (c.r | c.w):
                n = max(n, 8)
        if c.isvalu and p.srcc & c.w:
            n = max(n, 3)
    if p.sdata:
        if c.isvalu and p.sdata & c.w:
            n = max(n, 2)
        elif p.sdata & c.w:
            n = max(n, 1)
    return n


class Em:
    def __init__(self):
        self.out = []
        self.hist = []
        self.vm = []
        self.uid = 0

    def raw(self, s):
        self.out.append(s)

    def label(self, name):
        self.out.append(name + ":")

    def newlabel(self, base):
        self.uid += 1
        return "L_%s_%d" % (base, self.uid)

    def __call__(self, text, tag=None):
        for line in text.split("\n"):
            line = line.strip()
            if not line:
                continue
            ins = Ins(line)
            dist, pad = 0, 0
            for p in reversed(self.hist):
                pad = max(pad, need(p, ins) - dist)
                dist += p.states
                if dist >= 12:
                    break
            if pad > 0:
                nop = Ins("s_nop %d" % (pad - 1))
                self.out.append("  " + nop.text)
                self.hist.append(nop)
            self.out.append("  " + line)
            self.hist.append(ins)
            self.hist = self.hist[-16:]
            if ins.kind == "vmem":
                self.vm.append(tag)

    def fence(self):
        self("s_nop 7")

    def waitvm(self, tag=None):
        if tag is None:
            self("s_waitcnt vmcnt(0)")
            self.vm = []
            return
        idx = [i for i, t in enumerate(self.vm) if t == tag]
        if not idx:
            return
        n = len(self.vm) - 1 - idx[-1]
        assert n <= 63
        self("s_waitcnt vmcnt(%d)" % n)
        self.vm = self.vm[idx[-1] + 1:]

    def text(self):
        return "\n".join(self.out) + "\n"
```

```python
import sys, struct, math, contextlib
sys.path.insert(0, "work")
from asmlib import Em

KN = "concat_heads__gqa_block_cached__sliding_block_cached__decode_kernel"
HDR = open("concat_heads__gqa_block_cached__sliding_block_cached__decode.s.ref").read().split("; Override launch")[0]

Q_OFF, G_OFF, X_OFF, RP_OFF, L1_OFF, L2_OFF = 0x0, 0x10000, 0x20000, 0x24000, 0x40000, 0xC0000
STAMP_OFF = 0x10000000
QP, QB, FL, ML, MW, DA_L, DB_L, LDS_SZ = 0, 2048, 3072, 3328, 3392, 4096, 8192, 12288
F_QP, F_Q, F_T1, F_T2, F_B1, F_ML, F_N0, F_N1, F_T3, F_LOC, F_REF, F_SLP, F_P = [FL + 4 * i for i in range(13)]
AMAPS = {
    0: ([13, 15, 11, 16, 19, 22, 10, 20, 14, 18, 21, 17, 12], [0, 0, 0, 0, 1, 128, 64], [8, 0, 0, 0]),
    1: ([21, 15, 11, 16, 19, 10, 22, 20, 14, 18, 17, 12, 13], [0, 0, 0, 0, 1, 128, 64], [8, 0, 0, 1]),
    2: ([21, 10, 22, 19, 15, 13, 17, 11, 12, 18, 14, 16, 20], [32, 128, 0, 8, 64, 1, 0], [0, 0, 0, 0]),
    3: ([21, 10, 16, 22, 19, 17, 20, 14, 12, 13, 15, 18, 11], [128, 16, 0, 32, 0, 0, 32], [0, 4, 4, 1]),
    4: ([13, 14, 16, 22, 19, 17, 20, 10, 12, 21, 11, 18, 15], [8, 0, 0, 0, 256, 0, 8], [8, 4, 0, 0]),
    5: ([21, 17, 22, 16, 19, 10, 12, 14, 20, 18, 15, 13, 11], [0, 0, 16, 0, 0, 0, 4], [1, 1, 0, 1]),
    6: ([13, 11, 16, 22, 19, 17, 14, 12, 10, 21, 20, 18, 15], [0, 0, 0, 0, 0, 0, 1], [1, 0, 0, 2]),
    7: ([13, 14, 12, 16, 20, 22, 10, 19, 15, 11, 21, 18, 17], [0, 256, 8, 0, 1, 128, 0], [1, 0, 2, 8]),
    8: ([10, 12, 19, 15, 13, 21, 22, 16, 17, 11, 18, 14, 20], [2, 256, 0, 64, 2, 64, 64], [0, 0, 0, 4]),
    9: ([10, 12, 19, 15, 17, 22, 21, 16, 13, 20, 18, 14, 11], [128, 0, 0, 0, 256, 64, 128], [0, 4, 4, 0]),
    10: ([17, 15, 13, 19, 22, 10, 14, 21, 16, 20, 18, 11, 12], [512, 0, 0, 8, 64, 0, 256], [0, 8, 1, 2]),
    11: ([21, 14, 18, 22, 19, 17, 12, 11, 20, 13, 10, 16, 15], [0, 0, 8, 0, 1, 0, 8], [0, 4, 4, 4]),
    12: ([13, 14, 20, 15, 19, 22, 10, 12, 16, 11, 18, 21, 17], [0, 64, 8, 256, 1, 128, 0], [0, 0, 0, 0]),
    13: ([17, 21, 19, 16, 22, 10, 14, 13, 15, 20, 12, 11, 18], [0, 4, 0, 8, 64, 16, 256], [0, 2, 0, 1]),
    14: ([13, 10, 20, 16, 19, 14, 22, 12, 15, 11, 21, 18, 17], [0, 64, 0, 0, 1, 16, 0], [0, 4, 0, 0]),
}
BMAPS = {
    0: ([13, 11, 18, 12, 19, 14, 16, 15, 10, 17], [4, 16, 0, 1], [1, 0, 0, 0]),
    1: ([13, 11, 18, 19, 12, 17, 14, 16, 15, 10], [2, 16, 0, 1], [0, 0, 0, 0]),
    2: ([13, 12, 17, 19, 18, 10, 14, 16, 15, 11], [512, 16, 0, 1], [0, 0, 0, 0]),
}
CSC = struct.unpack("<I", struct.pack("<f", 128 ** -0.5 * math.log2(math.e)))[0]
SPIN = 1 << 19
MF = "v_mfma_f32_16x16x32_bf16"


DOC = r"""; ---------------------------------------------------------------------------------------------------------------------
;
;   Stores are write-through (sc1); inside a group they stay in the L2 only when every member reported the same XCD.
; ---------------------------------------------------------------------------------------------------------------------"""


def v(a, n=1):
    return "v%d" % a if n == 1 else "v[%d:%d]" % (a, a + n - 1)


def gen(stamps=0, kvflags="nt", wflags="nt", warm=1, touch=0, W="5", L="4568", W0=5, Wc=5, boost=1, wqw=6,
        raw=0, fine=0, enc="", amap=14, bmap=2, hs="lo", qtrig=16, gtrig=80, gld=40, okeep=2, pre1=1, nsl=0, Wend=0, nend=0,
        ctl=2, cb=1063, t0=-24, t1=26, t2=75, mlist="5.9.15.21.28", mdel=2, l1f="auto", fdel=3, fack=1, outf="", order=2, xpos=2, pst=0, wl=10, olast=0, Wwo=7, fsl=0, l1c=1, stouch=0, pb=2, rsh=8, rf="sc1", nrep=8, swapt=0, smar=20, LP="", npump=0, rt=0, l1lf="sc1", l1sf="", noq=0, warm2=0, wob=0, wthr="", wearly=0, LW="", qsf="sc1", qlf="sc1", spre=0, qpre=0, swarm=0, fpos=-1, npoll=1, rcor=0, lcor=0, jit=0):
    NF = 288 >> pb
    W = str(W)
    LV0 = [int(c, 16) for c in str(L)]
    if ctl:
        W = "%x" % LV0[3]
    ms = [int(x) for x in str(mlist).split(".")]
    sl1 = sl2 = l2pad = 0
    l2q = 1
    l2sf = l2lf = "sc1"
    e = Em()
    e.raw(HDR.rstrip())
    e.raw("; @launch grid=(256,1,1) block=(320,1,1) lds=%d" % LDS_SZ)
    e.raw(DOC)
    e.raw('.amdgcn_target "amdgcn-amd-amdhsa--gfx950"')
    e.raw(".text\n.globl %s\n.p2align 8\n.type %s,@function\n%s:" % (KN, KN, KN))
    nst = [0]
    cm = lambda t: e.raw("; " + t)

    def stamp(p=0):
        if stamps and (p <= pst) and not (pst and nst[0] >= 11):
            assert nst[0] < 12
            e("s_memrealtime s[%d:%d]" % (70 + 2 * nst[0], 71 + 2 * nst[0]))
            nst[0] += 1

    def write_stamps(vt, role):
        if not stamps:
            return
        if enc:
            e("s_waitcnt lgkmcnt(0)\ns_mov_b64 exec, 1\nv_mov_b32 %s, 0" % v(vt))
            if role == "c":
                e("s_sleep 127\ns_sleep 127")
                e("s_not_b32 s33, s70\nv_mov_b32 %s, s33\nglobal_atomic_umax %s, %s, s[26:27] offset:128" % (v(vt + 1), v(vt), v(vt + 1)))
            if enc[0] == role:
                idx = int(enc[1:-1])
                e("s_mov_b32 s33, s%d" % (70 + 2 * idx))
                if enc[-1] == "n":
                    e("s_not_b32 s33, s33")
                skip = e.newlabel("sk")
                if role == "s" and idx == 9:
                    e("s_cmp_eq_u32 s30, 3\ns_cbranch_scc1 %s" % skip)
                if role == "c" and idx == 6:
                    e("s_cmp_ge_u32 s3, 72\ns_cbranch_scc1 %s" % skip)
                if role == "s":
                    e("s_sleep 127\ns_sleep 127")
                e("v_mov_b32 %s, s33\nglobal_atomic_umax %s, %s, s[26:27] offset:192" % (v(vt + 1), v(vt), v(vt + 1)))
                e.label(skip)
            if role == "c":
                L1, L2, D = e.newlabel("e1"), e.newlabel("e2"), e.newlabel("ed")
                e("s_cmp_lg_u32 s2, 0\ns_cbranch_scc1 %s" % D)
                e.label(L1)
                e("s_sleep 8\ns_memrealtime s[60:61]\ns_waitcnt lgkmcnt(0)\ns_sub_u32 s33, s60, s70\ns_cmp_lt_u32 s33, 19000\ns_cbranch_scc1 %s" % L1)
                e("s_load_dword s62, s[26:27], 128 glc\ns_load_dword s63, s[26:27], 192 glc\ns_waitcnt lgkmcnt(0)")
                e("s_not_b32 s62, s62")
                if enc[-1] == "n":
                    e("s_not_b32 s63, s63")
                e("s_sub_u32 s63, s63, s62")
                if enc == "z":
                    e("s_mov_b32 s63, 0")
                e("s_min_u32 s63, s63, 20000\ns_lshl_b32 s63, s63, 2\ns_add_u32 s63, s63, 20000")
                e.label(L2)
                e("s_memrealtime s[60:61]\ns_waitcnt lgkmcnt(0)\ns_sub_u32 s33, s60, s62\ns_cmp_lt_u32 s33, s63\ns_cbranch_scc1 %s" % L2)
                e.label(D)
            return
        e("s_waitcnt lgkmcnt(0)")
        e("s_mul_i32 s33, s3, 6\ns_add_u32 s33, s33, s30\ns_lshl_b32 s33, s33, 6\ns_add_u32 s33, s33, 0x%x" % STAMP_OFF)
        e("s_mov_b64 exec, 1\nv_mov_b32 %s, s33" % v(vt))
        for i in range(16):
            e("v_mov_b32 %s, s%d" % (v(vt + 1), 70 + 2 * min(i, nst[0] - 1)))
            e("global_store_dword %s, %s, s[28:29] offset:%d" % (v(vt), v(vt + 1), 4 * i))

    def jitter(k):
        if jit >> k & 1:
            L = e.newlabel("jt")
            e("s_memtime s[100:101]\ns_waitcnt lgkmcnt(0)\ns_mul_i32 s100, s100, 0x9e3779b1\ns_lshr_b32 s100, s100, 27")
            e.label(L)
            e("s_sleep 16\ns_sub_u32 s100, s100, 1\ns_cbranch_scc0 %s" % L)

    def lds_wait(flag, cmp, val, vz, vt, sleep=0):
        if raw:
            return
        L, D = e.newlabel("lw"), e.newlabel("lwd")
        e("s_mov_b32 s35, %d" % (SPIN * 16))
        e.label(L)
        e("ds_read_b32 %s, %s offset:%d\ns_waitcnt lgkmcnt(0)\nv_readfirstlane_b32 s34, %s" % (v(vt), v(vz), flag, v(vt)))
        e("s_cmp_%s_u32 s34, %d\ns_cbranch_scc1 %s" % (cmp, val, D))
        if sleep:
            e("s_sleep %d" % sleep)
        e("s_sub_u32 s35, s35, 1\ns_cbranch_scc0 %s" % L)
        e.label(D)

    @contextlib.contextmanager
    def optional(skipcmp):
        J = e.newlabel("opt")
        e("%s\ns_cbranch_scc1 %s" % (skipcmp, J))
        hist, vm = list(e.hist), list(e.vm)
        yield
        e("s_nop 1")
        e.label(J)
        e.hist, e.vm = hist, vm

    def xrow(op, r, t):
        for sw in ("v_permlane16_swap_b32", "v_permlane32_swap_b32"):
            for a, b in zip(r, t):
                e("v_mov_b32 %s, %s" % (v(b), v(a)))
            for a, b in zip(r, t):
                e("%s %s, %s" % (sw, v(a), v(b)))
            for a, b in zip(r, t):
                e("%s %s, %s, %s" % (op, v(a), v(a), v(b)))

    def dppred(op, r, pats):
        for p in pats:
            for a in r:
                e("%s_dpp %s, %s, %s %s row_mask:0xf bank_mask:0xf" % (op, v(a), v(a), v(a), p))

    def tagsel():
        for r in range(4):
            e("s_mov_b32 s%d, 0x%08x" % (64 + r, 0x07060500 + r))

    def tagreg(dst, bit, tmp, put=None, chk=None):
        e("v_and_b32 %s, %d, v1\nv_cmp_ne_u32 vcc, 0, %s\nv_mov_b32 %s, s62\nv_mov_b32 %s, s63" % (v(tmp), bit, v(tmp), v(dst), v(tmp)))
        e("v_cndmask_b32 %s, %s, %s, vcc" % (v(dst), v(dst), v(tmp)))
        if chk is not None:
            for r in (3, 2, 1, 0):
                e("v_bfe_u32 %s, %s, %d, 8" % (v(chk + r), v(dst), 8 * r))

    def tagput(x, t):
        for r in range(4):
            e("v_perm_b32 %s, %s, %s, s%d" % (v(x + r), v(x + r), v(t), 64 + r))

    def tagcheck(regs, t, a0, a1):
        for k, x in enumerate(regs):
            for r in range(4):
                e("v_xor_b32 %s, %s, %s" % (v(x + r), v(x + r), v(t + r)))
            if k == 0:
                e("v_or_b32 %s, %s, %s\nv_or_b32 %s, %s, %s" % (v(a0), v(x), v(x + 1), v(a1), v(x + 2), v(x + 3)))
            else:
                e("v_or3_b32 %s, %s, %s, %s\nv_or3_b32 %s, %s, %s, %s" % (v(a0), v(a0), v(x), v(x + 1), v(a1), v(a1), v(x + 2), v(x + 3)))
        e("v_or_b32 %s, %s, %s\nv_and_b32 %s, 0xff, %s\nv_cmp_ne_u32 vcc, 0, %s" % (v(a0), v(a0), v(a1), v(a0), v(a0), v(a0)))

    def groupstore(txt):
        if l1f != "auto":
            e(txt + " " + l1f)
            return
        A, J = e.newlabel("gs"), e.newlabel("gsj")
        e("s_cmp_eq_u32 s61, 1\ns_cbranch_scc1 %s\n%s sc1\ns_branch %s" % (A, txt, J))
        e.label(A)
        e(txt + " " + l1sf)
        e.label(J)

    def l1_out_addr(dst, t0, t1, sb, pr, tg):
        if l1c:
            e("v_lshlrev_b32 %s, 8, v1" % v(dst))
            e("s_lshl_b32 s33, s31, 15\ns_lshl_b32 s34, s32, 4\ns_add_u32 s33, s33, s34\ns_add_u32 s33, s33, 0x%x" % (L1_OFF + 16384 * pr))
            e("s_add_u32 s%d, s28, s33\ns_addc_u32 s%d, s29, 0" % (sb, sb + 1))
            e("s_bitcmp1_b32 s32, 0\ns_cselect_b32 s33, s63, s62\nv_mov_b32 %s, s33" % v(tg))
            return
        e("v_lshrrev_b32 %s, 3, v1\nv_lshlrev_b32 %s, 11, %s\nv_and_b32 %s, 7, v1\nv_lshl_add_u32 %s, %s, 4, %s" % (
            v(t0), v(t0), v(t0), v(t1), v(dst), v(t1), v(t0)))
        e("s_lshl_b32 s33, s31, 15\ns_lshl_b32 s34, s32, 7\ns_add_u32 s33, s33, s34\ns_add_u32 s33, s33, 0x%x" % (L1_OFF + 16384 * pr))
        e("s_add_u32 s%d, s28, s33\ns_addc_u32 s%d, s29, 0" % (sb, sb + 1))

    def sumpub(lds, a0, l16, adr, sb, t):
        for k in range(4):
            e("ds_read_b128 %s, %s offset:%d" % (v(a0 + 4 * k, 4), v(l16), lds + 1024 * k))
        e("s_waitcnt lgkmcnt(2)" if not stamps else "s_waitcnt lgkmcnt(0)")
        for k in range(4):
            e("v_add_f32 %s, %s, %s" % (v(a0 + k), v(a0 + k), v(a0 + 4 + k)))
        e("s_waitcnt lgkmcnt(0)")
        for k in range(4):
            e("v_add_f32 %s, %s, %s" % (v(a0 + 8 + k), v(a0 + 8 + k), v(a0 + 12 + k)))
        for k in range(4):
            e("v_add_f32 %s, %s, %s" % (v(a0 + k), v(a0 + k), v(a0 + 8 + k)))
        tagput(a0, t)
        jitter(1)
        groupstore("global_store_dwordx4 %s, %s, s[%d:%d]" % (v(adr), v(a0, 4), sb, sb + 1))

    e("s_load_dwordx16 s[4:19], s[0:1], 0\ns_load_dwordx8 s[20:27], s[0:1], 64\ns_load_dwordx2 s[28:29], s[0:1], 96")
    stamp()
    cm("s30 = wave, s31 = kv head, s32 = split; later s3 = workgroup id, s2 = head*16 + split")
    e("v_readfirstlane_b32 s30, v0\nv_and_b32 v1, 63, v0\ns_and_b32 s31, s2, 15\ns_lshr_b32 s32, s2, 4")
    e("s_cmp_ge_u32 s32, 16\ns_cbranch_scc1 L_end")
    e("s_lshr_b32 s30, s30, 6\ns_cmp_eq_u32 s30, 4\ns_cbranch_scc1 L_comm")
    ids = "s_mov_b32 s3, s2\ns_lshl_b32 s2, s31, 4\ns_or_b32 s2, s2, s32"
    base_st = nst[0]

    def wavebase(dst, cfg, const):
        perm, scr, rm = cfg
        nt = len(scr)
        zm = [1 << j for j in range(10)]
        for i in range(4):
            zm[2 + i] ^= rm[i] << 6
        masks = {}
        for i in range(nt):
            m = 0
            for j in range(10):
                if scr[i] >> j & 1:
                    m ^= zm[j]
            masks[perm[i]] = m
        for j in range(6):
            masks[perm[nt + j]] = zm[j]
        e("s_lshl_b32 s%d, s31, 23" % dst)
        if const:
            e("s_or_b32 s%d, s%d, 0x%x" % (dst, dst, const))
        for b, m in sorted(masks.items()):
            if m == 0:
                continue
            if m & (m - 1) == 0:
                e("s_bfe_u32 s33, s41, 0x%x" % (0x10000 + m.bit_length() - 1))
            else:
                e("s_and_b32 s33, s41, 0x%x\ns_bcnt1_i32_b32 s33, s33\ns_and_b32 s33, s33, 1" % m)
            e("s_lshl_b32 s33, s33, %d\ns_or_b32 s%d, s%d, s33" % (b, dst, dst))

    def tmap(cfg, n):
        return sum(((n >> i) & 1) << cfg[0][i] for i in range(len(cfg[1])))

    vZ, vKO, vVO, vT0, vT1, vT2, vT3 = 2, 3, 4, 5, 6, 7, 8
    vMR, vLR, vMB, vLB, vPB, vFA, vDL, vFT = 9, 10, 11, 12, 13, 14, 15, 16
    vM0, vAD, vWO, vRF = 17, 18, 19, 252
    SLO, SHI = 20, 24
    QB0, QB1 = 28, 32
    DA0, DBc = 36, 40
    GR, PI0, PI1 = 44, 48, 52
    DA1 = PI0
    BC = 56
    DQ, TT, SS = 64, 80, 84
    OP = 92
    RING = 124
    NV = 254
    slot = lambda i: RING + 32 * (i if i < 4 else i % 2)

    cm("==== streaming waves.  q projection: 72 rows x 64 columns of wq per wave")
    e("s_and_b32 s33, s32, 4\ns_add_u32 s33, s33, s30\ns_mulk_i32 s33, 72")
    e("v_lshrrev_b32 %s, 4, v1\nv_mad_u32_u24 %s, %s, 18, s33\nv_bfe_u32 %s, v1, 3, 1\nv_add_u32 %s, %s, %s" % (
        v(vT3), v(vT3), v(vT3), v(vT0), v(vT0), v(vT0), v(vT3)))
    e("s_and_b32 s34, s32, 3\ns_lshl2_add_u32 s34, s31, s34\ns_lshl_b32 s34, s34, 7")
    e("v_and_b32 %s, 7, v1\nv_lshlrev_b32 %s, 4, %s\nv_add_u32 %s, s34, %s" % (v(vT1), v(vT1), v(vT1), v(vT2), v(vT1)))
    e("v_lshl_add_u32 %s, %s, 13, %s" % (v(vFA), v(vT0), v(vT2)))
    e("s_bitset0_b32 s32, 31\ns_movk_i32 s35, 0x4000\ns_cmp_ge_u32 s32, 8".split("\n", 1)[1])
    e("s_waitcnt lgkmcnt(0)")
    e("s_cselect_b64 s[36:37], s[20:21], s[10:11]")
    stamp(1)
    WQ, XR = slot(2), slot(2) + 40

    def ldwq(t):
        e("global_load_dwordx4 %s, %s, s[36:37] %s" % (v(WQ + 4 * t, 4), v(vFA), wflags), "wq%d" % t)
        if t < 8:
            e("v_add_u32 %s, %s, %s" % (v(vFA), "s35" if t < wqw else "0x4000", v(vFA)))

    for t in range(wqw):
        ldwq(t)
        if t == xpos:
            e("s_cselect_b64 s[38:39], s[14:15], s[4:5]\nv_lshlrev_b32 %s, 1, %s" % (v(vT3), v(vT3)))
            for k in range(3):
                e("global_load_dwordx3 %s, %s, s[38:39] offset:%d" % (v(XR + 4 * k, 3), v(vT3), 12 * k), "x")
    e("s_cselect_b64 s[10:11], s[22:23], s[12:13]")
    if stouch:
        e("s_lshl2_add_u32 s33, s31, s30\ns_lshl_b32 s33, s33, 21\nv_mov_b32 %s, s33\ns_mov_b64 exec, 1" % v(vT2))
        e("global_load_dword %s, %s, s[6:7] nt\ns_mov_b64 exec, -1" % (v(GR), v(vT2)), "t")
    e(ids)
    if swapt:
        e("s_bitcmp1_b32 s31, %d" % (swapt - 1))
        e("s_cselect_b64 s[46:47], s[16:17], s[6:7]\ns_cselect_b64 s[16:17], s[6:7], s[16:17]\ns_mov_b64 s[6:7], s[46:47]")
        e("s_cselect_b64 s[46:47], s[18:19], s[8:9]\ns_cselect_b64 s[18:19], s[8:9], s[18:19]\ns_mov_b64 s[8:9], s[46:47]")
    stamp(1)
    cm("lane offsets inside a 1 KiB load (K: 64-byte quads, V: linear) and the address map of problem A")
    e("v_lshlrev_b32 %s, 4, v1" % v(vVO))
    e("v_bfe_u32 %s, v1, 2, 2\nv_lshlrev_b32 %s, 8, %s" % (v(vKO), v(vKO), v(vKO)))
    e("v_lshrrev_b32 %s, 4, v1\nv_lshl_add_u32 %s, %s, 6, %s" % (v(vT2), v(vKO), v(vT2), v(vKO)))
    e("v_and_b32 %s, 3, v1\nv_lshl_add_u32 %s, %s, 4, %s" % (v(vT3), v(vKO), v(vT3), v(vKO)))
    e("s_lshl_b32 s41, s2, 2\ns_or_b32 s41, s41, s30")
    if rt:
        e("s_mov_b64 s[46:47], s[16:17]\ns_mov_b64 s[48:49], s[18:19]\ns_lshl_b32 s33, s3, 2\ns_or_b32 s33, s33, s30\ns_lshl_b32 s33, s33, 3")
        e("s_add_u32 s4, s28, 0x180000\ns_addc_u32 s5, s29, 0\ns_load_dwordx16 s[12:27], s[4:5], 0x2000\ns_load_dwordx2 s[44:45], s[4:5], s33\ns_waitcnt lgkmcnt(0)")
        e("s_and_b32 s44, s44, 0x7fffc00\ns_and_b32 s45, s45, 0x7fffc00")
        for k in range(11):
            e("s_and_b32 s%d, s%d, 0x%x" % (12 + k, 12 + k, 0x7ffc00 if k < 7 else 0xffc00))
    else:
        wavebase(45, AMAPS[amap], 0)
    e("v_or_b32 %s, s45, %s" % (v(vAD), v(vKO)))
    AK, AV = [("AK", u) for u in range(16)], [("AV", u) for u in range(16)]
    BB = [("BK", 0), ("BK", 1), ("BV", 0), ("BV", 1)]
    seq = AK + AV + BB if order == 1 else AK + BB + AV
    pos = {x: i for i, x in enumerate(seq)}
    breg = {"BK": 16, "BV": 18, "AK": 6, "AV": 8}
    if rt:
        breg.update(BK=46, BV=48)
    fdone = set()
    wok = lambda k: (k % 3) * 4 + k // 3
    WO = slot(2)
    NKV = 8 * len(seq)
    NLD = NKV + 12
    st = {"next": 0, "free": 16, "landed": -1}

    def fstamp(n):
        if n % 2 == 1 and n // 2 + 1 < 64 and n not in fdone:
            fdone.add(n)
            e("s_memrealtime s[68:69]\ns_waitcnt lgkmcnt(0)\nv_writelane_b32 %s, s68, %d" % (v(vFT), n // 2 + 1))

    def issue_upto(n):
        n = min(n, st["free"], NLD)
        inwo = False
        while st["next"] < n:
            q = st["next"]
            i, j = q // 8, q % 8
            if i < len(seq):
                kind, u = seq[i]
                b = breg[kind]
                a = vAD
                cfg, nn, last = (AMAPS[amap], 8 * u + j, 127) if kind[0] == "A" else (BMAPS[bmap], 8 * u + j, 15)
                e("global_load_dwordx4 %s, %s, s[%d:%d] %s" % (v(slot(i) + 4 * j, 4), v(a), b, b + 1, kvflags), "u%d" % q)
                if nn < last and rt:
                    e("v_xor_b32 %s, s%d, %s" % (v(a), (12 if kind[0] == "A" else 19) + ((nn + 1) & -(nn + 1)).bit_length() - 1, v(a)))
                elif nn < last:
                    e("v_xor_b32 %s, 0x%x, %s" % (v(a), tmap(cfg, nn) ^ tmap(cfg, nn + 1), v(a)))
                elif i + 1 < len(seq):
                    nk = seq[i + 1][0]
                    e("v_or_b32 %s, s%d, %s" % (v(a), 45 if nk[0] == "A" else 44, v(vKO if nk[1] == "K" else vVO)))
            else:
                k = q - NKV
                if not inwo:
                    e("s_mov_b64 exec, s[50:51]")
                    inwo = True
                k = wok(k)
                e("global_load_dwordx4 %s, %s, s[10:11] offset:%d %s" % (v(WO + 4 * k, 4), v(vWO), (k % 4) * 1152 + (k // 4) * 128, wflags), "u%d" % q)
            st["next"] += 1
        if inwo:
            e("s_mov_b64 exec, -1")

    def setflags():
        e("s_cmp_gt_i32 s57, %s\ns_cselect_b64 vcc, -1, 0\ns_cselect_b32 s33, s98, s99\ns_cmp_gt_i32 s57, s33" % ("s24" if rt else t1))

    def throttle(q):
        F, M, E = e.newlabel("tf"), e.newlabel("tm"), e.newlabel("te")
        LV = list(LV0)
        if LW and st["next"] >= NKV:
            LV[:3] = [int(c, 16) for c in str(LW)]
        if q >= NKV:
            LV = [int(c, 16) for c in str(wthr)] + [99]
        elif LP:
            pats = str(LP).split("x")[1 if seq[q // 8][0][1] == "V" else 0].split(".")
            LV[:3] = [int(c) for c in pats[q % len(pats)]]
        h = list(e.hist)
        e("s_cbranch_vccnz %s" % F)
        if LV[0] != LV[1]:
            e("s_cbranch_scc1 %s\ns_waitcnt vmcnt(%d)" % (M, LV[0] - 1))
            e.label(M)
        e("s_waitcnt vmcnt(%d)" % (LV[1] - 1))
        e.label(F)
        if LV[2] != LV[3]:
            e("s_cbranch_scc1 %s\ns_waitcnt vmcnt(%d)" % (E, LV[2] - 1))
            e.label(E)
        e.hist = h

    def pump():
        if ctl:
            want(st["next"] - LV0[3])

    def want(q, w=None):
        assert q < st["next"]
        if w is None:
            w = Wend if (nend and q >= NKV - nend) else int(W[q % len(W)], 16)
            if ctl and not (nend and q >= NKV - nend):
                while st["next"] < min(q + 1 + w, st["free"], NLD):
                    throttle(q)
                    e.waitvm("u%d" % q)
                    issue_upto(st["next"] + 1)
        e.waitvm("u%d" % q)
        st["landed"] = max(st["landed"], q)
        issue_upto(q + 1 + w)
        if fine == 1 and q // 8 not in fdone:
            fdone.add(q // 8)
            e("s_memrealtime s[68:69]\ns_waitcnt lgkmcnt(0)\nv_writelane_b32 %s, s68, %d" % (v(vFT), q // 8 + 1))
        if fine == 2:
            fstamp(q + 9)
        if fine == 3 and q >= NKV - 48 and q not in fdone:
            fdone.add(q)
            e("s_memrealtime s[68:69]\ns_waitcnt lgkmcnt(0)\nv_writelane_b32 %s, s68, %d" % (v(vFT), q - NKV + 49))

    issue_upto(W0 - 9)
    cm("v_perm selectors that build the one-hot MFMA operand")
    e("v_mov_b32 %s, 0" % v(vZ))
    e("v_and_b32 %s, 1, v1\nv_cmp_eq_u32 vcc, 1, %s" % (v(vT2), v(vT2)))
    e("v_mov_b32 %s, 0x0c0c0100\nv_mov_b32 %s, 0x01000c0c" % (v(BC), v(BC + 1)))
    e("v_mov_b32 %s, 0x0c0c0302\nv_mov_b32 %s, 0x03020c0c\nv_mov_b32 %s, 0x0c0c0c0c" % (v(BC + 2), v(BC + 3), v(BC + 4)))
    e("v_cndmask_b32 %s, %s, %s, vcc\nv_cndmask_b32 %s, %s, %s, vcc" % (v(BC), v(BC), v(BC + 1), v(BC + 2), v(BC + 2), v(BC + 3)))
    e("v_bfe_u32 %s, v1, 1, 2" % v(vT2))
    for i in range(4):
        e("v_cmp_eq_u32 vcc, %d, %s" % (i, v(vT2)))
        e("v_cndmask_b32 %s, %s, %s, vcc\nv_cndmask_b32 %s, %s, %s, vcc" % (v(SLO + i), v(BC + 4), v(BC), v(SHI + i), v(BC + 4), v(BC + 2)))
    e("v_and_b32 %s, 8, v1\nv_cmp_ne_u32 vcc, 0, %s" % (v(vT2), v(vT2)))
    for i in range(4):
        e("v_cndmask_b32 %s, %s, %s, vcc" % (v(BC + i), v(SLO + i), v(SHI + i)))
    e("v_lshrrev_b32 %s, 5, v1\nv_lshlrev_b32 %s, 8, %s" % (v(vT2), v(vT2), v(vT2)))
    e("v_lshl_add_u32 %s, %s, 1, %s" % (v(vT2), v(vT1), v(vT2)))
    e("v_and_b32 %s, 16, v1\ns_lshl_b32 s34, s30, 9\nv_add3_u32 %s, %s, %s, s34" % (v(vT3), v(vT2), v(vT2), v(vT3)))
    e("s_mov_b32 s40, 0x%x" % CSC)
    stamp(1)
    stamp(1)
    cm("x . wq while the first K loads go out")
    nwq = [wqw]
    for t in range(xpos + 1):
        e.waitvm("wq%d" % t)
        if t in (0, 2, 5):
            stamp(1)
        if t + wqw < 9:
            ldwq(t + wqw)
            nwq[0] += 1
        issue_upto(t + 1 + W0 - 9)
    e("s_barrier")
    e.waitvm("x")
    stamp(1)
    for t in range(9):
        o = OP + 4 * (t % 8)
        for i in range(4):
            xr = XR + 4 * (t // 3) + t % 3
            e("v_perm_b32 %s, %s, %s, %s" % (v(o + i), v(xr), v(xr), v(BC + i)))
        e.waitvm("wq%d" % t)
        if t + wqw < 9 and t + wqw >= nwq[0]:
            ldwq(t + wqw)
        issue_upto(t + 1 + W0 - 9)
        if fine == 2:
            fstamp(t)
        e("%s %s, %s, %s, %s" % (MF, v(DA0, 4), v(o, 4), v(WQ + 4 * t, 4), "0" if t == 0 else v(DA0, 4)))
    jitter(0)
    e("s_mov_b32 exec_lo, 0x00ff00ff\ns_mov_b32 exec_hi, 0xff00ff00\nv_mov_b32 %s, 1" % v(vT3))
    e("ds_write_b128 %s, %s offset:%d" % (v(vT2), v(DA0, 4), QP))
    e("s_mov_b64 exec, 1\nds_add_u32 %s, %s offset:%d\ns_mov_b64 exec, -1" % (v(vZ), v(vT3), F_QP))
    stamp()
    st["free"] = 32
    if not rt:
        wavebase(44, BMAPS[bmap], 28672 * 256)
    e("v_and_b32 %s, 1, v1\nv_lshlrev_b32 %s, 8, %s" % (v(vT0), v(vT0), v(vT0)))
    e("v_lshrrev_b32 %s, 2, v1\nv_lshl_add_u32 %s, %s, 4, %s" % (v(vT2), v(vT0), v(vT2), v(vT0)))
    e("s_mov_b32 s42, 0xcccccccc\ns_mov_b32 s43, 0xcccccccc")
    e("v_and_b32 %s, 15, v1\nv_lshlrev_b32 %s, 5, %s" % (v(vT2), v(vT2), v(vT2)))
    e("v_and_b32 %s, 16, v1\nv_add_u32 %s, %s, %s" % (v(vT3), v(vT2), v(vT2), v(vT3)))
    e("v_and_b32 %s, 32, v1\nv_lshlrev_b32 %s, 4, %s\ns_lshl_b32 s34, s30, 10" % (v(vT3), v(vT3), v(vT3)))
    e("v_add3_u32 %s, %s, %s, s34" % (v(vDL), v(vT2), v(vT3)))
    e("v_lshrrev_b32 %s, 5, v1\nv_lshlrev_b32 %s, 4, %s" % (v(vT1), v(vT1), v(vT1)))
    def signal(flag):
        e("v_mov_b32 %s, 1\ns_mov_b64 exec, 1\nds_add_u32 %s, %s offset:%d\ns_mov_b64 exec, -1" % (v(vT3), v(vZ), v(vT3), flag))

    cm("fill the four-unit ring with K while q is exchanged")
    q = 0
    while st["next"] < 32:
        want(q, W0)
        if q == qtrig:
            signal(F_T1)
        q += 1
    catch = list(range(q, 32))
    stamp()
    cm("wait for q")
    lds_wait(F_Q, "eq", 1, vZ, vT2)
    stamp()

    def catchup(n):
        for _ in range(n):
            if catch:
                want(catch.pop(0), Wc)

    def loadq(pr):
        e("ds_read_b128 %s, %s offset:%d\ns_waitcnt lgkmcnt(0)" % (v(QB0, 4), v(vT0), QB + 512 * pr))
        for i in range(4):
            e("v_cndmask_b32 %s, 0, %s, s[42:43]" % (v(QB1 + i), v(QB0 + i)))
        for i in range(4):
            e("v_cndmask_b32 %s, %s, 0, s[42:43]" % (v(QB0 + i), v(QB0 + i)))

    def mfK(i, j):
        r, t = j // 2, j % 2
        e("%s %s, %s, %s, %s" % (MF, v(DQ + 4 * r, 4), v(slot(i) + 4 * j, 4), v(QB1 if t else QB0, 4), v(DQ + 4 * r, 4) if t else "0"))

    def redK(rs, dst):
        for k in range(1, 4):
            for r in rs:
                c = (r + k) % 4
                src1 = DQ + 4 * r + r if k == 1 else TT + r
                e("v_add_f32_dpp %s, %s, %s row_ror:%d row_mask:0xf bank_mask:0x%x" % (
                    v(TT + r if k < 3 else dst), v(DQ + 4 * r + c), v(src1), 4 * ((r - c) % 4), 0xf if k < 3 else 1 << r))

    def finalize(n, m, l, pp, first):
        t = vT2
        if n == 2:
            e("v_max_f32 %s, %s, %s" % (v(t), v(SS), v(SS + 1)))
        else:
            e("v_max3_f32 %s, %s, %s, %s" % (v(t), v(SS), v(SS + 1), v(SS + 2)))
            e("v_max3_f32 %s, %s, %s, %s" % (v(t + 1), v(SS + 3), v(SS + 4), v(SS + 5)))
            e("v_max3_f32 %s, %s, %s, %s" % (v(t), v(t), v(SS + 6), v(SS + 7)))
            e("v_max_f32 %s, %s, %s" % (v(t), v(t), v(t + 1)))
        dppred("v_max_f32", [t], ["row_ror:2", "row_ror:4", "row_ror:8"])
        xrow("v_max_f32", [t], [t + 1])
        if first:
            e("v_mul_f32 %s, s40, %s" % (v(m), v(t)))
        else:
            e("v_mul_f32 %s, s40, %s\nv_max_f32 %s, %s, %s" % (v(t), v(t), v(t), v(t), v(m)))
            e("v_sub_f32 %s, %s, %s\nv_exp_f32 %s, %s\nv_mov_b32 %s, %s" % (v(t + 1), v(m), v(t), v(t + 1), v(t + 1), v(m), v(t)))
            e("v_mul_f32 %s, %s, %s" % (v(l), v(l), v(t + 1)))
        if n == 8 and npump >= 1:
            pump()
        for k in range(n):
            e("v_fma_f32 %s, %s, s40, -%s" % (v(SS + k), v(SS + k), v(m)))
        for k in range(n):
            e("v_exp_f32 %s, %s" % (v(SS + k), v(SS + k)))
        if n == 8 and npump >= 2:
            pump()
        for k in range(n // 2):
            e("v_cvt_pk_bf16_f32 %s, %s, %s" % (v(pp + k), v(SS + 2 * k), v(SS + 2 * k + 1)))
        for k in range(n):
            if first and k == 0:
                continue
            e("v_add_f32 %s, %s, %s" % (v(l), v(SS + k), v(SS) if (first and k == 1) else v(l)))

    def headsum(l):
        dppred("v_add_f32", [l], ["row_ror:2", "row_ror:4", "row_ror:8"])
        xrow("v_add_f32", [l], [vT2])

    def to_dlayout(dst, src):
        e("v_mov_b32_dpp %s, %s quad_perm:[0,0,0,0] row_mask:0x3 bank_mask:0xf" % (v(dst), v(src)))
        e("v_mov_b32_dpp %s, %s quad_perm:[1,1,1,1] row_mask:0xc bank_mask:0xf" % (v(dst), v(src)))

    def bc(j, pp, half):
        e("v_mov_b32_dpp %s, %s row_newbcast:%d row_mask:0xf bank_mask:0x%x" % (v(BC + j), v(pp), 2 * j + half, 0xc if half else 0x3))

    def perms(j, hi, lo_i=0, hi_i=4):
        for i in range(lo_i, hi_i):
            e("v_perm_b32 %s, %s, %s, %s" % (v(OP + 4 * j + i), v(BC + j), v(BC + j), v((SHI if hi else SLO) + i)))

    def prep_step(j, pp, hi):
        if j == 0:
            bc(0, pp, 0); bc(1, pp, 0); e("s_nop 0"); bc(0, pp, 1); bc(1, pp, 1)
            perms(0, hi)
            return
        if j < 7:
            bc(j + 1, pp, 0)
        perms(j, hi, 0, 2)
        if j < 7:
            bc(j + 1, pp, 1)
        perms(j, hi, 2, 4)

    def mfV(i, j, acc, first):
        e("%s %s, %s, %s, %s" % (MF, v(acc, 4), v(OP + 4 * j, 4), v(slot(i) + 4 * j, 4), "0" if first else v(acc, 4)))

    e("ds_read_b64 %s, %s offset:%d" % (v(GR, 2), v(vZ), F_N0))
    loadq(0)
    e("v_readfirstlane_b32 s62, %s\nv_readfirstlane_b32 s63, %s" % (v(GR), v(GR + 1)))
    if ctl:
        e("s_xor_b32 s55, s30, 1\ns_lshr_b32 s33, s3, %d\ns_or_b32 s55, s55, s33" % (nrep.bit_length() - 1))
        e("s_mov_b32 s98, %s\ns_mov_b32 s99, %s\ns_mov_b32 s57, 0" % (("s25", "s23") if rt else (t2, t0)))
        setflags()
    stamp()

    hooks = {}

    def at(q, f):
        hooks.setdefault(q, []).append(f)

    def send(c):
        cm("256 scores -> running max, probabilities (bf16 pairs), partial sum")
        issue_upto(st["next"] + boost)
        finalize(8, vMR, vLR, PI1 if c else PI0, c == 0)
        if c == 0:
            to_dlayout(vM0, vMR)
        stamp()

    def rec():
        cm("{max, sum} of this wave to LDS")
        headsum(vLB)
        e("v_mov_b32 %s, %s\nv_mov_b32 %s, %s\nv_mov_b32 %s, %s\nv_mov_b32 %s, %s" % (
            v(GR), v(vMR), v(GR + 1), v(vLR), v(GR + 2), v(vMB), v(GR + 3), v(vLB)))
        e("s_lshl_b32 s34, s30, 5\nv_add_u32 %s, s34, %s\ns_mov_b64 exec, 3" % (v(vT2), v(vVO)))
        e("ds_write_b128 %s, %s offset:%d" % (v(vT2), v(GR, 4), MW))
        signal(F_B1)

    def setup_wo():
        cm("wo rows of this workgroup: 32 rows x 192 columns per wave (waves 0..2)")
        e("v_lshrrev_b32 %s, 3, v1\nv_mul_u32_u24 %s, 4608, %s\nv_and_b32 %s, 7, v1" % (v(vT2), v(vT2), v(vT2), v(vT3)))
        e("v_lshl_add_u32 %s, %s, 4, %s" % (v(vWO), v(vT3), v(vT2)))
        e("s_lshl_b32 s34, s31, 3\ns_and_b32 s35, s32, 7\ns_add_u32 s56, s34, s35")
        e("s_mul_i32 s34, s56, %d\ns_min_u32 s35, s30, 2\ns_mul_i32 s35, s35, 384\ns_add_u32 s34, s34, s35" % (32 * 1152))
        e("s_add_u32 s10, s10, s34\ns_addc_u32 s11, s11, 0")
        e("s_cmp_lt_u32 s30, 3\ns_cselect_b64 s[50:51], -1, 1")

    TG1, TG2, AD1, AD2, AD3 = WO + 48, WO + 52, WO + 53, WO + 54, WO + 55

    def scales():
        cm("rescale to the maxima of the workgroup")
        issue_upto(st["next"] + 1)
        lds_wait(F_ML, "eq", 1, vZ, vT2)
        e("ds_read_b64 %s, %s offset:%d" % (v(GR, 2), v(vT1), ML))
        to_dlayout(vT2, vMB)
        to_dlayout(vFA, vMR)
        e("s_waitcnt lgkmcnt(0)")
        e("v_sub_f32 %s, %s, %s\nv_sub_f32 %s, %s, %s\nv_sub_f32 %s, %s, %s" % (
            v(vFA), v(vFA), v(GR), v(vT2), v(vT2), v(GR + 1), v(vT3), v(vM0), v(GR)))
        e("v_exp_f32 %s, %s\nv_exp_f32 %s, %s\nv_exp_f32 %s, %s" % (v(vFA), v(vFA), v(vT2), v(vT2), v(vT3), v(vT3)))
        for r in range(4):
            e("v_mul_f32 %s, %s, %s" % (v(DA0 + r), v(DA0 + r), v(vT3)))
        if order == 1:
            for r in range(4):
                e("v_fma_f32 %s, %s, %s, %s" % (v(DA0 + r), v(DA1 + r), v(vFA), v(DA0 + r)))
            e("v_mov_b32 %s, %s" % (v(vFA), v(vT2)))
            e("ds_write_b128 %s, %s offset:%d" % (v(vDL), v(DA0, 4), DA_L))
        else:
            for r in range(4):
                e("v_mul_f32 %s, %s, %s" % (v(DBc + r), v(DBc + r), v(vT2)))
            e("ds_write_b128 %s, %s offset:%d" % (v(vDL), v(DBc, 4), DB_L))

    def setup_tail1():
        cm("addresses and tags of the level-1 inbox")
        tagsel()
        tagreg(TG1, 1 if l1c else 8, vT2, chk=TG1)
        e("v_and_b32 %s, 7, v1\nv_lshlrev_b32 %s, 7, %s\nv_lshrrev_b32 %s, 3, v1" % (v(vT2), v(vT2), v(vT2), v(vT3)))
        if l1c:
            e("v_lshrrev_b32 %s, 3, %s\nv_lshl_add_u32 %s, %s, 8, %s" % (v(AD1), v(vT2), v(AD1), v(vT3), v(AD1)))
        else:
            e("v_lshl_add_u32 %s, %s, 4, %s" % (v(AD1), v(vT3), v(vT2)))
        e("s_lshl_b32 s34, s2, 11\ns_add_u32 s34, s34, 0x%x\ns_add_u32 s46, s28, s34\ns_addc_u32 s47, s29, 0" % L1_OFF)
        e("v_mov_b32 %s, %s" % (v(AD3), v(vT2)))
        e("s_lshl_b32 s34, s31, 11\ns_lshr_b32 s35, s32, 2\ns_lshl_b32 s35, s35, 4\ns_add_u32 s34, s34, s35")
        e("s_add_u32 s34, s34, 0x%x\ns_add_u32 s52, s28, s34\ns_addc_u32 s53, s29, 0" % G_OFF)

    def setup_tail2():
        cm("address and tag of the level-2 outbox (wave 3: level-1 outbox of problem B)")
        tagreg(TG2, 1, vT2)
        e("v_and_b32 %s, 8, v1\nv_cmp_ne_u32 vcc, 0, %s\nv_lshrrev_b32 %s, 5, v1" % (v(vT2), v(vT2), v(vT3)))
        e("v_cndmask_b32 %s, %s, 2, vcc" % (v(vT3), v(vT3)))
        if pb < 3:
            e("v_bfe_u32 %s, v1, %d, %d\nv_lshl_add_u32 %s, %s, %d, %s" % (v(vT2), pb, 3 - pb, v(vT2), v(vT3), 3 - pb, v(vT2)))
        else:
            e("v_mov_b32 %s, %s" % (v(vT2), v(vT3)))
        e("v_bfe_u32 %s, v1, 4, 1\nv_lshl_add_u32 %s, %s, 1, %s\nv_lshlrev_b32 %s, %d, %s" % (v(vT3), v(vT2), v(vT2), v(vT3), v(vT2), 11 + pb, v(vT2)))
        e("v_and_b32 %s, %d, v1\nv_lshl_add_u32 %s, %s, 4, %s" % (v(vT3), (1 << pb) - 1, v(AD2), v(vT3), v(vT2)))
        e("s_lshr_b32 s34, s32, 3\ns_mul_i32 s34, s34, 3\ns_add_u32 s34, s34, s30\ns_mul_i32 s34, s34, %d" % (12 * 8192))
        e("s_lshl_b32 s35, s56, %d\ns_add_u32 s34, s34, s35\ns_add_u32 s34, s34, 0x%x" % (4 + pb, L2_OFF))
        e("s_add_u32 s48, s28, s34\ns_addc_u32 s49, s29, 0")
        with optional("s_cmp_lg_u32 s30, 3"):
            tagreg(TG2, 1, vT2)
            l1_out_addr(AD2, vT2, vT3, 48, 1, TG2)
        e("ds_read_b32 %s, %s offset:%d\ns_waitcnt lgkmcnt(0)\nv_readfirstlane_b32 s61, %s" % (v(vT2), v(vZ), F_LOC, v(vT2)))
        if fpos >= 0:
            e("s_lshl_b32 s33, s2, 7\ns_lshl_b32 s34, s30, 4\ns_add_u32 s33, s33, s34\ns_add_u32 s33, s33, 0x%x" % (G_OFF + 64))
            e("s_add_u32 s4, s28, s33\ns_addc_u32 s5, s29, 0\nv_mov_b32 %s, s62\nv_mov_b32 %s, s63\nv_mov_b32 %s, 1" % (v(QB0), v(QB0 + 1), v(QB0 + 2)))

    K0 = 32
    at(8 * 8 + 1, lambda: send(0))
    at(8 * 16 + 1, lambda: send(1))
    at(8 * 17 + 2, lambda: headsum(vLR))
    at(8 * pos[("BV", 0)] + 1, rec)
    at(8 * 22 + 2, setup_wo)
    for qq in (70, 140, 150, 230, 280) if jit else ():
        at(qq, lambda: jitter(5))
    at(8 * 28, stamp)
    at(NKV - (7 if order == 1 else 22), scales)
    at(8 * 24 + 2, setup_tail1)
    at(8 * 26 + 2, setup_tail2)
    at(NKV - gtrig, lambda: signal(F_T2))
    GA, GB = WO + 56, WO + 60
    ldg = "global_load_dwordx4 %s, %s, s[52:53] sc1\nglobal_load_dwordx4 %s, %s, s[52:53] offset:1024 sc1" % (v(GA, 4), v(AD3), v(GB, 4), v(AD3))
    ldg = ldg.replace("sc1", l1lf)
    red8 = ["quad_perm:[1,0,3,2]", "quad_perm:[2,3,0,1]", "row_half_mirror"]

    def weights():
        cm("softmax weights of the 16 splits")
        L, D = e.newlabel("g1"), e.newlabel("g1d")
        e.waitvm("g")
        e("s_mov_b32 s35, %d" % SPIN)
        e.label(L)
        e("v_xor_b32 %s, s62, %s\nv_xor_b32 %s, s63, %s" % (v(vT2), v(GA + 1), v(vT3), v(GA + 3)))
        e("v_bitop3_b32 %s, %s, %s, s62 bitop3:0xf6\nv_bitop3_b32 %s, %s, %s, s63 bitop3:0xf6" % (v(vT2), v(vT2), v(GB + 1), v(vT3), v(vT3), v(GB + 3)))
        e("v_or_b32 %s, %s, %s\nv_cmp_ne_u32 vcc, 0, %s\ns_cbranch_vccz %s" % (v(vT2), v(vT2), v(vT3), v(vT2), D))
        h, vm = list(e.hist), list(e.vm)
        if not raw:
            e(ldg + "\ns_waitcnt vmcnt(0)\ns_sub_u32 s35, s35, 1\ns_cbranch_scc0 %s" % L)
        e.label(D)
        e.hist, e.vm = h, vm
        e("v_max_f32 %s, %s, %s" % (v(vT2), v(GA), v(GB)))
        dppred("v_max_f32", [vT2], red8)
        e("v_sub_f32 %s, %s, %s\nv_sub_f32 %s, %s, %s" % (v(GA), v(GA), v(vT2), v(GB), v(GB), v(vT2)))
        e("v_exp_f32 %s, %s\nv_exp_f32 %s, %s" % (v(GA), v(GA), v(GB), v(GB)))
        e("v_mul_f32 %s, %s, %s\nv_fma_f32 %s, %s, %s, %s" % (v(vT2), v(GA), v(GA + 2), v(vT2), v(GB), v(GB + 2), v(vT2)))
        dppred("v_add_f32", [vT2], red8)
        e("v_rcp_f32 %s, %s" % (v(vT2), v(vT2)))
        e("v_mul_f32 %s, %s, %s\nv_mul_f32 %s, %s, %s" % (v(GA), v(GA), v(vT2), v(GB), v(GB), v(vT2)))

    if gld:
        at(NKV - gld, lambda: e(ldg, "g"))
        if wearly:
            at(NKV - gld + 11, weights)

    def ppof(kind, u):
        return (vPB, u) if kind == "BV" else ((PI1 if u >= 8 else PI0) + (u % 8) // 2, u % 2)

    reddone = set()

    def red(qq):
        if qq >= 0 and seq[qq // 8][0][1] == "K" and qq not in reddone:
            reddone.add(qq)
            redK([(qq % 8) // 2], SS + seq[qq // 8][1] % 8)

    for q in range(NKV):
        i, j = q // 8, q % 8
        kind, u = seq[i]
        if j == 0:
            cm("---- unit %d: %s %s %d" % (i, kind[0], "keys" if kind[1] == "K" else "values", u))
        if (kind, u, j) == ("BK", 0, 0):
            loadq(1)
        if (kind, u, j) == ("BV", 0, 0):
            want(q)
            red(q - 1)
            finalize(2, vMB, vLB, vPB, True)
            want(q + 1)
            for k in range(8):
                prep_step(k, vPB, False)
            if npump:
                want(q + 2)
        if q < K0:
            want(q, 0 if q < catch[0] else Wc)
        else:
            want(q)
        if kind[1] == "K":
            mfK(i, j)
        else:
            mfV(i, j, DBc if kind == "BV" else (DA1 if u >= 8 else DA0), u % 8 == 0 and j == 0)
        st["free"] = 33 + q if q < 16 else max(48, q + 17)
        if q < K0 and q % 6 == 0 and len(catch) > 1:
            catchup(1)
        if j % 2 == 1:
            red(q - 2)
        if i + 1 < len(seq) and seq[i + 1][0][1] == "V" and seq[i + 1] != ("BV", 0):
            prep_step(j, *ppof(*seq[i + 1]))
        hk = hooks.pop(q, [])
        for f in hk:
            f()
        if ctl and q >= K0:
            dirty = bool(hk)
            use = i > ms[0] + mdel
            if j == 4 and i - mdel in ms:
                signal(F_P)
            if j == 4 and (use or i in ms):
                e("s_memrealtime s[58:59]")
                if use:
                    e("ds_read_b64 %s, %s offset:%d" % (v(vRF, 2), v(vZ), F_REF))
            if j == 6 and (use or i in ms):
                e("s_waitcnt lgkmcnt(0)")
                per = cb / 80.0
                cor = "s_cmp_gt_i32 s60, %d\ns_cselect_b32 s33, 0, %d\ns_cmp_gt_i32 s60, %d\ns_cselect_b32 s33, %d, s33\ns_cmp_gt_i32 s60, %d\ns_cselect_b32 s33, %d, s33\ns_add_u32 s58, s58, s33"
                cork = lambda k: cor % (t0, round(k * per * (LV0[0] - LV0[1])), t1, round(k * per * (LV0[2] - LV0[1])), t2, round(k * per * (LV0[3] - LV0[1])))
                if (rcor and i in ms) or lcor:
                    e("s_mov_b32 s60, s57")
                if lcor:
                    e(cork(lcor / 10.0))
                if use:
                    e("v_readfirstlane_b32 s54, %s\nv_readfirstlane_b32 s59, %s\ns_sub_u32 s57, s58, s54" % (v(vRF), v(vRF + 1)))
                    e("s_mul_i32 s33, s59, %d\ns_lshr_b32 s33, s33, 4\ns_cselect_b32 s57, s57, 0\ns_sub_u32 s57, s57, s33" % i)
                if fine == 1 and i % 2 == 0:
                    e("v_writelane_b32 %s, s57, %d" % (v(vFT), 41 + i // 2))
                if i in ms:
                    with optional("s_cmp_lg_u32 s55, 0"):
                        if rcor:
                            e(cork(1 - lcor / 10.0))
                        e("s_add_u32 s58, s58, s62\ns_lshl_b32 s33, s3, %d\ns_add_u32 s33, s33, %d" % (rsh, RP_OFF + 4352 * ms.index(i)))
                        e("v_mov_b32 %s, s33\nv_mov_b32 %s, s58\ns_mov_b64 exec, 1" % (v(vT2), v(vT3)))
                        e("global_store_dword %s, %s, s[28:29] %s\ns_mov_b64 exec, -1" % (v(vT2), v(vT3), rf))
                dirty = True
            if dirty:
                setflags()
    assert not hooks, hooks.keys()
    stamp()
    if order == 1:
        for r in range(4):
            e("v_mul_f32 %s, %s, %s" % (v(DBc + r), v(DBc + r), v(vFA)))
        e("ds_write_b128 %s, %s offset:%d" % (v(vDL), v(DBc, 4), DB_L))
    else:
        for r in range(4):
            e("v_fma_f32 %s, %s, %s, %s" % (v(DA0 + r), v(DA1 + r), v(vFA), v(DA0 + r)))
        e("ds_write_b128 %s, %s offset:%d" % (v(vDL), v(DA0, 4), DA_L))
    if wob:
        issue_upto(NLD)
    e("s_waitcnt lgkmcnt(0)\ns_barrier")
    e("s_cmp_eq_u32 s30, 3\ns_cbranch_scc1 L_w3")
    if not gld:
        e(ldg, "g")
    if olast:
        st["free"] = NLD - olast
        issue_upto(NKV + Wwo)
    elif wthr:
        setflags()
        while st["next"] < NLD:
            throttle(NKV)
            issue_upto(st["next"] + 1)
    else:
        issue_upto(NLD)
    if not wearly:
        weights()
    if fine == 3:
        for q in range(NKV, NLD):
            want(q, 0)
    cm("level 1: o[32] of our wo rows = weighted sum over the splits, then o . wo")
    X, Y = OP, OP + 4
    ldo = "global_load_dwordx4 %s, %s, s[46:47] sc1\nglobal_load_dwordx4 %s, %s, s[46:47] offset:%d sc1" % (v(X, 4), v(AD1), v(Y, 4), v(AD1), 128 if l1c else 1024)
    ldo = ldo.replace("sc1", l1lf)
    L, D = e.newlabel("l1"), e.newlabel("l1d")
    if olast:
        q = NKV
        while q + Wwo <= NLD - olast + okeep:
            want(q, Wwo)
            q += 1
        e(ldo + "\ns_mov_b32 s35, %d" % SPIN, "o")
        st["free"] = NLD
        issue_upto(NLD)
        e.waitvm("o")
    else:
        e.waitvm("u%d" % (NLD - 1 - okeep))
        e(ldo + "\ns_mov_b32 s35, %d" % SPIN)
        e.waitvm()
    e.label(L)
    tagcheck([X, Y], TG1, vT2, vT3)
    e("s_cbranch_vccz %s" % D)
    vm = list(e.vm)
    if not raw:
        e(ldo + "\ns_waitcnt vmcnt(0)\ns_sub_u32 s35, s35, 1\ns_cbranch_scc0 %s" % L)
    e.label(D)
    e.hist, e.vm = [], vm
    stamp()

    def ready(p):
        if p == fpos:
            e("s_mov_b64 exec, 1\nglobal_store_dwordx2 %s, %s, s[4:5]" % (v(vZ), v(QB0, 2)), "fl")
            e("ds_add_u32 %s, %s offset:%d\ns_mov_b64 exec, -1" % (v(vZ), v(QB0 + 2), F_T3))

    ready(0)
    for r in range(4):
        e("v_mul_f32 %s, %s, %s" % (v(X + r), v(X + r), v(GA)))
    for r in range(4):
        e("v_fma_f32 %s, %s, %s, %s" % (v(X + r), v(Y + r), v(GB), v(X + r)))
    dppred("v_add_f32", [X, X + 1, X + 2, X + 3], ["quad_perm:[1,0,3,2]", "quad_perm:[2,3,0,1]", "row_half_mirror"])
    e("v_cvt_pk_bf16_f32 %s, %s, %s\nv_cvt_pk_bf16_f32 %s, %s, %s" % (v(BC), v(X), v(X + 1), v(BC + 1), v(X + 2), v(X + 3)))
    ready(1)
    G = [slot(0), slot(0) + 4, slot(0) + 8]
    Z, R = slot(0) + 12, slot(0) + 16
    for rg in range(5):
        if rg < 4:
            for i in range(4):
                e("v_perm_b32 %s, %s, %s, %s" % (v(OP + 8 + 4 * rg + i), v(BC + rg // 2), v(BC + rg // 2), v((SHI if rg % 2 else SLO) + i)))
        if rg > 0:
            for g in range(3):
                e.waitvm("u%d" % (NKV + 3 * (rg - 1) + g))
                e("%s %s, %s, %s, %s" % (MF, v(G[g], 4), v(OP + 4 + 4 * rg, 4), v(WO + 4 * (4 * g + rg - 1), 4), "0" if rg == 1 else v(G[g], 4)))
    ready(2)
    for r in range(4):
        e("v_permlane32_swap_b32 %s, %s" % (v(G[0] + r), v(G[1] + r)))
    for r in range(4):
        e("v_permlane32_swap_b32 %s, %s" % (v(G[2] + r), v(Z + r)))
    for r in range(4):
        e("v_add_f32_dpp %s, %s, %s row_ror:8 row_mask:0xf bank_mask:0x3" % (v(R + r), v(G[1] + r), v(G[0] + r)))
    for r in range(4):
        e("v_add_f32_dpp %s, %s, %s row_ror:8 row_mask:0xf bank_mask:0xc" % (v(R + r), v(G[2] + r), v(Z + r)))
    tagput(R, TG2)
    jitter(2)
    e("s_mov_b32 exec_hi, 0x00ff00ff")
    e("global_store_dwordx4 %s, %s, s[48:49] %s" % (v(AD2), v(R, 4), l2sf))
    stamp()
    ready(3)
    if fdel:
        if fack:
            e("s_waitcnt vmcnt(0)")
        signal(F_T3)
    e.label("L_sdone")
    if fine:
        e("s_mov_b64 exec, -1\ns_waitcnt lgkmcnt(0)\nv_writelane_b32 %s, s70, 0" % v(vFT))
        if fine == 1:
            e("s_getreg_b32 s33, hwreg(HW_REG_HW_ID)\nv_writelane_b32 %s, s33, 40" % v(vFT))
        e("s_lshl_b32 s33, s3, 2\ns_add_u32 s33, s33, s30\ns_lshl_b32 s33, s33, 8\ns_add_u32 s33, s33, 0x%x" % (STAMP_OFF + 0x100000))
        e("v_lshl_add_u32 v19, v1, 2, s33\nglobal_store_dword v19, %s, s[28:29]" % v(vFT))
    write_stamps(vT2, "s")
    e("s_endpgm")
    e.hist, e.vm = [], []
    cm("wave 3: sum the B partials of the four waves and send them")
    e.label("L_w3")
    sumpub(DB_L, OP, vVO, AD2, 48, TG2)
    e("s_branch L_sdone" if stamps else "s_endpgm")

    e.hist, e.vm = [], []
    nst[0] = base_st
    e.raw(".p2align 6")
    cm("==== communication wave")
    e.label("L_comm")
    e("s_setprio 3\ns_memrealtime s[56:57]")
    e(ids)
    e("v_lshlrev_b32 v2, 2, v1\nv_mov_b32 v3, 0\nds_write_b32 v2, v3 offset:%d" % FL)
    cZ, c16, cT, cU, cA, cO = 2, 3, 4, 5, 6, 7
    A0 = 8
    TG, TP = 60, 100
    e("v_mov_b32 %s, 0\nv_lshlrev_b32 %s, 4, v1" % (v(cZ), v(c16)))
    if warm:
        cm("pull a slice of this kernel's own code into the L2")
        e("s_getpc_b64 s[36:37]")
        e.label("L_pc0")
        e("s_sub_u32 s36, s36, L_pc0-%s\ns_subb_u32 s37, s37, 0" % KN)
    if warm and swarm:
        e("s_lshr_b32 s33, s3, 3\ns_mulk_i32 s33, %d\ns_min_u32 s33, s33, L_end-%s-%d\ns_add_u32 s36, s36, s33\ns_addc_u32 s37, s37, 0" % (128 * wl, KN, 128 * wl - 64))
    if warm and not swarm:
        e("s_lshr_b32 s33, s3, 3\ns_mulk_i32 s33, %d\nv_lshl_add_u32 %s, v1, 7, s33" % (128 * wl, v(cU)))
        e("v_min_u32 %s, L_end-%s, %s\ns_mov_b64 exec, 0x%x" % (v(cU), KN, v(cU), (1 << wl) - 1))
        e("global_load_dword %s, %s, s[36:37]" % (v(A0), v(cU)))
    if touch:
        e("s_lshl_b32 s38, s31, 23\ns_add_u32 s39, s38, %d" % (28672 * 256))
        e("v_lshl_add_u32 %s, v1, 21, s38\nv_mov_b32 %s, s39" % (v(A0 + 12), v(A0 + 13)))
        e("s_lshl_b32 s33, s31, 3\ns_and_b32 s34, s32, 7\ns_add_u32 s33, s33, s34\ns_mul_i32 s33, s33, %d\nv_mov_b32 %s, s33" % (32 * 1152, v(A0 + 15)))
    e("s_cmp_ge_u32 s32, 8\ns_waitcnt lgkmcnt(0)\ns_cselect_b64 s[12:13], s[22:23], s[12:13]\ns_mov_b64 exec, 1")
    cm("workgroup 0 publishes the launch nonce")
    e("s_cmp_lg_u32 s3, 0\ns_cbranch_scc1 L_nolead")
    e("s_lshr_b64 s[56:57], s[56:57], 8\ns_mul_i32 s33, s56, 0x9e3779b1\ns_mul_i32 s34, s56, 0x85ebca6b\ns_add_u32 s34, s34, s57")

    for r in (33, 34):
        e("s_and_b32 s35, s%d, 0x7f\ns_lshr_b32 s%d, s%d, 7\ns_lshl_b32 s%d, s%d, 9\ns_lshl_b32 s35, s35, 1\ns_or_b32 s%d, s%d, s35\ns_or_b32 s%d, s%d, 1" % (
            r, r, r, r, r, r, r, r, r))
    jitter(4)
    e("v_mov_b32 v16, s33\nv_mov_b32 v17, s34\nv_mov_b32 v18, 0\nv_mov_b32 v19, 0")
    e("global_atomic_cmpswap_x2 %s, v[16:19], s[26:27] sc1" % v(cZ))
    e.label("L_nolead")
    if touch:
        e("global_load_dword %s, %s, s[16:17] nt\nglobal_load_dword %s, %s, s[18:19] nt" % (v(A0), v(A0 + 13), v(A0), v(A0 + 13)))
        e("global_load_dword %s, %s, s[12:13] nt\ns_mov_b64 exec, 15" % (v(A0), v(A0 + 15)))
        e("global_load_dword %s, %s, s[6:7] nt\nglobal_load_dword %s, %s, s[8:9] nt" % (v(A0), v(A0 + 12), v(A0), v(A0 + 12)))
        e("s_mov_b64 exec, 1")
    def pretouch(ex):
        if spre:
            e("s_lshl_b32 s33, s2, 11\ns_add_u32 s46, s28, s33\ns_addc_u32 s47, s29, 0\ns_lshl_b32 s33, s2, 7\ns_add_u32 s33, s33, 0x%x" % G_OFF)
            e("s_load_dword s48, s[28:29], s33\ns_add_u32 s33, s33, 64\ns_load_dword s48, s[28:29], s33")
            for k in range(32):
                e("s_load_dword s48, s[46:47], 0x%x" % (L1_OFF + 64 * k))
            return
        e("s_mov_b64 exec, 0xffff\ns_lshl_b32 s33, s2, 11\ns_add_u32 s33, s33, 0x%x\nv_lshl_add_u32 %s, v1, 7, s33" % (L1_OFF, v(cT)))
        e("s_lshl_b32 s33, s2, 7\ns_add_u32 s33, s33, 0x%x\nv_writelane_b32 %s, s33, 16\ns_mov_b64 exec, 0x1ffff" % (G_OFF, v(cT)))
        e("global_load_dword %s, %s, s[28:29] sc1\ns_mov_b64 exec, %d" % (v(A0 + 45), v(cT), ex))

    if warm and swarm:
        for k in range(2 * wl):
            e("s_load_dword s48, s[36:37], %d" % (64 * k))
    if pre1 == 2:
        pretouch(1)
    e("s_barrier")
    if raw:
        e("s_endpgm")
    cm("read the nonce")
    L, D = e.newlabel("gf"), e.newlabel("gfd")
    e("s_mov_b32 s35, %d" % SPIN)
    if nsl:
        e("s_sleep %d" % nsl)
    if npoll == 2:
        e("global_load_dwordx2 %s, %s, s[26:27] sc1\ns_sleep 12" % (v(A0 + 2, 2), v(cZ)))
    e.label(L)
    for k in range(npoll):
        e("global_load_dwordx2 %s, %s, s[26:27] sc1" % (v(A0 + 2 * npoll - 2 * k, 2), v(cZ)))
        e("s_waitcnt vmcnt(%d)" % (npoll - 1))
        e("v_readfirstlane_b32 s62, %s\nv_readfirstlane_b32 s63, %s" % (v(A0 + 2 + 2 * k), v(A0 + 3 + 2 * k)))
        e("s_and_b32 s34, s62, s63\ns_bitcmp1_b32 s34, 0\ns_cbranch_scc1 %s" % D)
    e("s_sub_u32 s35, s35, 1\ns_cbranch_scc0 %s" % L)
    e.label(D)
    e.vm = []
    e("s_mov_b64 exec, -1\nv_mov_b32 %s, s62\nv_mov_b32 %s, s63" % (v(A0 + 16), v(A0 + 17)))
    e("ds_write_b64 %s, %s offset:%d" % (v(cZ), v(A0 + 16, 2), F_N0))
    stamp()
    tagsel()
    tagreg(TP, 1, cT, chk=TG)
    e("s_lshl_b32 s33, s31, 12\ns_add_u32 s33, s33, 0x%x\ns_add_u32 s36, s28, s33\ns_addc_u32 s37, s29, 0" % Q_OFF)
    e("s_lshl_b32 s33, s32, 8\ns_add_u32 s38, s36, s33\ns_addc_u32 s39, s37, 0")
    e("s_getreg_b32 s60, hwreg(HW_REG_XCC_ID, 0, 4)\ns_lshl_b32 s33, s60, 24\nv_xor_b32 v103, s33, %s" % v(TP))
    cm("sum and send our 64 partial q values (the XCD id rides in a tag)")
    lds_wait(F_QP, "eq", 4, cZ, cT)
    e("s_mov_b64 exec, 0xffff")
    R0 = A0 + 16
    for k in range(8):
        e("ds_read_b128 %s, %s offset:%d" % (v(R0 + 4 * k, 4), v(c16), QP + 256 * k))
    e("s_waitcnt lgkmcnt(0)")
    for stp in (16, 8, 4):
        for k in range(stp):
            e("v_add_f32 %s, %s, %s" % (v(R0 + k), v(R0 + k), v(R0 + stp + k)))
    tagput(R0, 103)
    e("global_store_dwordx4 %s, %s, s[38:39] %s\ns_mov_b64 exec, -1" % (v(c16), v(R0, 4), qsf) if not noq else "s_mov_b64 exec, -1")
    stamp()
    if qpre:
        e("s_waitcnt vmcnt(0)\ns_load_dword s48, s[38:39], 0\ns_load_dword s48, s[38:39], 64\ns_load_dword s48, s[38:39], 128\ns_load_dword s48, s[38:39], 192")
    if pre1 == 3:
        pretouch(-1)
    QS = 64
    cm("fetch q of the head once the stream is far enough that it is normally complete")
    lds_wait(F_T1, "ge", 1, cZ, cT, sleep=1)
    L, D = e.newlabel("qp"), e.newlabel("qd")
    e("s_mov_b32 s35, %d" % SPIN)
    if noq:
        for j in range(16):
            e("v_mov_b32 %s, s60" % v(QS + j))
        e("s_branch %s" % D)
    e.label(L)
    for j in range(4):
        e("global_load_dwordx4 %s, %s, s[36:37] offset:%d %s" % (v(QS + 4 * j, 4), v(c16), 1024 * j, qlf))
    e.waitvm()
    for j in range(4):
        for r in range(4):
            e("v_xor_b32 %s, %s, %s" % (v(QS + 4 * j + r), v(QS + 4 * j + r), v(TG + r)))
    e("v_or3_b32 %s, %s, %s, %s\nv_or_b32 %s, %s, %s" % (v(cU), v(QS + 3), v(QS + 7), v(QS + 11), v(cU), v(cU), v(QS + 15)))
    e("v_and_b32 %s, 0xf0, %s" % (v(cT), v(cU)))
    for j in range(4):
        e("v_or3_b32 %s, %s, %s, %s\nv_or_b32 %s, %s, %s" % (v(cT), v(cT), v(QS + 4 * j), v(QS + 4 * j + 1), v(cT), v(cT), v(QS + 4 * j + 2)))
    e("v_and_b32 %s, 0xff, %s\nv_cmp_ne_u32 vcc, 0, %s" % (v(cT), v(cT), v(cT)))
    e("s_cbranch_vccz %s\ns_sub_u32 s35, s35, 1\ns_cbranch_scc0 %s" % (D, L))
    e.label(D)
    e("v_xor_b32 %s, s60, %s" % (v(QS + 16), v(QS + 3)))
    for j in range(1, 4):
        e("v_bitop3_b32 %s, %s, %s, s60 bitop3:0xf6" % (v(QS + 16), v(QS + 16), v(QS + 4 * j + 3)))
    for j in range(4):
        e("v_and_b32 %s, -16, %s" % (v(QS + 4 * j + 3), v(QS + 4 * j + 3)))
    for pr in range(2):
        for r in range(4):
            e("v_add_f32 %s, %s, %s" % (v(A0 + 4 * pr + r), v(QS + 8 * pr + r), v(QS + 8 * pr + 4 + r)))
    e("v_lshlrev_b32 %s, 3, v1\nv_mov_b32 %s, 1" % (v(cO), v(cU)))
    for k in range(4):
        e("v_cvt_pk_bf16_f32 %s, %s, %s" % (v(A0 + 8 + k), v(A0 + 2 * k), v(A0 + 2 * k + 1)))
    e("ds_write_b64 %s, %s offset:%d\nds_write_b64 %s, %s offset:%d" % (v(cO), v(A0 + 8, 2), QB, v(cO), v(A0 + 10, 2), QB + 512))
    e("ds_write_b32 %s, %s offset:%d" % (v(cZ), v(cU), F_Q))
    e("v_and_b32 %s, 15, %s" % (v(QS + 16), v(QS + 16)))
    e("v_cmp_ne_u32 vcc, 0, %s\ns_nop 1\ns_cmp_eq_u64 vcc, 0\ns_cselect_b32 s61, 1, 0\nv_mov_b32 %s, s61" % (v(QS + 16), v(cU)))
    e("ds_write_b32 %s, %s offset:%d" % (v(cZ), v(cU), F_LOC))
    stamp()
    e("v_and_b32 %s, 1, v1\nv_bfe_u32 %s, v1, 1, 1\nv_lshlrev_b32 %s, 4, %s" % (v(cT), v(cU), v(cT), v(cT)))
    e("v_lshl_add_u32 %s, %s, 3, %s\nv_lshl_add_u32 %s, %s, 2, %s" % (v(A0 + 20), v(cU), v(cT), v(A0 + 21), v(cU), v(cT)))
    e("s_lshl_b32 s33, s2, 7\ns_add_u32 s33, s33, 0x%x\ns_add_u32 s38, s28, s33\ns_addc_u32 s39, s29, 0" % G_OFF)
    l1_out_addr(cA, cT, cU, 36, 0, TP)
    e("s_lshl_b32 s33, s3, %d\ns_add_u32 s33, s33, 0x%x\ns_add_u32 s40, s28, s33\ns_addc_u32 s41, s29, 0" % (11 + pb, L2_OFF + 4096))
    e("s_add_u32 s44, s40, 8192\ns_addc_u32 s45, s41, 0")
    if fpos >= 0:
        e("v_and_b32 %s, 15, v1\nv_lshlrev_b32 %s, 7, %s\nv_and_b32 %s, 48, v1" % (v(cT), v(cT), v(cT), v(cU)))
        e("s_lshl_b32 s33, s31, 11\ns_add_u32 s33, s33, 0x%x\nv_add3_u32 v106, %s, %s, s33" % (G_OFF + 64, v(cT), v(cU)))
    e("s_lshr_b32 s33, s3, 1\ns_lshl_b32 s33, s33, %d\ns_and_b32 s34, s3, 1\ns_lshl_b32 s34, s34, 3\ns_add_u32 s33, s33, s34" % (4 + pb))
    e("s_add_u32 s24, s24, s33\ns_addc_u32 s25, s25, 0\nv_mov_b32 %s, %s" % (v(cO), v(c16)))
    def reference(n):
        cm("progress reference: mean time of the reporters at the milestone, time per unit")
        lds_wait(F_P, "ge", 4 * n + 1, cZ, cT, sleep=4)
        if rsh == 2:
            e("s_load_dwordx16 s[4:19], s[28:29], 0x%x" % (RP_OFF + 4352 * n))
        else:
            for k in range(nrep):
                e("s_load_dword s%d, s[28:29], 0x%x" % (4 + k, RP_OFF + 4352 * n + (k << rsh)))
        e("s_memrealtime s[58:59]\ns_waitcnt lgkmcnt(0)")
        e("s_add_u32 s20, s58, s62\ns_mov_b32 s21, %d\ns_mov_b32 s22, 0" % (cb * mdel // 10))
        for k in range(nrep):
            e("s_sub_u32 s33, s20, s%d\ns_cmp_lt_u32 s33, 2048\ns_cselect_b32 s21, s33, s21\ns_add_u32 s22, s22, s21" % (4 + k))
        e("s_lshr_b32 s22, s22, %d\ns_sub_u32 s22, s58, s22\ns_mov_b32 s21, %d" % (nrep.bit_length() - 1, cb * 16 // 10))
        if n and smar >= 0:
            e("s_sub_u32 s33, s22, s23\ns_mul_i32 s33, s33, %d\ns_lshr_b32 s33, s33, 8\ns_sub_u32 s33, s33, %d" % (
                4096 // (ms[n] - ms[n - 1]), smar * 16 // 10))
            e("s_max_i32 s21, s21, s33\ns_min_i32 s21, s21, %d" % (cb * 32 // 10))
        e("s_mov_b32 s23, s22\ns_mul_i32 s33, s21, %d\ns_lshr_b32 s33, s33, 4\ns_sub_u32 s22, s22, s33" % ms[n])
        e("v_mov_b32 v104, s22\nv_mov_b32 v105, s21\nds_write_b64 %s, v[104:105] offset:%d" % (v(cZ), F_REF))

    e("s_setprio 0")
    early = [n for n in range(len(ms)) if 8 * (ms[n] + mdel) + 4 <= 288 - gtrig] if ctl else []
    for n in early:
        reference(n)
    cm("touch the lines of the group exchange, then {max, sum} of the workgroup")
    lds_wait(F_T2, "ge", 1, cZ, cT, sleep=8)
    if pre1 == 1:
        pretouch(-1)
        e.waitvm()
    lds_wait(F_B1, "eq", 4, cZ, cT, sleep=1)
    for k in range(4):
        e("ds_read_b64 %s, %s offset:%d" % (v(A0 + 2 * k, 2), v(A0 + 20), MW + 32 * k))
    e("s_waitcnt lgkmcnt(0)")
    GN = 56
    e("v_max3_f32 %s, %s, %s, %s\nv_max_f32 %s, %s, %s" % (v(GN), v(A0), v(A0 + 2), v(A0 + 4), v(GN), v(GN), v(A0 + 6)))
    for k in range(4):
        e("v_sub_f32 %s, %s, %s" % (v(A0 + 2 * k), v(A0 + 2 * k), v(GN)))
    for k in range(4):
        e("v_exp_f32 %s, %s" % (v(A0 + 2 * k), v(A0 + 2 * k)))
    e("v_mul_f32 %s, %s, %s" % (v(GN + 2), v(A0), v(A0 + 1)))
    for k in range(1, 4):
        e("v_fma_f32 %s, %s, %s, %s" % (v(GN + 2), v(A0 + 2 * k), v(A0 + 2 * k + 1), v(GN + 2)))
    e("v_mov_b32 %s, s62\nv_mov_b32 %s, s63\nv_mov_b32 %s, 1" % (v(GN + 1), v(GN + 3), v(cU)))
    e("ds_write_b32 %s, %s offset:%d\nds_write_b32 %s, %s offset:%d" % (v(A0 + 21), v(GN), ML, v(cZ), v(cU), F_ML))
    stamp()
    jitter(3)
    jitter(3)
    e("s_mov_b64 exec, 0xff")
    groupstore("global_store_dwordx4 %s, %s, s[38:39]" % (v(c16), v(GN, 4)))
    e("s_mov_b64 exec, -1")
    for n in range(len(early), len(ms) if ctl else 0):
        reference(n)
    e("s_setprio 3")
    if warm and warm2:
        e("s_getpc_b64 s[42:43]")
        e.label("L_pc1")
        e("s_sub_u32 s42, s42, L_pc1-L_sdone+4096\ns_subb_u32 s43, s43, 0")
        e("v_lshlrev_b32 %s, 7, v1\nv_min_u32 %s, L_end-L_sdone+4096, %s" % (v(cU), v(cU), v(cU)))
        e("global_load_dword %s, %s, s[42:43]" % (v(A0 + 44), v(cU)))
    e("s_waitcnt lgkmcnt(0)\ns_barrier")
    cm("sum the A partials of the four waves and send them")
    sumpub(DA_L, A0, c16, cA, 36, TP)
    stamp()
    e("s_cmp_ge_u32 s3, %d\ns_cbranch_scc1 L_cdone" % NF)
    cm("level 2 (workgroups 0..71): 16 output columns = sum over 128 row slices")
    F0 = 128
    if fpos >= 0:
        NL, J = e.newlabel("nl"), e.newlabel("fj")
        e("s_cmp_lg_u32 s61, 1\ns_cbranch_scc1 %s" % NL)
        lds_wait(F_T3, "ge", 1, cZ, cT)
        L = e.newlabel("fp")
        e("s_mov_b32 s35, 64\ns_mov_b32 exec_hi, 0xffff")
        e.label(L)
        e("global_load_dwordx2 v[108:109], v106, s[28:29] sc1\ns_waitcnt vmcnt(0)")
        e("v_xor_b32 v108, s62, v108\nv_bitop3_b32 v108, v108, v109, s63 bitop3:0xf6\nv_cmp_ne_u32 vcc, 0, v108")
        e("s_cbranch_vccz %s\ns_sub_u32 s35, s35, 1\ns_cbranch_scc0 %s\ns_branch %s" % (J, L, J))
        e.label(NL)
        lds_wait(F_T3, "ge", 6, cZ, cT)
        e.label(J)
        e("s_mov_b64 exec, -1")
        e.vm = []
    elif fdel:
        lds_wait(F_T3, "ge", fdel, cZ, cT)
    if fsl:
        e("s_sleep %d" % fsl)
    L, D = e.newlabel("l2"), e.newlabel("l2d")
    e("s_mov_b32 s35, %d" % SPIN)
    e.label(L)
    NL2 = 2 << pb
    for k in range(NL2):
        e("global_load_dwordx4 %s, %s, s[%d:%d] offset:%d %s" % (v(F0 + 4 * k, 4), v(c16), 40 + k // 8 * 4, 41 + k // 8 * 4, 1024 * (k % 8) - 4096, l2lf))
    for k in range(NL2):
        x = F0 + 4 * k
        e("s_waitcnt vmcnt(%d)" % (NL2 - 1 - k))
        for r in range(4):
            e("v_xor_b32 %s, %s, %s" % (v(x + r), v(x + r), v(TG + r)))
        if k == 0:
            e("v_or_b32 %s, %s, %s\nv_or_b32 %s, %s, %s" % (v(cT), v(x), v(x + 1), v(cU), v(x + 2), v(x + 3)))
        else:
            e("v_or3_b32 %s, %s, %s, %s\nv_or3_b32 %s, %s, %s, %s" % (v(cT), v(cT), v(x), v(x + 1), v(cU), v(cU), v(x + 2), v(x + 3)))
            for r in range(4):
                e("v_add_f32 %s, %s, %s" % (v(F0 + r), v(F0 + r), v(x + r)))
    e.vm = []
    e("v_or_b32 %s, %s, %s\nv_and_b32 %s, 0xff, %s\nv_cmp_ne_u32 vcc, 0, %s" % (v(cT), v(cT), v(cU), v(cT), v(cT), v(cT)))
    e("s_cbranch_vccz %s\ns_sub_u32 s35, s35, 1\ns_cbranch_scc0 %s" % (D, L))
    e.label(D)
    e.hist = []
    stamp()
    rr = [F0, F0 + 1, F0 + 2, F0 + 3]
    dppred("v_add_f32", rr, ["row_ror:%d" % (1 << k) for k in range(pb, 4)])
    xrow("v_add_f32", rr, [F0 + 4, F0 + 5, F0 + 6, F0 + 7])
    e("v_cvt_pk_bf16_f32 %s, %s, %s\nv_cvt_pk_bf16_f32 %s, %s, %s" % (v(A0), v(F0), v(F0 + 1), v(A0 + 1), v(F0 + 2), v(F0 + 3)))
    e("s_mov_b64 exec, %d\nglobal_store_dwordx2 %s, %s, s[24:25] %s" % ((1 << (1 << pb)) - 1, v(cO), v(A0, 2), outf))
    e.label("L_cdone")
    stamp()
    write_stamps(cT, "c")
    e.label("L_end")
    e("s_endpgm")
    e.raw('.section .rodata,"a"\n.p2align 6\n.amdhsa_kernel %s' % KN)
    e.raw("  .amdhsa_next_free_vgpr %d\n  .amdhsa_next_free_sgpr 102\n  .amdhsa_accum_offset %d" % (NV, (NV + 3) // 4 * 4))
    e.raw("  .amdhsa_group_segment_fixed_size 0\n  .amdhsa_kernarg_size 104\n  .amdhsa_user_sgpr_count 2")
    e.raw("  .amdhsa_user_sgpr_kernarg_segment_ptr 1\n  .amdhsa_system_sgpr_workgroup_id_x 1")
    e.raw("  .amdhsa_float_denorm_mode_32 3\n.end_amdhsa_kernel")
    return e.text()


if __name__ == "__main__":
    for spec in sys.argv[1:]:
        name, _, kv = spec.partition(":")
        kw = {}
        for p in kv.split(","):
            if not p:
                continue
            k, val = p.split("=")
            val = val.replace("+", " ")
            kw[k] = int(val) if val.lstrip("-").isdigit() else ("" if val == "none" else val)
        path = name if "/" in name else "work/%s.s" % name
        open(path, "w").write(gen(**kw))
```

```python
import sys, struct, math, contextlib
sys.path.insert(0, "work")
from asmlib import Em

KN = "concat_heads__gqa_block_cached__sliding_block_cached__decode_kernel"
HDR = open("concat_heads__gqa_block_cached__sliding_block_cached__decode.s.ref").read().split("; Override launch")[0]

Q_OFF, G_OFF, X_OFF, RP_OFF, L1_OFF, L2_OFF = 0x0, 0x10000, 0x20000, 0x24000, 0x40000, 0xC0000
STAMP_OFF = 0x10000000
QP, QB, FL, ML, MW, DA_L, DB_L, W8_L, LDS_SZ = 0, 2048, 3072, 3328, 3392, 4096, 8192, 12288, 16384
WT = 3584
F_QP, F_Q, F_T1, F_T2, F_B1, F_ML, F_N0, F_N1, F_T3, F_LOC, F_REF, F_SLP, F_P, F_DB = [FL + 4 * i for i in range(14)]
AMAPS = {
    0: ([13, 15, 11, 16, 19, 22, 10, 20, 14, 18, 21, 17, 12], [0, 0, 0, 0, 1, 128, 64], [8, 0, 0, 0]),
    1: ([21, 15, 11, 16, 19, 10, 22, 20, 14, 18, 17, 12, 13], [0, 0, 0, 0, 1, 128, 64], [8, 0, 0, 1]),
    2: ([21, 10, 22, 19, 15, 13, 17, 11, 12, 18, 14, 16, 20], [32, 128, 0, 8, 64, 1, 0], [0, 0, 0, 0]),
    3: ([21, 10, 16, 22, 19, 17, 20, 14, 12, 13, 15, 18, 11], [128, 16, 0, 32, 0, 0, 32], [0, 4, 4, 1]),
    4: ([13, 14, 16, 22, 19, 17, 20, 10, 12, 21, 11, 18, 15], [8, 0, 0, 0, 256, 0, 8], [8, 4, 0, 0]),
    5: ([21, 17, 22, 16, 19, 10, 12, 14, 20, 18, 15, 13, 11], [0, 0, 16, 0, 0, 0, 4], [1, 1, 0, 1]),
    6: ([13, 11, 16, 22, 19, 17, 14, 12, 10, 21, 20, 18, 15], [0, 0, 0, 0, 0, 0, 1], [1, 0, 0, 2]),
    7: ([13, 14, 12, 16, 20, 22, 10, 19, 15, 11, 21, 18, 17], [0, 256, 8, 0, 1, 128, 0], [1, 0, 2, 8]),
    8: ([10, 12, 19, 15, 13, 21, 22, 16, 17, 11, 18, 14, 20], [2, 256, 0, 64, 2, 64, 64], [0, 0, 0, 4]),
    9: ([10, 12, 19, 15, 17, 22, 21, 16, 13, 20, 18, 14, 11], [128, 0, 0, 0, 256, 64, 128], [0, 4, 4, 0]),
    10: ([17, 15, 13, 19, 22, 10, 14, 21, 16, 20, 18, 11, 12], [512, 0, 0, 8, 64, 0, 256], [0, 8, 1, 2]),
    11: ([21, 14, 18, 22, 19, 17, 12, 11, 20, 13, 10, 16, 15], [0, 0, 8, 0, 1, 0, 8], [0, 4, 4, 4]),
    12: ([13, 14, 20, 15, 19, 22, 10, 12, 16, 11, 18, 21, 17], [0, 64, 8, 256, 1, 128, 0], [0, 0, 0, 0]),
    13: ([17, 21, 19, 16, 22, 10, 14, 13, 15, 20, 12, 11, 18], [0, 4, 0, 8, 64, 16, 256], [0, 2, 0, 1]),
    14: ([13, 10, 20, 16, 19, 14, 22, 12, 15, 11, 21, 18, 17], [0, 64, 0, 0, 1, 16, 0], [0, 4, 0, 0]),
}
BMAPS = {
    0: ([13, 11, 18, 12, 19, 14, 16, 15, 10, 17], [4, 16, 0, 1], [1, 0, 0, 0]),
    1: ([13, 11, 18, 19, 12, 17, 14, 16, 15, 10], [2, 16, 0, 1], [0, 0, 0, 0]),
    2: ([13, 12, 17, 19, 18, 10, 14, 16, 15, 11], [512, 16, 0, 1], [0, 0, 0, 0]),
}


def conv(perm, scr, rm):
    nt = len(scr)
    B, H = [256, 512] + [1 << b for b in perm], [0] * 4
    for i in range(nt):
        for j in range(10):
            if scr[i] >> j & 1:
                if j < 6:
                    B[2 + nt + j] ^= 1 << perm[i]
                else:
                    H[j - 6] ^= 1 << perm[i]
    for i in range(4):
        for k in range(4):
            if rm[i] >> k & 1:
                H[k] ^= B[4 + nt + i]
    return B, H


def bits(B, H):
    f = lambda l: [sum(1 << b for b in x) for x in l]
    return f(B), f(H)


def rank(vs):
    vs, r = list(vs), 0
    for b in range(8, 23):
        p = [i for i, x in enumerate(vs) if x >> b & 1]
        if p:
            r += 1
            q = vs.pop(p[0])
            vs = [x ^ q if x >> b & 1 else x for x in vs]
    return r


AMAPS = {k: conv(*x) for k, x in AMAPS.items()}
BMAPS = {k: conv(*x) for k, x in BMAPS.items()}
AMAPS[20] = bits([[8], [9], [8, 15, 16, 20], [13], [10, 12, 14], [16, 22], [19], [15, 17, 20], [14, 19], [8, 12, 17], [20], [11], [8, 14, 18], [21], [8, 9, 16]],
                 [[10, 13, 17, 18, 20, 21], [9], [8, 21], [8, 11]])
AMAPS[21] = bits([[12, 19], [8], [16], [13], [9, 20], [22], [19, 20], [14, 19], [10], [8, 15, 17], [9], [11], [16, 21], [14, 18], [17]],
                 [[10, 14], [22], [19, 21], [8, 9]])
CSC = struct.unpack("<I", struct.pack("<f", 128 ** -0.5 * math.log2(math.e)))[0]
SPIN = 1 << 19
MF = "v_mfma_f32_16x16x32_bf16"


DOC = r"""; ---------------------------------------------------------------------------------------------------------------------
;
; Arithmetic.  All products run on v_mfma_f32_16x16x32_bf16 with the data in the layout the coalesced load leaves:
;   P.V, x.wq, o.wo: the other operand is one-hot (one bf16 per lane, placed with v_perm_b32).
;   Stores are write-through (sc1); inside a group they stay in the L2 only when every member reported the same XCD.
; ---------------------------------------------------------------------------------------------------------------------"""


def v(a, n=1):
    return "v%d" % a if n == 1 else "v[%d:%d]" % (a, a + n - 1)


def gen(stamps=0, kvflags="nt", wflags="nt", warm=1, touch=0, W="5", L="4568", W0=5, Wc=5, boost=1, wqw=6,
        raw=0, fine=0, enc="", amap=14, bmap=2, hs="lo", qtrig=16, gtrig=80, gld=40, okeep=2, pre1=1, nsl=0, Wend=0, nend=0,
        ctl=2, cb=1063, t0=-24, t1=26, t2=75, mlist="5.9.15.21.28", mdel=2, l1f="auto", fdel=3, fack=1, outf="", order=2, xpos=2, pst=0, wl=10, olast=0, Wwo=7, fsl=0, l1c=1, stouch=0, pb=2, rsh=8, rf="sc1", nrep=8, swapt=0, smar=20, LP="", npump=0, rt=0, l1lf="sc1", l1sf="", noq=0, warm2=0, wob=0, wthr="", wearly=0, LW="", qsf="sc1", qlf="sc1", spre=0, qpre=0, swarm=0, fpos=-1, npoll=1, rcor=0, lcor=0, jit=0, nocomp=0, w4=0, g8a=12, g8d=3, wcap=99, tu=99, u0=-12, u1=14, u2=45, dbl=99, cpr=3, csl=0, trim=7, dg=0, pdirty=0, wskip=0, pfirst=0, wf=0, blate=0, gst=0, gsd=4, be=0, scp=22, wc=1, hb=0, sb=1, pend=0, qb=0):
    if wf:
        w4, g8a = 1, -2
    NF = 288 >> pb
    W = str(W)
    LV0 = [int(c, 16) for c in str(L)]
    if ctl:
        W = "%x" % LV0[3]
    ms = [int(x) for x in str(mlist).split(".")]
    sl1 = sl2 = l2pad = 0
    l2q = 1
    l2sf = l2lf = "sc1"
    e = Em()
    e.raw(HDR.rstrip())
    e.raw("; @launch grid=(256,1,1) block=(320,1,1) lds=%d" % (LDS_SZ if wf else W8_L))
    e.raw(DOC)
    e.raw('.amdgcn_target "amdgcn-amd-amdhsa--gfx950"')
    e.raw(".text\n.globl %s\n.p2align 8\n.type %s,@function\n%s:" % (KN, KN, KN))
    nst = [0]
    cm = lambda t: e.raw("; " + t)

    def stamp(p=0):
        if stamps and (p <= pst) and not (pst and nst[0] >= 11):
            assert nst[0] < 12
            e("s_memrealtime s[%d:%d]" % (70 + 2 * nst[0], 71 + 2 * nst[0]))
            nst[0] += 1

    def write_stamps(vt, role):
        if not stamps:
            return
        if enc:
            e("s_waitcnt lgkmcnt(0)\ns_mov_b64 exec, 1\nv_mov_b32 %s, 0" % v(vt))
            if role == "c":
                e("s_sleep 127\ns_sleep 127")
                e("s_not_b32 s33, s70\nv_mov_b32 %s, s33\nglobal_atomic_umax %s, %s, s[26:27] offset:128" % (v(vt + 1), v(vt), v(vt + 1)))
            if enc[0] == role:
                idx = int(enc[1:-1])
                e("s_mov_b32 s33, s%d" % (70 + 2 * idx))
                if enc[-1] == "n":
                    e("s_not_b32 s33, s33")
                skip = e.newlabel("sk")
                if role == "s" and idx == 9:
                    e("s_cmp_eq_u32 s30, 3\ns_cbranch_scc1 %s" % skip)
                if role == "c" and idx == 6:
                    e("s_cmp_ge_u32 s3, 72\ns_cbranch_scc1 %s" % skip)
                if role == "s":
                    e("s_sleep 127\ns_sleep 127")
                e("v_mov_b32 %s, s33\nglobal_atomic_umax %s, %s, s[26:27] offset:192" % (v(vt + 1), v(vt), v(vt + 1)))
                e.label(skip)
            if role == "c":
                L1, L2, D = e.newlabel("e1"), e.newlabel("e2"), e.newlabel("ed")
                e("s_cmp_lg_u32 s2, 0\ns_cbranch_scc1 %s" % D)
                e.label(L1)
                e("s_sleep 8\ns_memrealtime s[60:61]\ns_waitcnt lgkmcnt(0)\ns_sub_u32 s33, s60, s70\ns_cmp_lt_u32 s33, 19000\ns_cbranch_scc1 %s" % L1)
                e("s_load_dword s62, s[26:27], 128 glc\ns_load_dword s63, s[26:27], 192 glc\ns_waitcnt lgkmcnt(0)")
                e("s_not_b32 s62, s62")
                if enc[-1] == "n":
                    e("s_not_b32 s63, s63")
                e("s_sub_u32 s63, s63, s62")
                if enc == "z":
                    e("s_mov_b32 s63, 0")
                e("s_min_u32 s63, s63, 20000\ns_lshl_b32 s63, s63, 2\ns_add_u32 s63, s63, 20000")
                e.label(L2)
                e("s_memrealtime s[60:61]\ns_waitcnt lgkmcnt(0)\ns_sub_u32 s33, s60, s62\ns_cmp_lt_u32 s33, s63\ns_cbranch_scc1 %s" % L2)
                e.label(D)
            return
        e("s_waitcnt lgkmcnt(0)")
        e("s_mul_i32 s33, s3, 6\ns_add_u32 s33, s33, s30\ns_lshl_b32 s33, s33, 6\ns_add_u32 s33, s33, 0x%x" % STAMP_OFF)
        e("s_mov_b64 exec, 1\nv_mov_b32 %s, s33" % v(vt))
        for i in range(16):
            e("v_mov_b32 %s, s%d" % (v(vt + 1), 70 + 2 * min(i, nst[0] - 1)))
            e("global_store_dword %s, %s, s[28:29] offset:%d" % (v(vt), v(vt + 1), 4 * i))

    def jitter(k):
        if jit >> k & 1:
            L = e.newlabel("jt")
            e("s_memtime s[100:101]\ns_waitcnt lgkmcnt(0)\ns_mul_i32 s100, s100, 0x9e3779b1\ns_lshr_b32 s100, s100, 27")
            e.label(L)
            e("s_sleep 16\ns_sub_u32 s100, s100, 1\ns_cbranch_scc0 %s" % L)

    def lds_wait(flag, cmp, val, vz, vt, sleep=0):
        if raw:
            return
        L, D = e.newlabel("lw"), e.newlabel("lwd")
        e("s_mov_b32 s35, %d" % (SPIN * 16))
        e.label(L)
        e("ds_read_b32 %s, %s offset:%d\ns_waitcnt lgkmcnt(0)\nv_readfirstlane_b32 s34, %s" % (v(vt), v(vz), flag, v(vt)))
        e("s_cmp_%s_u32 s34, %s\ns_cbranch_scc1 %s" % (cmp, val, D))
        if sleep:
            e("s_sleep %d" % sleep)
        e("s_sub_u32 s35, s35, 1\ns_cbranch_scc0 %s" % L)
        e.label(D)

    @contextlib.contextmanager
    def optional(skipcmp):
        J = e.newlabel("opt")
        e("%s\ns_cbranch_scc1 %s" % (skipcmp, J))
        hist, vm = list(e.hist), list(e.vm)
        yield
        e("s_nop 1")
        e.label(J)
        e.hist, e.vm = hist, vm

    def xrow(op, r, t):
        for sw in ("v_permlane16_swap_b32", "v_permlane32_swap_b32"):
            for a, b in zip(r, t):
                e("v_mov_b32 %s, %s" % (v(b), v(a)))
            for a, b in zip(r, t):
                e("%s %s, %s" % (sw, v(a), v(b)))
            for a, b in zip(r, t):
                e("%s %s, %s, %s" % (op, v(a), v(a), v(b)))

    def dppred(op, r, pats):
        for p in pats:
            for a in r:
                e("%s_dpp %s, %s, %s %s row_mask:0xf bank_mask:0xf" % (op, v(a), v(a), v(a), p))

    def tagsel():
        for r in range(4):
            e("s_mov_b32 s%d, 0x%08x" % (64 + r, 0x07060500 + r))

    def tagreg(dst, bit, tmp, put=None, chk=None):
        e("v_and_b32 %s, %d, v1\nv_cmp_ne_u32 vcc, 0, %s\nv_mov_b32 %s, s62\nv_mov_b32 %s, s63" % (v(tmp), bit, v(tmp), v(dst), v(tmp)))
        e("v_cndmask_b32 %s, %s, %s, vcc" % (v(dst), v(dst), v(tmp)))
        if chk is not None:
            for r in (3, 2, 1, 0):
                e("v_bfe_u32 %s, %s, %d, 8" % (v(chk + r), v(dst), 8 * r))

    def tagput(x, t):
        for r in range(4):
            e("v_perm_b32 %s, %s, %s, s%d" % (v(x + r), v(x + r), v(t), 64 + r))

    def tagcheck(regs, t, a0, a1):
        for k, x in enumerate(regs):
            for r in range(4):
                e("v_xor_b32 %s, %s, %s" % (v(x + r), v(x + r), v(t + r)))
            if k == 0:
                e("v_or_b32 %s, %s, %s\nv_or_b32 %s, %s, %s" % (v(a0), v(x), v(x + 1), v(a1), v(x + 2), v(x + 3)))
            else:
                e("v_or3_b32 %s, %s, %s, %s\nv_or3_b32 %s, %s, %s, %s" % (v(a0), v(a0), v(x), v(x + 1), v(a1), v(a1), v(x + 2), v(x + 3)))
        e("v_or_b32 %s, %s, %s\nv_and_b32 %s, 0xff, %s\nv_cmp_ne_u32 vcc, 0, %s" % (v(a0), v(a0), v(a1), v(a0), v(a0), v(a0)))

    def groupstore(txt):
        if l1f != "auto":
            e(txt + " " + l1f)
            return
        A, J = e.newlabel("gs"), e.newlabel("gsj")
        e("s_cmp_eq_u32 s61, 1\ns_cbranch_scc1 %s\n%s sc1\ns_branch %s" % (A, txt, J))
        e.label(A)
        e(txt + " " + l1sf)
        e.label(J)

    def l1_out_addr(dst, t0, t1, sb, pr, tg):
        if l1c:
            e("v_lshlrev_b32 %s, 8, v1" % v(dst))
            e("s_lshl_b32 s33, s31, 15\ns_lshl_b32 s34, s32, 4\ns_add_u32 s33, s33, s34\ns_add_u32 s33, s33, 0x%x" % (L1_OFF + 16384 * pr))
            e("s_add_u32 s%d, s28, s33\ns_addc_u32 s%d, s29, 0" % (sb, sb + 1))
            e("s_bitcmp1_b32 s32, 0\ns_cselect_b32 s33, s63, s62\nv_mov_b32 %s, s33" % v(tg))
            return
        e("v_lshrrev_b32 %s, 3, v1\nv_lshlrev_b32 %s, 11, %s\nv_and_b32 %s, 7, v1\nv_lshl_add_u32 %s, %s, 4, %s" % (
            v(t0), v(t0), v(t0), v(t1), v(dst), v(t1), v(t0)))
        e("s_lshl_b32 s33, s31, 15\ns_lshl_b32 s34, s32, 7\ns_add_u32 s33, s33, s34\ns_add_u32 s33, s33, 0x%x" % (L1_OFF + 16384 * pr))
        e("s_add_u32 s%d, s28, s33\ns_addc_u32 s%d, s29, 0" % (sb, sb + 1))

    def sumpub(lds, a0, l16, adr, sb, t, send=True):
        for k in range(4):
            e("ds_read_b128 %s, %s offset:%d" % (v(a0 + 4 * k, 4), v(l16), lds + 1024 * k))
        e("s_waitcnt lgkmcnt(2)" if not stamps else "s_waitcnt lgkmcnt(0)")
        for k in range(4):
            e("v_add_f32 %s, %s, %s" % (v(a0 + k), v(a0 + k), v(a0 + 4 + k)))
        e("s_waitcnt lgkmcnt(0)")
        for k in range(4):
            e("v_add_f32 %s, %s, %s" % (v(a0 + 8 + k), v(a0 + 8 + k), v(a0 + 12 + k)))
        for k in range(4):
            e("v_add_f32 %s, %s, %s" % (v(a0 + k), v(a0 + k), v(a0 + 8 + k)))
        tagput(a0, t)
        jitter(1)
        if not send:
            return
        groupstore("global_store_dwordx4 %s, %s, s[%d:%d]" % (v(adr), v(a0, 4), sb, sb + 1))

    e("s_load_dwordx16 s[4:19], s[0:1], 0\ns_load_dwordx8 s[20:27], s[0:1], 64\ns_load_dwordx2 s[28:29], s[0:1], 96")
    stamp()
    cm("s30 = wave, s31 = kv head, s32 = split; later s3 = workgroup id, s2 = head*16 + split")
    e("v_readfirstlane_b32 s30, v0\nv_and_b32 v1, 63, v0\ns_and_b32 s31, s2, 15\ns_lshr_b32 s32, s2, 4")
    e("s_cmp_ge_u32 s32, 16\ns_cbranch_scc1 L_end")
    e("s_lshr_b32 s30, s30, 6\ns_cmp_eq_u32 s30, 4\ns_cbranch_scc1 L_comm")
    ids = "s_mov_b32 s3, s2\ns_lshl_b32 s2, s31, 4\ns_or_b32 s2, s2, s32"
    base_st = nst[0]

    def wavebase(dst, cfg, const):
        B, H = cfg
        assert rank(B) == len(B) and max(B + H) < 1 << (8 + len(B))
        masks = {b: sum(((x >> b) & 1) << j for j, x in enumerate(B[-6:] + H)) for b in range(8, 23)}
        e("s_lshl_b32 s%d, s31, 23" % dst)
        if const:
            e("s_or_b32 s%d, s%d, 0x%x" % (dst, dst, const))
        for b, m in sorted(masks.items()):
            if m == 0:
                continue
            if m & (m - 1) == 0:
                e("s_bfe_u32 s33, s41, 0x%x" % (0x10000 + m.bit_length() - 1))
            else:
                e("s_and_b32 s33, s41, 0x%x\ns_bcnt1_i32_b32 s33, s33\ns_and_b32 s33, s33, 1" % m)
            e("s_lshl_b32 s33, s33, %d\ns_or_b32 s%d, s%d, s33" % (b, dst, dst))

    def tmap(cfg, n):
        r = 0
        for i, x in enumerate(cfg[0][2:-6]):
            r ^= x if n >> i & 1 else 0
        return r

    vZ, vKO, vVO, vT0, vT1, vT2, vT3 = 2, 3, 4, 5, 6, 7, 8
    vMR, vLR, vMB, vLB, vPB, vFA, vDL, vFT = 9, 10, 11, 12, 13, 14, 15, 16
    vM0, vAD, vWO, vRF, vNX = 17, 18, 19, 252, 254
    SLO, SHI = 20, 24
    QB0, QB1 = 28, 32
    DA0, DBc = 36, 40
    GR, PI0, PI1 = 44, 48, 52
    DA1 = PI0
    BC = 56
    DQ, TT, SS = 64, 80, 84
    OP = 92
    RING = 124
    NV = 255
    slot = lambda i: RING + 32 * (i if i < 4 else i % 2)
    WO = slot(2)
    K0, NW = (24, 9) if wf else (32, 0)
    if wf:
        slot = lambda i: OP if i == 2 else RING + 32 * (i if i < 2 else (i + 1) % 2)

    cm("==== streaming waves.  q projection: 72 rows x 64 columns of wq per wave")
    e("s_and_b32 s33, s32, 4\ns_add_u32 s33, s33, s30\ns_mulk_i32 s33, 72")
    e("v_lshrrev_b32 %s, 4, v1\nv_mad_u32_u24 %s, %s, 18, s33\nv_bfe_u32 %s, v1, 3, 1\nv_add_u32 %s, %s, %s" % (
        v(vT3), v(vT3), v(vT3), v(vT0), v(vT0), v(vT0), v(vT3)))
    e("s_and_b32 s34, s32, 3\ns_lshl2_add_u32 s34, s31, s34\ns_lshl_b32 s34, s34, 7")
    e("v_and_b32 %s, 7, v1\nv_lshlrev_b32 %s, 4, %s\nv_add_u32 %s, s34, %s" % (v(vT1), v(vT1), v(vT1), v(vT2), v(vT1)))
    e("v_lshl_add_u32 %s, %s, 13, %s" % (v(vFA), v(vT0), v(vT2)))
    e("s_bitset0_b32 s32, 31\ns_movk_i32 s35, 0x4000\ns_cmp_ge_u32 s32, 8".split("\n", 1)[1])
    e("s_waitcnt lgkmcnt(0)")
    e("s_cselect_b64 s[36:37], s[20:21], s[10:11]")
    stamp(1)
    WQ = RING if wf else slot(2)
    XR = WQ + 40

    def ldwq(t):
        e("global_load_dwordx4 %s, %s, s[36:37] %s" % (v(WQ + 4 * t, 4), v(vFA), wflags), "wq%d" % t)
        if t < 8:
            e("v_add_u32 %s, %s, %s" % (v(vFA), "s35" if t < wqw else "0x4000", v(vFA)))

    for t in range(wqw):
        ldwq(t)
        if t == xpos:
            e("s_cselect_b64 s[38:39], s[14:15], s[4:5]\nv_lshlrev_b32 %s, 1, %s" % (v(vT3), v(vT3)))
            for k in range(3):
                e("global_load_dwordx3 %s, %s, s[38:39] offset:%d" % (v(XR + 4 * k, 3), v(vT3), 12 * k), "x")
    e("s_cselect_b64 s[10:11], s[22:23], s[12:13]")
    if stouch:
        e("s_lshl2_add_u32 s33, s31, s30\ns_lshl_b32 s33, s33, 21\nv_mov_b32 %s, s33\ns_mov_b64 exec, 1" % v(vT2))
        e("global_load_dword %s, %s, s[6:7] nt\ns_mov_b64 exec, -1" % (v(GR), v(vT2)), "t")
    e(ids)
    if swapt:
        e("s_bitcmp1_b32 s31, %d" % (swapt - 1))
        e("s_cselect_b64 s[46:47], s[16:17], s[6:7]\ns_cselect_b64 s[16:17], s[6:7], s[16:17]\ns_mov_b64 s[6:7], s[46:47]")
        e("s_cselect_b64 s[46:47], s[18:19], s[8:9]\ns_cselect_b64 s[18:19], s[8:9], s[18:19]\ns_mov_b64 s[8:9], s[46:47]")
    stamp(1)
    cm("lane offsets inside a 1 KiB load (K: 64-byte quads, V: linear) and the address map of problem A")
    e("v_lshlrev_b32 %s, 4, v1" % v(vVO))
    e("v_lshrrev_b32 %s, 4, v1\nv_lshlrev_b32 %s, 6, %s" % (v(vKO), v(vKO), v(vKO)))
    e("v_and_b32 %s, 3, v1\nv_lshl_add_u32 %s, %s, 4, %s" % (v(vT3), v(vKO), v(vT3), v(vKO)))
    e("s_lshl_b32 s41, s2, 2\ns_or_b32 s41, s41, s30")
    if rt:
        e("s_mov_b64 s[46:47], s[16:17]\ns_mov_b64 s[48:49], s[18:19]\ns_lshl_b32 s33, s3, 2\ns_or_b32 s33, s33, s30\ns_lshl_b32 s33, s33, 3")
        e("s_add_u32 s4, s28, 0x180000\ns_addc_u32 s5, s29, 0\ns_load_dwordx16 s[12:27], s[4:5], 0x2000\ns_load_dwordx2 s[44:45], s[4:5], s33\ns_load_dwordx2 s[94:95], s[4:5], 0x2040\ns_waitcnt lgkmcnt(0)")
        e("s_and_b32 s44, s44, 0x7ffff00\ns_and_b32 s45, s45, 0x7ffff00")
        e("s_and_b32 s26, s26, 0x7fff00\ns_and_b32 s27, s27, 0x7fff00\ns_and_b32 s94, s94, 0xfff00\ns_and_b32 s95, s95, 0xfff00")
        for k in range(11):
            e("s_and_b32 s%d, s%d, 0x%x" % (12 + k, 12 + k, 0x7fff00 if k < 7 else 0xfff00))
    else:
        wavebase(45, AMAPS[amap], 0)

    def segstart(dst, kind):
        lb = (AMAPS[amap] if kind[0] == "A" else BMAPS[bmap])[0][:2]
        lb = ["0x%x" % x for x in lb] if not rt else (["s26", "s27"] if kind[0] == "A" else ["s94", "s95"])
        if kind[1] == "K":
            e("v_xor_b32 %s, s%d, %s" % (v(dst), 45 if kind[0] == "A" else 44, v(vKO)))
        else:
            e("v_and_b32 %s, 0xf0, %s\nv_xor_b32 %s, s%d, %s" % (v(dst), v(vVO), v(dst), 45 if kind[0] == "A" else 44, v(dst)))
        for k in range(2):
            e("v_bfe_i32 %s, v1, %d, 1\nv_and_b32 %s, %s, %s\nv_xor_b32 %s, %s, %s" % (
                v(vT2), (2 if kind[1] == "K" else 4) + k, v(vT2), lb[k], v(vT2), v(dst), v(dst), v(vT2)))

    segstart(vAD, "AK")
    AK, AV = [("AK", u) for u in range(16)], [("AV", u) for u in range(16)]
    BB = [("BK", 0), ("BK", 1), ("BV", 0), ("BV", 1)]
    seq = AK + AV + BB if order == 1 else AK + BB + AV
    pos = {x: i for i, x in enumerate(seq)}
    breg = {"BK": 16, "BV": 18, "AK": 6, "AV": 8}
    if rt:
        breg.update(BK=46, BV=48)
    fdone = set()
    nxt = [None]
    NG = 2 if w4 else 3
    wok = lambda k: (k % NG) * 4 + k // NG
    NKV = 8 * len(seq)
    NLD = NKV if wf else NKV + 4 * NG
    st = {"next": -NW, "free": 0 if wf else 16, "landed": -1}

    def fstamp(n):
        if n % 2 == 1 and n // 2 + 1 < 64 and n not in fdone:
            fdone.add(n)
            e("s_memrealtime s[68:69]\ns_waitcnt lgkmcnt(0)\nv_writelane_b32 %s, s68, %d" % (v(vFT), n // 2 + 1))

    def issue_upto(n):
        n = min(n, st["free"], NLD)
        inwo = False
        while st["next"] < n:
            q = st["next"]
            i, j = q // 8, q % 8
            if q == -1:
                e("global_load_dwordx4 %s, %s, s[14:15] %s" % (v(WO + 32, 4), v(vWO), wflags), "u%d" % q)
            elif 0 <= i < len(seq):
                kind, u = seq[i]
                b = breg[kind]
                a = vAD
                cfg, nn, last = (AMAPS[amap], 8 * u + j, 127) if kind[0] == "A" else (BMAPS[bmap], 8 * u + j, 15)
                e("global_load_dwordx4 %s, %s, s[%d:%d] %s" % (v(slot(i) + 4 * j, 4), v(a), b, b + 1, kvflags), "u%d" % q)
                if nn < last and rt:
                    e("v_xor_b32 %s, s%d, %s" % (v(a), (12 if kind[0] == "A" else 19) + ((nn + 1) & -(nn + 1)).bit_length() - 1, v(a)))
                elif nn < last:
                    e("v_xor_b32 %s, 0x%x, %s" % (v(a), tmap(cfg, nn) ^ tmap(cfg, nn + 1), v(a)))
                elif i + 1 < len(seq):
                    assert nxt == [seq[i + 1][0]]
                    e("v_mov_b32 %s, %s" % (v(a), v(vNX)))
            else:
                k = q + NW if q < 0 else q - NKV
                if not inwo and not w4:
                    e("s_mov_b64 exec, s[50:51]")
                    inwo = True
                if k >= 12 - wskip:
                    e("s_mov_b64 exec, 1")
                k = wok(k)
                e("global_load_dwordx4 %s, %s, s[10:11] offset:%d %s" % (v(WO + 4 * k, 4), v(vWO), (k % 4) * 1152 + (k // 4) * 128, wflags), "u%d" % q)
            st["next"] += 1
        if inwo:
            e("s_mov_b64 exec, -1")

    thr = [t1]

    def setflags():
        e("s_cmp_gt_i32 s57, %s\ns_cselect_b64 vcc, -1, 0\ns_cselect_b32 s33, s98, s99\ns_cmp_gt_i32 s57, s33" % ("s24" if rt else thr[0]))

    def throttle(q):
        F, M, E = e.newlabel("tf"), e.newlabel("tm"), e.newlabel("te")
        LV = list(LV0)
        if LW and st["next"] >= NKV:
            LV[:3] = [int(c, 16) for c in str(LW)]
        if q >= NKV:
            LV = [int(c, 16) for c in str(wthr)] + [99]
        elif LP:
            pats = str(LP).split("x")[1 if seq[q // 8][0][1] == "V" else 0].split(".")
            LV[:3] = [int(c) for c in pats[q % len(pats)]]
        h = list(e.hist)
        e("s_cbranch_vccnz %s" % F)
        if LV[0] != LV[1]:
            e("s_cbranch_scc1 %s\ns_waitcnt vmcnt(%d)" % (M, LV[0] - 1))
            e.label(M)
        e("s_waitcnt vmcnt(%d)" % (LV[1] - 1))
        e.label(F)
        if LV[2] != LV[3]:
            e("s_cbranch_scc1 %s\ns_waitcnt vmcnt(%d)" % (E, LV[2] - 1))
            e.label(E)
        e.hist = h

    def pump():
        if ctl:
            want(st["next"] - LV0[3])

    def want(q, w=None):
        assert q < st["next"]
        if w is None:
            w = Wend if (nend and q >= NKV - nend) else int(W[q % len(W)], 16)
            if ctl and not (nend and q >= NKV - nend):
                while st["next"] < min(q + 1 + w, st["free"], NLD):
                    throttle(q)
                    e.waitvm("u%d" % q)
                    issue_upto(st["next"] + 1)
        e.waitvm("u%d" % q)
        st["landed"] = max(st["landed"], q)
        issue_upto(q + 1 + w)
        if fine == 1 and q // 8 not in fdone:
            fdone.add(q // 8)
            e("s_memrealtime s[68:69]\ns_waitcnt lgkmcnt(0)\nv_writelane_b32 %s, s68, %d" % (v(vFT), q // 8 + 1))
        if fine == 2:
            fstamp(q + 9)
        if fine == 3 and q >= NKV - 48 and q not in fdone:
            fdone.add(q)
            e("s_memrealtime s[68:69]\ns_waitcnt lgkmcnt(0)\nv_writelane_b32 %s, s68, %d" % (v(vFT), q - NKV + 49))

    def setup_wo():
        cm("wo rows of this workgroup: 32 rows x 192 columns per wave (waves 0..2)")
        e("v_lshrrev_b32 %s, 3, v1\nv_mul_u32_u24 %s, 4608, %s\nv_and_b32 %s, 7, v1" % (v(vT2), v(vT2), v(vT2), v(vT3)))
        e("v_lshl_add_u32 %s, %s, 4, %s" % (v(vWO), v(vT3), v(vT2)))
        e("s_lshl_b32 s34, s31, 3\ns_and_b32 s35, s32, 7\ns_add_u32 s56, s34, s35")
        if w4:
            e("s_mul_i32 s34, s56, %d\ns_lshl_b32 s35, s30, 8\ns_add_u32 s34, s34, s35" % (32 * 1152))
            e("s_add_u32 s10, s10, s34\ns_addc_u32 s11, s11, 0\ns_add_u32 s14, s10, 1024\ns_addc_u32 s15, s11, 0")
            if wf:
                e("s_mul_i32 s35, s30, %d\ns_add_u32 s14, s14, s35\ns_addc_u32 s15, s15, 0" % (1152 - 256))
            e("s_cmp_eq_u32 s30, 0\ns_cselect_b32 s50, -1, 0x00ff00ff\ns_mov_b32 s51, 0x00ff00ff")
            return
        e("s_mul_i32 s34, s56, %d\ns_min_u32 s35, s30, 2\ns_mul_i32 s35, s35, 384\ns_add_u32 s34, s34, s35" % (32 * 1152))
        e("s_add_u32 s10, s10, s34\ns_addc_u32 s11, s11, 0")
        e("s_cmp_lt_u32 s30, 3\ns_cselect_b64 s[50:51], -1, 1")

    if wf:
        setup_wo()
    issue_upto(W0 - 9 - NW)
    cm("v_perm selectors that build the one-hot MFMA operand")
    e("v_mov_b32 %s, 0" % v(vZ))
    e("v_and_b32 %s, 1, v1\nv_cmp_eq_u32 vcc, 1, %s" % (v(vT2), v(vT2)))
    e("v_mov_b32 %s, 0x0c0c0100\nv_mov_b32 %s, 0x01000c0c" % (v(BC), v(BC + 1)))
    e("v_mov_b32 %s, 0x0c0c0302\nv_mov_b32 %s, 0x03020c0c\nv_mov_b32 %s, 0x0c0c0c0c" % (v(BC + 2), v(BC + 3), v(BC + 4)))
    e("v_cndmask_b32 %s, %s, %s, vcc\nv_cndmask_b32 %s, %s, %s, vcc" % (v(BC), v(BC), v(BC + 1), v(BC + 2), v(BC + 2), v(BC + 3)))
    e("v_bfe_u32 %s, v1, 1, 2" % v(vT2))
    for i in range(4):
        e("v_cmp_eq_u32 vcc, %d, %s" % (i, v(vT2)))
        e("v_cndmask_b32 %s, %s, %s, vcc\nv_cndmask_b32 %s, %s, %s, vcc" % (v(SLO + i), v(BC + 4), v(BC), v(SHI + i), v(BC + 4), v(BC + 2)))
    e("v_and_b32 %s, 8, v1\nv_cmp_ne_u32 vcc, 0, %s" % (v(vT2), v(vT2)))
    for i in range(4):
        e("v_cndmask_b32 %s, %s, %s, vcc" % (v(BC + i), v(SLO + i), v(SHI + i)))
    e("v_lshrrev_b32 %s, 5, v1\nv_lshlrev_b32 %s, 8, %s" % (v(vT2), v(vT2), v(vT2)))
    e("v_lshl_add_u32 %s, %s, 1, %s" % (v(vT2), v(vT1), v(vT2)))
    e("v_and_b32 %s, 16, v1\ns_lshl_b32 s34, s30, 9\nv_add3_u32 %s, %s, %s, s34" % (v(vT3), v(vT2), v(vT2), v(vT3)))
    e("s_mov_b32 s40, 0x%x" % CSC)
    stamp(1)
    stamp(1)
    cm("x . wq while the first K loads go out")
    nwq = [wqw]
    for t in range(xpos + 1):
        e.waitvm("wq%d" % t)
        if t in (0, 2, 5):
            stamp(1)
        if t + wqw < 9:
            ldwq(t + wqw)
            nwq[0] += 1
        issue_upto(t + 1 + W0 - 9 - NW)
    e("s_barrier")
    e.waitvm("x")
    stamp(1)
    for t in range(9):
        o = OP + 4 * (t % 8)
        for i in range(4):
            xr = XR + 4 * (t // 3) + t % 3
            e("v_perm_b32 %s, %s, %s, %s" % (v(o + i), v(xr), v(xr), v(BC + i)))
        e.waitvm("wq%d" % t)
        if t + wqw < 9 and t + wqw >= nwq[0]:
            ldwq(t + wqw)
        issue_upto(t + 1 + W0 - 9 - NW)
        if fine == 2:
            fstamp(t)
        e("%s %s, %s, %s, %s" % (MF, v(DA0, 4), v(o, 4), v(WQ + 4 * t, 4), "0" if t == 0 else v(DA0, 4)))
    jitter(0)
    issue_upto(st["next"] + qb)
    e("s_mov_b32 exec_lo, 0x00ff00ff\ns_mov_b32 exec_hi, 0xff00ff00\nv_mov_b32 %s, 1" % v(vT3))
    e("ds_write_b128 %s, %s offset:%d" % (v(vT2), v(DA0, 4), QP))
    e("s_mov_b64 exec, 1\nds_add_u32 %s, %s offset:%d\ns_mov_b64 exec, -1" % (v(vZ), v(vT3), F_QP))
    stamp()
    st["free"] = K0
    if not rt:
        wavebase(44, BMAPS[bmap], 28672 * 256)
    e("v_and_b32 %s, 1, v1\nv_lshlrev_b32 %s, 8, %s" % (v(vT0), v(vT0), v(vT0)))
    e("v_lshrrev_b32 %s, 2, v1\nv_lshl_add_u32 %s, %s, 4, %s" % (v(vT2), v(vT0), v(vT2), v(vT0)))
    e("s_mov_b32 s42, 0xcccccccc\ns_mov_b32 s43, 0xcccccccc")
    e("v_and_b32 %s, 15, v1\nv_lshlrev_b32 %s, 5, %s" % (v(vT2), v(vT2), v(vT2)))
    e("v_and_b32 %s, 16, v1\nv_add_u32 %s, %s, %s" % (v(vT3), v(vT2), v(vT2), v(vT3)))
    e("v_and_b32 %s, 32, v1\nv_lshlrev_b32 %s, 4, %s\ns_lshl_b32 s34, s30, 10" % (v(vT3), v(vT3), v(vT3)))
    e("v_add3_u32 %s, %s, %s, s34" % (v(vDL), v(vT2), v(vT3)))
    e("v_lshrrev_b32 %s, 5, v1\nv_lshlrev_b32 %s, 4, %s" % (v(vT1), v(vT1), v(vT1)))
    def signal(flag):
        e("v_mov_b32 %s, 1\ns_mov_b64 exec, 1\nds_add_u32 %s, %s offset:%d\ns_mov_b64 exec, -1" % (v(vT3), v(vZ), v(vT3), flag))

    cm("fill the four-unit ring with K while q is exchanged")
    q = -NW
    while st["next"] < K0:
        want(q, W0 + (pend if st["next"] + 1 + pend >= K0 else 0))
        if q == qtrig + K0 - 32:
            signal(F_T1)
        q += 1
    catch = list(range(q + pend, K0))
    stamp()
    cm("wait for q")
    lds_wait(F_Q, "eq", 1, vZ, vT2)
    stamp()

    def catchup(n):
        for _ in range(n):
            if catch:
                want(catch.pop(0), Wc)

    def loadq(pr):
        e("ds_read_b128 %s, %s offset:%d\ns_waitcnt lgkmcnt(0)" % (v(QB0, 4), v(vT0), QB + 512 * pr))
        for i in range(4):
            e("v_cndmask_b32 %s, 0, %s, s[42:43]" % (v(QB1 + i), v(QB0 + i)))
        for i in range(4):
            e("v_cndmask_b32 %s, %s, 0, s[42:43]" % (v(QB0 + i), v(QB0 + i)))

    def mfK(i, j):
        r, t = j // 2, j % 2
        e("%s %s, %s, %s, %s" % (MF, v(DQ + 4 * r, 4), v(slot(i) + 4 * j, 4), v(QB1 if t else QB0, 4), v(DQ + 4 * r, 4) if t else "0"))

    def redK(rs, dst):
        for k in range(1, 4):
            for r in rs:
                c = (r + k) % 4
                src1 = DQ + 4 * r + r if k == 1 else TT + r
                e("v_add_f32_dpp %s, %s, %s row_ror:%d row_mask:0xf bank_mask:0x%x" % (
                    v(TT + r if k < 3 else dst), v(DQ + 4 * r + c), v(src1), 4 * ((r - c) % 4), 0xf if k < 3 else 1 << r))

    def finalize(n, m, l, pp, first):
        t = vT2
        if n == 2:
            e("v_max_f32 %s, %s, %s" % (v(t), v(SS), v(SS + 1)))
        else:
            e("v_max3_f32 %s, %s, %s, %s" % (v(t), v(SS), v(SS + 1), v(SS + 2)))
            e("v_max3_f32 %s, %s, %s, %s" % (v(t + 1), v(SS + 3), v(SS + 4), v(SS + 5)))
            e("v_max3_f32 %s, %s, %s, %s" % (v(t), v(t), v(SS + 6), v(SS + 7)))
            e("v_max_f32 %s, %s, %s" % (v(t), v(t), v(t + 1)))
        dppred("v_max_f32", [t], ["row_ror:2", "row_ror:4", "row_ror:8"])
        xrow("v_max_f32", [t], [t + 1])
        if first:
            e("v_mul_f32 %s, s40, %s" % (v(m), v(t)))
        else:
            e("v_mul_f32 %s, s40, %s\nv_max_f32 %s, %s, %s" % (v(t), v(t), v(t), v(t), v(m)))
            e("v_sub_f32 %s, %s, %s\nv_exp_f32 %s, %s\nv_mov_b32 %s, %s" % (v(t + 1), v(m), v(t), v(t + 1), v(t + 1), v(m), v(t)))
            e("v_mul_f32 %s, %s, %s" % (v(l), v(l), v(t + 1)))
        if n == 8 and npump >= 1:
            pump()
        for k in range(n):
            e("v_fma_f32 %s, %s, s40, -%s" % (v(SS + k), v(SS + k), v(m)))
        for k in range(n):
            e("v_exp_f32 %s, %s" % (v(SS + k), v(SS + k)))
        if n == 8 and npump >= 2:
            pump()
        for k in range(n // 2):
            e("v_cvt_pk_bf16_f32 %s, %s, %s" % (v(pp + k), v(SS + 2 * k), v(SS + 2 * k + 1)))
        for k in range(n):
            if first and k == 0:
                continue
            e("v_add_f32 %s, %s, %s" % (v(l), v(SS + k), v(SS) if (first and k == 1) else v(l)))

    def headsum(l):
        dppred("v_add_f32", [l], ["row_ror:2", "row_ror:4", "row_ror:8"])
        xrow("v_add_f32", [l], [vT2])

    def to_dlayout(dst, src):
        e("v_mov_b32_dpp %s, %s quad_perm:[0,0,0,0] row_mask:0x3 bank_mask:0xf" % (v(dst), v(src)))
        e("v_mov_b32_dpp %s, %s quad_perm:[1,1,1,1] row_mask:0xc bank_mask:0xf" % (v(dst), v(src)))

    def bc(j, pp, half):
        e("v_mov_b32_dpp %s, %s row_newbcast:%d row_mask:0xf bank_mask:0x%x" % (v(BC + j), v(pp), 2 * j + half, 0xc if half else 0x3))

    def perms(j, hi, lo_i=0, hi_i=4):
        for i in range(lo_i, hi_i):
            e("v_perm_b32 %s, %s, %s, %s" % (v(OP + 4 * j + i), v(BC + j), v(BC + j), v((SHI if hi else SLO) + i)))

    def prep_step(j, pp, hi):
        if j == 0:
            bc(0, pp, 0); bc(1, pp, 0); e("s_nop 0"); bc(0, pp, 1); bc(1, pp, 1)
            perms(0, hi)
            return
        if j < 7:
            bc(j + 1, pp, 0)
        perms(j, hi, 0, 2)
        if j < 7:
            bc(j + 1, pp, 1)
        perms(j, hi, 2, 4)

    def mfV(i, j, acc, first):
        e("%s %s, %s, %s, %s" % (MF, v(acc, 4), v(OP + 4 * j, 4), v(slot(i) + 4 * j, 4), "0" if first else v(acc, 4)))

    e("ds_read_b64 %s, %s offset:%d" % (v(GR, 2), v(vZ), F_N0))
    loadq(0)
    e("v_readfirstlane_b32 s62, %s\nv_readfirstlane_b32 s63, %s" % (v(GR), v(GR + 1)))
    if ctl:
        e("s_xor_b32 s55, s30, 1\ns_lshr_b32 s33, s3, %d\ns_or_b32 s55, s55, s33" % (nrep.bit_length() - 1))
        e("s_mov_b32 s98, %s\ns_mov_b32 s99, %s\ns_mov_b32 s57, 0" % (("s25", "s23") if rt else (t2, t0)))
        setflags()
    stamp()

    hooks = {}

    def at(q, f):
        hooks.setdefault(q, []).append(f)

    def send(c):
        cm("256 scores -> running max, probabilities (bf16 pairs), partial sum")
        issue_upto(st["next"] + boost)
        finalize(8, vMR, vLR, PI1 if c else PI0, c == 0)
        if c == 0:
            to_dlayout(vM0, vMR)
        stamp()

    def rec():
        cm("{max, sum} of this wave to LDS")
        headsum(vLB)
        e("v_mov_b32 %s, %s\nv_mov_b32 %s, %s\nv_mov_b32 %s, %s\nv_mov_b32 %s, %s" % (
            v(GR), v(vMR), v(GR + 1), v(vLR), v(GR + 2), v(vMB), v(GR + 3), v(vLB)))
        e("s_lshl_b32 s34, s30, 5\nv_add_u32 %s, s34, %s\ns_mov_b64 exec, 3" % (v(vT2), v(vVO)))
        e("ds_write_b128 %s, %s offset:%d" % (v(vT2), v(GR, 4), MW))
        signal(F_B1)

    TG1, TG2, AD1, AD2, AD3 = WO + 48, WO + 52, WO + 53, WO + 54, WO + 55

    def scales():
        cm("rescale to the maxima of the workgroup")
        issue_upto(st["next"] + sb)
        lds_wait(F_ML, "eq", 1, vZ, vT2)
        e("ds_read_b64 %s, %s offset:%d" % (v(GR, 2), v(vT1), ML))
        for k in range(4) if wf else ():
            e("ds_read_b128 %s, %s offset:%d" % (v(WO + 32 + 4 * k, 4), v(vVO), W8_L + 1024 * k))
        to_dlayout(vT2, vMB)
        to_dlayout(vFA, vMR)
        e("s_waitcnt lgkmcnt(0)")
        e("v_sub_f32 %s, %s, %s\nv_sub_f32 %s, %s, %s\nv_sub_f32 %s, %s, %s" % (
            v(vFA), v(vFA), v(GR), v(vT2), v(vT2), v(GR + 1), v(vT3), v(vM0), v(GR)))
        e("v_exp_f32 %s, %s\nv_exp_f32 %s, %s\nv_exp_f32 %s, %s" % (v(vFA), v(vFA), v(vT2), v(vT2), v(vT3), v(vT3)))
        for r in range(4):
            e("v_mul_f32 %s, %s, %s" % (v(DA0 + r), v(DA0 + r), v(vT3)))
        if order == 1:
            for r in range(4):
                e("v_fma_f32 %s, %s, %s, %s" % (v(DA0 + r), v(DA1 + r), v(vFA), v(DA0 + r)))
            e("v_mov_b32 %s, %s" % (v(vFA), v(vT2)))
            e("ds_write_b128 %s, %s offset:%d" % (v(vDL), v(DA0, 4), DA_L))
        else:
            for r in range(4):
                e("v_mul_f32 %s, %s, %s" % (v(DBc + r), v(DBc + r), v(vT2)))
            e("ds_write_b128 %s, %s offset:%d" % (v(vDL), v(DBc, 4), DB_L))
            if w4 or be:
                signal(F_DB)

    def setup_tail1():
        cm("addresses and tags of the level-1 inbox")
        tagsel()
        tagreg(TG1, 1 if l1c else 8, vT2, chk=TG1)
        e("v_and_b32 %s, 7, v1\nv_lshlrev_b32 %s, 7, %s\nv_lshrrev_b32 %s, 3, v1" % (v(vT2), v(vT2), v(vT2), v(vT3)))
        if l1c:
            e("v_lshrrev_b32 %s, 3, %s\nv_lshl_add_u32 %s, %s, 8, %s" % (v(AD1), v(vT2), v(AD1), v(vT3), v(AD1)))
        else:
            e("v_lshl_add_u32 %s, %s, 4, %s" % (v(AD1), v(vT3), v(vT2)))
        e("s_lshl_b32 s34, s2, 11\ns_add_u32 s34, s34, 0x%x\ns_add_u32 s46, s28, s34\ns_addc_u32 s47, s29, 0" % L1_OFF)
        if wc:
            e("v_lshrrev_b32 %s, 5, %s" % (v(AD3), v(vT2)))
            return
        e("v_mov_b32 %s, %s" % (v(AD3), v(vT2)))
        e("s_lshl_b32 s34, s31, 11\ns_lshr_b32 s35, s32, 2\ns_lshl_b32 s35, s35, 4\ns_add_u32 s34, s34, s35")
        e("s_add_u32 s34, s34, 0x%x\ns_add_u32 s52, s28, s34\ns_addc_u32 s53, s29, 0" % G_OFF)

    def setup_tail2():
        cm("address and tag of the level-2 outbox (wave 3: level-1 outbox of problem B)")
        tagreg(TG2, 1, vT2)
        e("v_and_b32 %s, 8, v1\nv_cmp_ne_u32 vcc, 0, %s\nv_lshrrev_b32 %s, 5, v1" % (v(vT2), v(vT2), v(vT3)))
        e("v_cndmask_b32 %s, %s, %d, vcc" % (v(vT3), v(vT3), 8 if w4 else 2))
        if pb < 3:
            e("v_bfe_u32 %s, v1, %d, %d\nv_lshl_add_u32 %s, %s, %d, %s" % (v(vT2), pb, 3 - pb, v(vT2), v(vT3), 3 - pb, v(vT2)))
        else:
            e("v_mov_b32 %s, %s" % (v(vT2), v(vT3)))
        e("v_bfe_u32 %s, v1, 4, 1\nv_lshl_add_u32 %s, %s, 1, %s\nv_lshlrev_b32 %s, %d, %s" % (v(vT3), v(vT2), v(vT2), v(vT3), v(vT2), 11 + pb, v(vT2)))
        e("v_and_b32 %s, %d, v1\nv_lshl_add_u32 %s, %s, 4, %s" % (v(vT3), (1 << pb) - 1, v(AD2), v(vT3), v(vT2)))
        e("s_lshr_b32 s34, s32, 3\ns_mul_i32 s34, s34, 9\ns_mul_i32 s35, s30, %d\ns_add_u32 s34, s34, s35\ns_lshl_b32 s34, s34, 15" % NG)
        e("s_lshl_b32 s35, s56, %d\ns_add_u32 s34, s34, s35\ns_add_u32 s34, s34, 0x%x" % (4 + pb, L2_OFF))
        e("s_add_u32 s48, s28, s34\ns_addc_u32 s49, s29, 0")
        if w4 or be:
            return
        with optional("s_cmp_lg_u32 s30, 3"):
            tagreg(TG2, 1, vT2)
            l1_out_addr(AD2, vT2, vT3, 48, 1, TG2)
        e("ds_read_b32 %s, %s offset:%d\ns_waitcnt lgkmcnt(0)\nv_readfirstlane_b32 s61, %s" % (v(vT2), v(vZ), F_LOC, v(vT2)))
        if fpos >= 0:
            e("s_lshl_b32 s33, s2, 7\ns_lshl_b32 s34, s30, 4\ns_add_u32 s33, s33, s34\ns_add_u32 s33, s33, 0x%x" % (G_OFF + 64))
            e("s_add_u32 s4, s28, s33\ns_addc_u32 s5, s29, 0\nv_mov_b32 %s, s62\nv_mov_b32 %s, s63\nv_mov_b32 %s, 1" % (v(QB0), v(QB0 + 1), v(QB0 + 2)))

    at(8 * 8 + 1, lambda: send(0))
    at(8 * 16 + 1, lambda: send(1))
    hsum = lambda: headsum(vLR)
    at(8 * 17 + 2, hsum)
    at(8 * pos[("BV", 0)] + 1, rec)
    if wf:
        at(8 * 4 + 2, lambda: e("s_lshl_b32 s33, s30, 10\nv_add_u32 %s, s33, %s\nds_write_b128 %s, %s offset:%d" % (v(vT2), v(vVO), v(vT2), v(WO + 32, 4), W8_L)))
    else:
        at(8 * 22 + 2, setup_wo)

    def prepnext(kind):
        segstart(vNX, kind)
        nxt[0] = kind
    for i in range(1, len(seq)):
        if seq[i][0] != seq[i - 1][0]:
            at(8 * i - 20, lambda kind=seq[i][0]: prepnext(kind))

    def ldg8(rg):
        with optional("s_cmp_lg_u32 s30, 0"):
            e("global_load_dwordx4 %s, %s, s[14:15] offset:%d %s" % (v(WO + 32 + 4 * rg, 4), v(vWO), rg * 1152, wflags))
    for rg in range(4) if (w4 and g8a > 0) else ():
        at(NKV - g8a + g8d * rg, lambda rg=rg: ldg8(rg))
    for qq in (70, 140, 150, 230, 280) if jit else ():
        at(qq, lambda: jitter(5))
    at(8 * 28, stamp)
    at(NKV - (7 if order == 1 else scp), scales)
    at(8 * 24 + 2, setup_tail1)
    at(8 * 26 + 2, setup_tail2)
    for k in range(1 << gst):
        at(NKV - gtrig + gsd * k, lambda: signal(F_T2))
    GA, GB = WO + 56, WO + 60
    ldg = "global_load_dwordx4 %s, %s, s[52:53] sc1\nglobal_load_dwordx4 %s, %s, s[52:53] offset:1024 sc1" % (v(GA, 4), v(AD3), v(GB, 4), v(AD3))
    ldg = ldg.replace("sc1", l1lf)
    red8 = ["quad_perm:[1,0,3,2]", "quad_perm:[2,3,0,1]", "row_half_mirror"]

    def weights(GA=GA, GB=GB, vT2=vT2, vT3=vT3, ldg=ldg):
        cm("softmax weights of the 16 splits")
        L, D = e.newlabel("g1"), e.newlabel("g1d")
        e.waitvm("g")
        e("s_mov_b32 s35, %d" % SPIN)
        e.label(L)
        e("v_xor_b32 %s, s62, %s\nv_xor_b32 %s, s63, %s" % (v(vT2), v(GA + 1), v(vT3), v(GA + 3)))
        e("v_bitop3_b32 %s, %s, %s, s62 bitop3:0xf6\nv_bitop3_b32 %s, %s, %s, s63 bitop3:0xf6" % (v(vT2), v(vT2), v(GB + 1), v(vT3), v(vT3), v(GB + 3)))
        e("v_or_b32 %s, %s, %s\nv_cmp_ne_u32 vcc, 0, %s\ns_cbranch_vccz %s" % (v(vT2), v(vT2), v(vT3), v(vT2), D))
        h, vm = list(e.hist), list(e.vm)
        if not raw:
            e(ldg + "\ns_waitcnt vmcnt(0)\ns_sub_u32 s35, s35, 1\ns_cbranch_scc0 %s" % L)
        e.label(D)
        e.hist, e.vm = h, vm
        e("v_max_f32 %s, %s, %s" % (v(vT2), v(GA), v(GB)))
        dppred("v_max_f32", [vT2], red8)
        e("v_sub_f32 %s, %s, %s\nv_sub_f32 %s, %s, %s" % (v(GA), v(GA), v(vT2), v(GB), v(GB), v(vT2)))
        e("v_exp_f32 %s, %s\nv_exp_f32 %s, %s" % (v(GA), v(GA), v(GB), v(GB)))
        e("v_mul_f32 %s, %s, %s\nv_fma_f32 %s, %s, %s, %s" % (v(vT2), v(GA), v(GA + 2), v(vT2), v(GB), v(GB + 2), v(vT2)))
        dppred("v_add_f32", [vT2], red8)
        e("v_rcp_f32 %s, %s" % (v(vT2), v(vT2)))
        e("v_mul_f32 %s, %s, %s\nv_mul_f32 %s, %s, %s" % (v(GA), v(GA), v(vT2), v(GB), v(GB), v(vT2)))

    if gld and not wc:
        at(NKV - gld, lambda: e(ldg, "g"))
        if wearly:
            at(NKV - gld + 11, weights)

    def ppof(kind, u):
        return (vPB, u) if kind == "BV" else ((PI1 if u >= 8 else PI0) + (u % 8) // 2, u % 2)

    reddone = set()

    def red(qq):
        if qq >= 0 and seq[qq // 8][0][1] == "K" and qq not in reddone:
            reddone.add(qq)
            redK([(qq % 8) // 2], SS + seq[qq // 8][1] % 8)

    for q in range(NKV):
        i, j = q // 8, q % 8
        kind, u = seq[i]
        if j == 0:
            cm("---- unit %d: %s %s %d" % (i, kind[0], "keys" if kind[1] == "K" else "values", u))
        if (kind, u, j) == ("BK", 0, 0):
            issue_upto(st["next"] + hb)
            loadq(1)
        if (kind, u, j) == ("BV", 0, 0):
            want(q)
            red(q - 1)
            finalize(2, vMB, vLB, vPB, True)
            want(q + 1)
            for k in range(8):
                prep_step(k, vPB, False)
            if npump:
                want(q + 2)
        if q < K0:
            want(q, 0 if q < catch[0] else Wc)
        else:
            want(q)
        if kind[1] == "K":
            mfK(i, j)
        else:
            mfV(i, j, DBc if kind == "BV" else (DA1 if u >= 8 else DA0), u % 8 == 0 and j == 0)
        st["free"] = min(K0 + 1 + q if q < 16 else max(K0 + 16, q + 17), NKV + wcap)
        if q < K0 and q % (K0 // 5) == 0 and len(catch) > 1:
            catchup(1)
        if j % 2 == 1:
            red(q - 2)
        if i + 1 < len(seq) and seq[i + 1][0][1] == "V" and seq[i + 1] != ("BV", 0):
            prep_step(j, *ppof(*seq[i + 1]))
        hk = hooks.pop(q, [])
        if hb and any(f in (rec, setup_tail1, setup_tail2, hsum) for f in hk):
            issue_upto(st["next"] + hb)
        for f in hk:
            f()
        if ctl and q >= K0:
            dirty = bool(hk)
            use = i > ms[0] + mdel
            if i == tu and j == 6:
                e("s_mov_b32 s98, %d\ns_mov_b32 s99, %d" % (u2, u0))
                thr[0] = u1
            if i >= dbl and j == 0:
                e("s_memrealtime s[96:97]")
            if i >= dbl and j == 2:
                e("s_waitcnt lgkmcnt(0)\ns_sub_u32 s57, s96, s54\ns_mul_i32 s33, s59, %d\ns_lshr_b32 s33, s33, 5\ns_cselect_b32 s57, s57, 0\ns_sub_u32 s57, s57, s33" % (2 * i - 1))
                dirty = True
            if j == 4 and i - mdel in ms:
                signal(F_P)
            if j == 4 and (use or i in ms):
                e("s_memrealtime s[58:59]")
                if use:
                    e("ds_read_b64 %s, %s offset:%d" % (v(vRF, 2), v(vZ), F_REF))
            if j == 6 and (use or i in ms):
                e("s_waitcnt lgkmcnt(0)")
                per = cb / 80.0
                cor = "s_cmp_gt_i32 s60, %d\ns_cselect_b32 s33, 0, %d\ns_cmp_gt_i32 s60, %d\ns_cselect_b32 s33, %d, s33\ns_cmp_gt_i32 s60, %d\ns_cselect_b32 s33, %d, s33\ns_add_u32 s58, s58, s33"
                cork = lambda k: cor % (t0, round(k * per * (LV0[0] - LV0[1])), t1, round(k * per * (LV0[2] - LV0[1])), t2, round(k * per * (LV0[3] - LV0[1])))
                if (rcor and i in ms) or lcor:
                    e("s_mov_b32 s60, s57")
                if lcor:
                    e(cork(lcor / 10.0))
                if use:
                    e("v_readfirstlane_b32 s54, %s\nv_readfirstlane_b32 s59, %s\ns_sub_u32 s57, s58, s54" % (v(vRF), v(vRF + 1)))
                    e("s_mul_i32 s33, s59, %d\ns_lshr_b32 s33, s33, 4\ns_cselect_b32 s57, s57, 0\ns_sub_u32 s57, s57, s33" % i)
                if fine == 1 and i % 2 == 0:
                    e("v_writelane_b32 %s, s57, %d" % (v(vFT), 41 + i // 2))
                if i in ms:
                    with optional("s_cmp_lg_u32 s55, 0"):
                        if rcor:
                            e(cork(1 - lcor / 10.0))
                        e("s_add_u32 s58, s58, s62\ns_lshl_b32 s33, s3, %d\ns_add_u32 s33, s33, %d" % (rsh, RP_OFF + 4352 * ms.index(i)))
                        e("v_mov_b32 %s, s33\nv_mov_b32 %s, s58\ns_mov_b64 exec, 1" % (v(vT2), v(vT3)))
                        e("global_store_dword %s, %s, s[28:29] %s\ns_mov_b64 exec, -1" % (v(vT2), v(vT3), rf))
                dirty = True
            if dirty:
                setflags()
    assert not hooks, hooks.keys()
    stamp()
    if order == 1:
        for r in range(4):
            e("v_mul_f32 %s, %s, %s" % (v(DBc + r), v(DBc + r), v(vFA)))
        e("ds_write_b128 %s, %s offset:%d" % (v(vDL), v(DBc, 4), DB_L))
    else:
        for r in range(4):
            e("v_fma_f32 %s, %s, %s, %s" % (v(DA0 + r), v(DA1 + r), v(vFA), v(DA0 + r)))
        e("ds_write_b128 %s, %s offset:%d" % (v(vDL), v(DA0, 4), DA_L))
    def ldg8all():
        with optional("s_cmp_lg_u32 s30, 0"):
            for rg in range(4):
                e("global_load_dwordx4 %s, %s, s[14:15] offset:%d %s" % (v(WO + 32 + 4 * rg, 4), v(vWO), rg * 1152, wflags))
    if w4 and g8a == -1:
        ldg8all()
    if wob:
        issue_upto(NLD)
    e("s_waitcnt lgkmcnt(0)\ns_barrier")
    st["free"] = NLD
    if w4 and g8a == 0:
        ldg8all()
    if not w4:
        e("s_cmp_eq_u32 s30, 3\ns_cbranch_scc1 L_w3")
    if pfirst:
        if not wearly:
            weights()
        e("s_barrier")
    if not gld and not wc:
        e(ldg, "g")
    if olast:
        st["free"] = NLD - olast
        issue_upto(NKV + Wwo)
    elif wthr:
        setflags()
        while st["next"] < NLD:
            throttle(NKV)
            issue_upto(st["next"] + 1)
    else:
        issue_upto(NLD)
    if wc:
        e("ds_read_b32 %s, %s offset:%d\nds_read_b32 %s, %s offset:%d\ns_waitcnt lgkmcnt(0)" % (v(GA), v(AD3), WT, v(GB), v(AD3), WT + 32))
    elif not wearly and not pfirst:
        weights()
    if fine == 3:
        for q in range(NKV, NLD):
            want(q, 0)
    cm("level 1: o[32] of our wo rows = weighted sum over the splits, then o . wo")
    X, Y = OP, OP + 4
    ldo = "global_load_dwordx4 %s, %s, s[46:47] sc1\nglobal_load_dwordx4 %s, %s, s[46:47] offset:%d sc1" % (v(X, 4), v(AD1), v(Y, 4), v(AD1), 128 if l1c else 1024)
    ldo = ldo.replace("sc1", l1lf)
    L, D = e.newlabel("l1"), e.newlabel("l1d")
    if olast:
        q = NKV
        while q + Wwo <= NLD - olast + okeep:
            want(q, Wwo)
            q += 1
        e(ldo + "\ns_mov_b32 s35, %d" % SPIN, "o")
        st["free"] = NLD
        issue_upto(NLD)
        e.waitvm("o")
    else:
        e.waitvm("u%d" % (NLD - 1 - okeep))
        if dg:
            e("s_memrealtime s[72:73]")
        e(ldo + "\ns_mov_b32 s35, %d" % SPIN)
        e.waitvm()
        if dg:
            e("s_memrealtime s[74:75]")
    if trim & 8:
        G = [RING, RING + 4, RING + 8]
        Z, R, O = RING + 12, RING + 16, OP + 24
        RT = e.newlabel("l1r")
        e.label(L)
        stamp()
        for x in (X, Y):
            for r in range(4):
                e("v_xor_b32 %s, %s, %s" % (v(x + r), v(x + r), v(TG1 + r)))
        for r in (0, 2):
            e("v_pk_mul_f32 %s, %s, %s op_sel_hi:[1,0]" % (v(O + r, 2), v(X + r, 2), v(GA, 2)))
        for r in (0, 2):
            e("v_pk_fma_f32 %s, %s, %s, %s op_sel_hi:[1,0,1]" % (v(O + r, 2), v(Y + r, 2), v(GB, 2), v(O + r, 2)))
        dppred("v_add_f32", [O, O + 1, O + 2, O + 3], red8)
        e("v_cvt_pk_bf16_f32 %s, %s, %s\nv_cvt_pk_bf16_f32 %s, %s, %s" % (v(BC), v(O), v(O + 1), v(BC + 1), v(O + 2), v(O + 3)))
        mf = lambda g, rg: e("%s %s, %s, %s, %s" % (MF, v(G[g], 4), v(OP + 8 + 4 * rg, 4), v(WO + 4 * (4 * g + rg), 4), "0" if rg == 0 else v(G[g], 4)))
        for rg in range(5):
            if rg < 4:
                for i in range(4):
                    e("v_perm_b32 %s, %s, %s, %s" % (v(OP + 8 + 4 * rg + i), v(BC + rg // 2), v(BC + rg // 2), v((SHI if rg % 2 else SLO) + i)))
            if rg > 0:
                mf(0, rg - 1)
                mf(1, rg - 1)
        chk = ["v_or3_b32 %s, %s, %s, %s\nv_or3_b32 %s, %s, %s, %s" % (v(vT2), v(X), v(X + 1), v(X + 2), v(vT3), v(X + 3), v(Y), v(Y + 1)),
               "v_or3_b32 %s, %s, %s, %s\nv_or_b32 %s, %s, %s" % (v(vT2), v(vT2), v(Y + 2), v(Y + 3), v(vT2), v(vT2), v(vT3)),
               "v_and_b32 %s, 0xff, %s\nv_cmp_ne_u32 vcc, 0, %s" % (v(vT2), v(vT2), v(vT2)), ""]
        for rg in range(4):
            mf(2, rg)
            e(chk[rg])
        if not raw:
            e("s_cbranch_vccnz %s" % RT)
        e.label(D)
        for r in range(4):
            e("v_permlane32_swap_b32 %s, %s" % (v(G[0] + r), v(G[1] + r)))
        for r in range(4):
            e("v_add_f32_dpp %s, %s, %s row_ror:8 row_mask:0xf bank_mask:0x3" % (v(R + r), v(G[1] + r), v(G[0] + r)))
        for r in range(4):
            e("v_permlane32_swap_b32 %s, %s" % (v(G[2] + r), v(Z + r)))
        for r in range(4):
            e("v_add_f32_dpp %s, %s, %s row_ror:8 row_mask:0xf bank_mask:0xc" % (v(R + r), v(G[2] + r), v(Z + r)))
        ready = lambda p: None
        retry = [ldo, "s_waitcnt vmcnt(0)", "v_xor_b32 %s, %s, %s" % (v(vT2), v(X), v(TG1))]
        retry += ["v_bitop3_b32 %s, %s, %s, %s bitop3:0xf6" % (v(vT2), v(vT2), v(X + k), v(TG1 + k % 4)) for k in range(1, 8)]
        retry += ["v_and_b32 %s, 0xff, %s\nv_cmp_ne_u32 vcc, 0, %s\ns_cbranch_vccz %s" % (v(vT2), v(vT2), v(vT2), L)]
        retry += ["s_sub_u32 s35, s35, 1\ns_cbranch_scc0 %s\ns_branch %s" % (RT, D)]
        retry = RT + ":\n  " + "\n".join(retry).replace("\n", "\n  ")
    else:
        retry = ""
        e.label(L)
        tagcheck([X, Y], TG1, vT2, vT3)
        e("s_cbranch_vccz %s" % D)
        vm = list(e.vm)
        if not raw:
            e(ldo + "\ns_waitcnt vmcnt(0)\ns_sub_u32 s35, s35, 1\ns_cbranch_scc0 %s" % L)
        e.label(D)
        e.hist, e.vm = [], vm
        stamp()

        def ready(p):
            if p == fpos:
                e("s_mov_b64 exec, 1\nglobal_store_dwordx2 %s, %s, s[4:5]" % (v(vZ), v(QB0, 2)), "fl")
                e("ds_add_u32 %s, %s offset:%d\ns_mov_b64 exec, -1" % (v(vZ), v(QB0 + 2), F_T3))

        ready(0)
        if trim & 4:
            for r in (0, 2):
                e("v_pk_mul_f32 %s, %s, %s op_sel_hi:[1,0]" % (v(X + r, 2), v(X + r, 2), v(GA, 2)))
            for r in (0, 2):
                e("v_pk_fma_f32 %s, %s, %s, %s op_sel_hi:[1,0,1]" % (v(X + r, 2), v(Y + r, 2), v(GB, 2), v(X + r, 2)))
        else:
            for r in range(4):
                e("v_mul_f32 %s, %s, %s" % (v(X + r), v(X + r), v(GA)))
            for r in range(4):
                e("v_fma_f32 %s, %s, %s, %s" % (v(X + r), v(Y + r), v(GB), v(X + r)))
        dppred("v_add_f32", [X, X + 1, X + 2, X + 3], ["quad_perm:[1,0,3,2]", "quad_perm:[2,3,0,1]", "row_half_mirror"])
        e("v_cvt_pk_bf16_f32 %s, %s, %s\nv_cvt_pk_bf16_f32 %s, %s, %s" % (v(BC), v(X), v(X + 1), v(BC + 1), v(X + 2), v(X + 3)))
        ready(1)
        G = [RING, RING + 4, RING + 8]
        Z, R = RING + 12, RING + 16
        for rg in range(5):
            if rg < 4:
                for i in range(4):
                    e("v_perm_b32 %s, %s, %s, %s" % (v(OP + 8 + 4 * rg + i), v(BC + rg // 2), v(BC + rg // 2), v((SHI if rg % 2 else SLO) + i)))
            if rg > 0:
                for g in range(3):
                    e.waitvm("u%d" % (NKV + NG * (rg - 1) + g))
                    e("%s %s, %s, %s, %s" % (MF, v(G[g], 4), v(OP + 4 + 4 * rg, 4), v(WO + 4 * (4 * g + rg - 1), 4), "0" if rg == 1 else v(G[g], 4)))
        ready(2)
        for r in range(4):
            e("v_permlane32_swap_b32 %s, %s" % (v(G[0] + r), v(G[1] + r)))
        for r in range(4):
            e("v_permlane32_swap_b32 %s, %s" % (v(G[2] + r), v(Z + r)))
        for r in range(4):
            e("v_add_f32_dpp %s, %s, %s row_ror:8 row_mask:0xf bank_mask:0x3" % (v(R + r), v(G[1] + r), v(G[0] + r)))
        for r in range(4):
            e("v_add_f32_dpp %s, %s, %s row_ror:8 row_mask:0xf bank_mask:0xc" % (v(R + r), v(G[2] + r), v(Z + r)))
    tagput(R, TG2)
    jitter(2)
    e("s_mov_b64 exec, s[50:51]" if w4 else "s_mov_b32 exec_hi, 0x00ff00ff")
    e("global_store_dwordx4 %s, %s, s[48:49] %s" % (v(AD2), v(R, 4), l2sf))
    stamp()
    ready(3)
    if fdel:
        if fack:
            e("s_waitcnt vmcnt(0)")
        signal(F_T3)
    e.label("L_sdone")
    if fine:
        e("s_mov_b64 exec, -1\ns_waitcnt lgkmcnt(0)\nv_writelane_b32 %s, s70, 0" % v(vFT))
        if fine == 1:
            e("s_getreg_b32 s33, hwreg(HW_REG_HW_ID)\nv_writelane_b32 %s, s33, 40" % v(vFT))
        e("s_lshl_b32 s33, s3, 2\ns_add_u32 s33, s33, s30\ns_lshl_b32 s33, s33, 8\ns_add_u32 s33, s33, 0x%x" % (STAMP_OFF + 0x100000))
        e("v_lshl_add_u32 v19, v1, 2, s33\nglobal_store_dword v19, %s, s[28:29]" % v(vFT))
    write_stamps(vT2, "s")
    e("s_endpgm")
    e.raw(retry)
    e.hist, e.vm = [], []
    if not w4:
        cm("wave 3: sum the B partials of the four waves and send them")
        e.label("L_w3")
        if not be:
            sumpub(DB_L, OP, vVO, AD2, 48, TG2)
        if pfirst:
            e("s_barrier")
        e("s_branch L_sdone" if stamps else "s_endpgm")

    e.hist, e.vm = [], []
    nst[0] = base_st
    e.raw(".p2align 6")
    cm("==== communication wave")
    e.label("L_comm")
    e("s_setprio %d\ns_memrealtime s[56:57]" % cpr)
    e(ids)
    e("v_lshlrev_b32 v2, 2, v1\nv_mov_b32 v3, 0\nds_write_b32 v2, v3 offset:%d" % FL)
    cZ, c16, cT, cU, cA, cO = 2, 3, 4, 5, 6, 7
    A0 = 8
    TG, TP = 60, 100
    e("v_mov_b32 %s, 0\nv_lshlrev_b32 %s, 4, v1" % (v(cZ), v(c16)))
    if warm:
        cm("pull a slice of this kernel's own code into the L2")
        e("s_getpc_b64 s[36:37]")
        e.label("L_pc0")
        e("s_sub_u32 s36, s36, L_pc0-%s\ns_subb_u32 s37, s37, 0" % KN)
    if warm and swarm:
        e("s_lshr_b32 s33, s3, 3\ns_mulk_i32 s33, %d\ns_min_u32 s33, s33, L_end-%s-%d\ns_add_u32 s36, s36, s33\ns_addc_u32 s37, s37, 0" % (128 * wl, KN, 128 * wl - 64))
    if warm and not swarm:
        e("s_lshr_b32 s33, s3, 3\ns_mulk_i32 s33, %d\nv_lshl_add_u32 %s, v1, 7, s33" % (128 * wl, v(cU)))
        e("v_min_u32 %s, L_end-%s, %s\ns_mov_b64 exec, 0x%x" % (v(cU), KN, v(cU), (1 << wl) - 1))
        e("global_load_dword %s, %s, s[36:37]" % (v(A0), v(cU)))
    if touch:
        e("s_lshl_b32 s38, s31, 23\ns_add_u32 s39, s38, %d" % (28672 * 256))
        e("v_lshl_add_u32 %s, v1, 21, s38\nv_mov_b32 %s, s39" % (v(A0 + 12), v(A0 + 13)))
        e("s_lshl_b32 s33, s31, 3\ns_and_b32 s34, s32, 7\ns_add_u32 s33, s33, s34\ns_mul_i32 s33, s33, %d\nv_mov_b32 %s, s33" % (32 * 1152, v(A0 + 15)))
    e("s_cmp_ge_u32 s32, 8\ns_waitcnt lgkmcnt(0)\ns_cselect_b64 s[12:13], s[22:23], s[12:13]\ns_mov_b64 exec, 1")
    cm("workgroup 0 publishes the launch nonce")
    e("s_cmp_lg_u32 s3, 0\ns_cbranch_scc1 L_nolead")
    e("s_lshr_b64 s[56:57], s[56:57], 8\ns_mul_i32 s33, s56, 0x9e3779b1\ns_mul_i32 s34, s56, 0x85ebca6b\ns_add_u32 s34, s34, s57")

    for r in (33, 34):
        e("s_and_b32 s35, s%d, 0x7f\ns_lshr_b32 s%d, s%d, 7\ns_lshl_b32 s%d, s%d, 9\ns_lshl_b32 s35, s35, 1\ns_or_b32 s%d, s%d, s35\ns_or_b32 s%d, s%d, 1" % (
            r, r, r, r, r, r, r, r, r))
    jitter(4)
    e("v_mov_b32 v16, s33\nv_mov_b32 v17, s34\nv_mov_b32 v18, 0\nv_mov_b32 v19, 0")
    e("global_atomic_cmpswap_x2 %s, v[16:19], s[26:27] sc1" % v(cZ))
    e.label("L_nolead")
    if touch:
        e("global_load_dword %s, %s, s[16:17] nt\nglobal_load_dword %s, %s, s[18:19] nt" % (v(A0), v(A0 + 13), v(A0), v(A0 + 13)))
        e("global_load_dword %s, %s, s[12:13] nt\ns_mov_b64 exec, 15" % (v(A0), v(A0 + 15)))
        e("global_load_dword %s, %s, s[6:7] nt\nglobal_load_dword %s, %s, s[8:9] nt" % (v(A0), v(A0 + 12), v(A0), v(A0 + 12)))
        e("s_mov_b64 exec, 1")
    def pretouch(ex):
        if spre:
            e("s_lshl_b32 s33, s2, 11\ns_add_u32 s46, s28, s33\ns_addc_u32 s47, s29, 0\ns_lshl_b32 s33, s2, 7\ns_add_u32 s33, s33, 0x%x" % G_OFF)
            e("s_load_dword s48, s[28:29], s33\ns_add_u32 s33, s33, 64\ns_load_dword s48, s[28:29], s33")
            for k in range(32):
                e("s_load_dword s48, s[46:47], 0x%x" % (L1_OFF + 64 * k))
            return
        e("s_mov_b64 exec, 0xffff\ns_lshl_b32 s33, s2, 11\ns_add_u32 s33, s33, 0x%x\nv_lshl_add_u32 %s, v1, 7, s33" % (L1_OFF, v(cT)))
        e("s_lshl_b32 s33, s2, 7\ns_add_u32 s33, s33, 0x%x\nv_writelane_b32 %s, s33, 16\ns_mov_b64 exec, 0x1ffff" % (G_OFF, v(cT)))
        e("global_load_dword %s, %s, s[28:29] sc1\ns_mov_b64 exec, %d" % (v(A0 + 45), v(cT), ex))

    if warm and swarm:
        for k in range(2 * wl):
            e("s_load_dword s48, s[36:37], %d" % (64 * k))
    if pre1 == 2:
        pretouch(1)
    e("s_barrier")
    if raw:
        e("s_endpgm")
    cm("read the nonce")
    L, D = e.newlabel("gf"), e.newlabel("gfd")
    e("s_mov_b32 s35, %d" % SPIN)
    if nsl:
        e("s_sleep %d" % nsl)
    if npoll == 2:
        e("global_load_dwordx2 %s, %s, s[26:27] sc1\ns_sleep 12" % (v(A0 + 2, 2), v(cZ)))
    e.label(L)
    for k in range(npoll):
        e("global_load_dwordx2 %s, %s, s[26:27] sc1" % (v(A0 + 2 * npoll - 2 * k, 2), v(cZ)))
        e("s_waitcnt vmcnt(%d)" % (npoll - 1))
        e("v_readfirstlane_b32 s62, %s\nv_readfirstlane_b32 s63, %s" % (v(A0 + 2 + 2 * k), v(A0 + 3 + 2 * k)))
        e("s_and_b32 s34, s62, s63\ns_bitcmp1_b32 s34, 0\ns_cbranch_scc1 %s" % D)
    e("s_sub_u32 s35, s35, 1\ns_cbranch_scc0 %s" % L)
    e.label(D)
    e.vm = []
    e("s_mov_b64 exec, -1\nv_mov_b32 %s, s62\nv_mov_b32 %s, s63" % (v(A0 + 16), v(A0 + 17)))
    e("ds_write_b64 %s, %s offset:%d" % (v(cZ), v(A0 + 16, 2), F_N0))
    stamp()
    tagsel()
    tagreg(TP, 1, cT, chk=TG)
    e("s_lshl_b32 s33, s31, 12\ns_add_u32 s33, s33, 0x%x\ns_add_u32 s36, s28, s33\ns_addc_u32 s37, s29, 0" % Q_OFF)
    e("s_lshl_b32 s33, s32, 8\ns_add_u32 s38, s36, s33\ns_addc_u32 s39, s37, 0")
    e("s_getreg_b32 s60, hwreg(HW_REG_XCC_ID, 0, 4)\ns_lshl_b32 s33, s60, 24\nv_xor_b32 v103, s33, %s" % v(TP))
    cm("sum and send our 64 partial q values (the XCD id rides in a tag)")
    lds_wait(F_QP, "eq", 4, cZ, cT, sleep=csl)
    e("s_mov_b64 exec, 0xffff")
    R0 = A0 + 16
    for k in range(8):
        e("ds_read_b128 %s, %s offset:%d" % (v(R0 + 4 * k, 4), v(c16), QP + 256 * k))
    e("s_waitcnt lgkmcnt(0)")
    for stp in (16, 8, 4):
        for k in range(stp):
            e("v_add_f32 %s, %s, %s" % (v(R0 + k), v(R0 + k), v(R0 + stp + k)))
    tagput(R0, 103)
    e("global_store_dwordx4 %s, %s, s[38:39] %s\ns_mov_b64 exec, -1" % (v(c16), v(R0, 4), qsf) if not noq else "s_mov_b64 exec, -1")
    stamp()
    if qpre:
        e("s_waitcnt vmcnt(0)\ns_load_dword s48, s[38:39], 0\ns_load_dword s48, s[38:39], 64\ns_load_dword s48, s[38:39], 128\ns_load_dword s48, s[38:39], 192")
    if pre1 == 3:
        pretouch(-1)
    QS = 64
    cm("fetch q of the head once the stream is far enough that it is normally complete")
    lds_wait(F_T1, "ge", 1, cZ, cT, sleep=max(1, 2 * csl))
    L, D = e.newlabel("qp"), e.newlabel("qd")
    e("s_mov_b32 s35, %d" % SPIN)
    if noq:
        for j in range(16):
            e("v_mov_b32 %s, s60" % v(QS + j))
        e("s_branch %s" % D)
    e.label(L)
    for j in range(4):
        e("global_load_dwordx4 %s, %s, s[36:37] offset:%d %s" % (v(QS + 4 * j, 4), v(c16), 1024 * j, qlf))
    e.waitvm()
    for j in range(4):
        for r in range(4):
            e("v_xor_b32 %s, %s, %s" % (v(QS + 4 * j + r), v(QS + 4 * j + r), v(TG + r)))
    e("v_or3_b32 %s, %s, %s, %s\nv_or_b32 %s, %s, %s" % (v(cU), v(QS + 3), v(QS + 7), v(QS + 11), v(cU), v(cU), v(QS + 15)))
    e("v_and_b32 %s, 0xf0, %s" % (v(cT), v(cU)))
    for j in range(4):
        e("v_or3_b32 %s, %s, %s, %s\nv_or_b32 %s, %s, %s" % (v(cT), v(cT), v(QS + 4 * j), v(QS + 4 * j + 1), v(cT), v(cT), v(QS + 4 * j + 2)))
    e("v_and_b32 %s, 0xff, %s\nv_cmp_ne_u32 vcc, 0, %s" % (v(cT), v(cT), v(cT)))
    e("s_cbranch_vccz %s\ns_sub_u32 s35, s35, 1\ns_cbranch_scc0 %s" % (D, L))
    e.label(D)
    e("v_xor_b32 %s, s60, %s" % (v(QS + 16), v(QS + 3)))
    for j in range(1, 4):
        e("v_bitop3_b32 %s, %s, %s, s60 bitop3:0xf6" % (v(QS + 16), v(QS + 16), v(QS + 4 * j + 3)))
    for j in range(4):
        e("v_and_b32 %s, -16, %s" % (v(QS + 4 * j + 3), v(QS + 4 * j + 3)))
    for pr in range(2):
        for r in range(4):
            e("v_add_f32 %s, %s, %s" % (v(A0 + 4 * pr + r), v(QS + 8 * pr + r), v(QS + 8 * pr + 4 + r)))
    e("v_lshlrev_b32 %s, 3, v1\nv_mov_b32 %s, 1" % (v(cO), v(cU)))
    for k in range(4):
        e("v_cvt_pk_bf16_f32 %s, %s, %s" % (v(A0 + 8 + k), v(A0 + 2 * k), v(A0 + 2 * k + 1)))
    e("ds_write_b64 %s, %s offset:%d\nds_write_b64 %s, %s offset:%d" % (v(cO), v(A0 + 8, 2), QB, v(cO), v(A0 + 10, 2), QB + 512))
    e("ds_write_b32 %s, %s offset:%d" % (v(cZ), v(cU), F_Q))
    e("v_and_b32 %s, 15, %s" % (v(QS + 16), v(QS + 16)))
    e("v_cmp_ne_u32 vcc, 0, %s\ns_nop 1\ns_cmp_eq_u64 vcc, 0\ns_cselect_b32 s61, 1, 0\nv_mov_b32 %s, s61" % (v(QS + 16), v(cU)))
    e("ds_write_b32 %s, %s offset:%d" % (v(cZ), v(cU), F_LOC))
    stamp()
    e("v_and_b32 %s, 1, v1\nv_bfe_u32 %s, v1, 1, 1\nv_lshlrev_b32 %s, 4, %s" % (v(cT), v(cU), v(cT), v(cT)))
    e("v_lshl_add_u32 %s, %s, 3, %s\nv_lshl_add_u32 %s, %s, 2, %s" % (v(A0 + 20), v(cU), v(cT), v(A0 + 21), v(cU), v(cT)))
    e("s_lshl_b32 s33, s2, 7\ns_add_u32 s33, s33, 0x%x\ns_add_u32 s38, s28, s33\ns_addc_u32 s39, s29, 0" % G_OFF)
    l1_out_addr(cA, cT, cU, 36, 0, TP)
    e("s_lshl_b32 s33, s3, %d\ns_add_u32 s33, s33, 0x%x\ns_add_u32 s40, s28, s33\ns_addc_u32 s41, s29, 0" % (11 + pb, L2_OFF + 4096))
    e("s_add_u32 s44, s40, 8192\ns_addc_u32 s45, s41, 0")
    if fpos >= 0:
        e("v_and_b32 %s, 15, v1\nv_lshlrev_b32 %s, 7, %s\nv_and_b32 %s, 48, v1" % (v(cT), v(cT), v(cT), v(cU)))
        e("s_lshl_b32 s33, s31, 11\ns_add_u32 s33, s33, 0x%x\nv_add3_u32 v106, %s, %s, s33" % (G_OFF + 64, v(cT), v(cU)))
    e("s_lshr_b32 s33, s3, 1\ns_lshl_b32 s33, s33, %d\ns_and_b32 s34, s3, 1\ns_lshl_b32 s34, s34, 3\ns_add_u32 s33, s33, s34" % (4 + pb))
    e("s_add_u32 s24, s24, s33\ns_addc_u32 s25, s25, 0\nv_mov_b32 %s, %s" % (v(cO), v(c16)))
    if trim & 2:
        e("v_and_b32 %s, 48, %s\nv_lshrrev_b32 %s, 4, v1\nv_lshl_add_u32 %s, %s, 1, %s" % (v(cO), v(c16), v(cT), v(cO), v(cT), v(cO)))
    def reference(n):
        cm("progress reference: mean time of the reporters at the milestone, time per unit")
        lds_wait(F_P, "ge", 4 * n + 1, cZ, cT, sleep=4)
        if rsh == 2:
            e("s_load_dwordx16 s[4:19], s[28:29], 0x%x" % (RP_OFF + 4352 * n))
        else:
            for k in range(nrep):
                e("s_load_dword s%d, s[28:29], 0x%x" % (4 + k, RP_OFF + 4352 * n + (k << rsh)))
        e("s_memrealtime s[58:59]\ns_waitcnt lgkmcnt(0)")
        e("s_add_u32 s20, s58, s62\ns_mov_b32 s21, %d\ns_mov_b32 s22, 0" % (cb * mdel // 10))
        for k in range(nrep):
            e("s_sub_u32 s33, s20, s%d\ns_cmp_lt_u32 s33, 2048\ns_cselect_b32 s21, s33, s21\ns_add_u32 s22, s22, s21" % (4 + k))
        e("s_lshr_b32 s22, s22, %d\ns_sub_u32 s22, s58, s22\ns_mov_b32 s21, %d" % (nrep.bit_length() - 1, cb * 16 // 10))
        if n and smar >= 0:
            e("s_sub_u32 s33, s22, s23\ns_mul_i32 s33, s33, %d\ns_lshr_b32 s33, s33, 8\ns_sub_u32 s33, s33, %d" % (
                4096 // (ms[n] - ms[n - 1]), smar * 16 // 10))
            e("s_max_i32 s21, s21, s33\ns_min_i32 s21, s21, %d" % (cb * 32 // 10))
        e("s_mov_b32 s23, s22\ns_mul_i32 s33, s21, %d\ns_lshr_b32 s33, s33, 4\ns_sub_u32 s22, s22, s33" % ms[n])
        e("v_mov_b32 v104, s22\nv_mov_b32 v105, s21\nds_write_b64 %s, v[104:105] offset:%d" % (v(cZ), F_REF))

    e("s_setprio 0")
    early = [n for n in range(len(ms)) if 8 * (ms[n] + mdel) + 4 <= 288 - gtrig] if ctl else []
    for n in early:
        reference(n)
    cm("touch the lines of the group exchange, then {max, sum} of the workgroup")
    if gst:
        e("s_and_b32 s50, s32, %d\ns_lshl2_add_u32 s50, s50, 1" % ((1 << gst) - 1))
    lds_wait(F_T2, "ge", "s50" if gst else 1, cZ, cT, sleep=8)
    if pre1 == 1:
        pretouch(-1)
        e.waitvm()
        if pdirty:
            with optional("s_cmp_lg_u32 s61, 1"):
                e("v_not_b32 %s, %s" % (v(cU), v(TP)))
                e("global_store_dword %s, %s, s[36:37]" % (v(cA), v(cU)))
                e("v_add_u32 %s, 0x4000, %s\nglobal_store_dword %s, %s, s[36:37]" % (v(cT), v(cA), v(cT), v(cU)))
    lds_wait(F_B1, "eq", 4, cZ, cT, sleep=1)
    for k in range(4):
        e("ds_read_b64 %s, %s offset:%d" % (v(A0 + 2 * k, 2), v(A0 + 20), MW + 32 * k))
    e("s_waitcnt lgkmcnt(0)")
    GN = 56
    e("v_max3_f32 %s, %s, %s, %s\nv_max_f32 %s, %s, %s" % (v(GN), v(A0), v(A0 + 2), v(A0 + 4), v(GN), v(GN), v(A0 + 6)))
    for k in range(4):
        e("v_sub_f32 %s, %s, %s" % (v(A0 + 2 * k), v(A0 + 2 * k), v(GN)))
    for k in range(4):
        e("v_exp_f32 %s, %s" % (v(A0 + 2 * k), v(A0 + 2 * k)))
    e("v_mul_f32 %s, %s, %s" % (v(GN + 2), v(A0), v(A0 + 1)))
    for k in range(1, 4):
        e("v_fma_f32 %s, %s, %s, %s" % (v(GN + 2), v(A0 + 2 * k), v(A0 + 2 * k + 1), v(GN + 2)))
    e("v_mov_b32 %s, s62\nv_mov_b32 %s, s63\nv_mov_b32 %s, 1" % (v(GN + 1), v(GN + 3), v(cU)))
    e("ds_write_b32 %s, %s offset:%d\nds_write_b32 %s, %s offset:%d" % (v(A0 + 21), v(GN), ML, v(cZ), v(cU), F_ML))
    stamp()
    if be:
        cm("sum the B partials of the four waves and send them")
        lds_wait(F_DB, "eq", 4, cZ, cT, sleep=2)
        e("s_add_u32 s46, s36, 16384\ns_addc_u32 s47, s37, 0\ns_waitcnt lgkmcnt(0)")
        sumpub(DB_L, A0, c16, cA, 46, TP)
    jitter(3)
    jitter(3)
    e("s_mov_b64 exec, 0xff")
    groupstore("global_store_dwordx4 %s, %s, s[38:39]" % (v(c16), v(GN, 4)))
    e("s_mov_b64 exec, -1")
    for n in range(len(early), len(ms) if ctl else 0):
        reference(n)
    if w4 and blate:
        lds_wait(F_DB, "eq", 4, cZ, cT, sleep=2)
        e("s_add_u32 s46, s36, 16384\ns_addc_u32 s47, s37, 0\ns_waitcnt lgkmcnt(0)")
        sumpub(DB_L, 112, c16, cA, 46, TP, False)
    elif w4:
        cm("sum the B partials of the four waves and send them")
        lds_wait(F_DB, "eq", 4, cZ, cT, sleep=2)
        e("s_add_u32 s46, s36, 16384\ns_addc_u32 s47, s37, 0\ns_waitcnt lgkmcnt(0)")
        sumpub(DB_L, A0, c16, cA, 46, TP)
    if wc:
        e("v_and_b32 v110, 7, v1\nv_lshlrev_b32 v111, 2, v110\nv_lshlrev_b32 v110, 7, v110")
        e("s_lshl_b32 s34, s31, 11\ns_lshr_b32 s35, s32, 2\ns_lshl_b32 s35, s35, 4\ns_add_u32 s34, s34, s35")
        e("s_add_u32 s34, s34, 0x%x\ns_add_u32 s52, s28, s34\ns_addc_u32 s53, s29, 0\ns_mov_b64 exec, 0xffff" % G_OFF)
        lg = "global_load_dwordx4 v[112:115], v110, s[52:53] sc1\nglobal_load_dwordx4 v[116:119], v110, s[52:53] offset:1024 sc1"
        e(lg, "g")
        weights(112, 116, cT, cU, lg)
        e("ds_write_b32 v111, v112 offset:%d\nds_write_b32 v111, v116 offset:%d\ns_mov_b64 exec, -1" % (WT, WT + 32))
    e("s_setprio 3")
    if warm and warm2:
        e("s_getpc_b64 s[42:43]")
        e.label("L_pc1")
        e("s_sub_u32 s42, s42, L_pc1-L_sdone+4096\ns_subb_u32 s43, s43, 0")
        e("v_lshlrev_b32 %s, 7, v1\nv_min_u32 %s, L_end-L_sdone+4096, %s" % (v(cU), v(cU), v(cU)))
        e("global_load_dword %s, %s, s[42:43]" % (v(A0 + 44), v(cU)))
    e("s_waitcnt lgkmcnt(0)\ns_barrier")
    if w4 and blate:
        groupstore("global_store_dwordx4 %s, %s, s[46:47]" % (v(cA), v(112, 4)))
    cm("sum the A partials of the four waves and send them")
    sumpub(DA_L, A0, c16, cA, 36, TP)
    if pfirst:
        e("s_barrier")
    stamp()
    e("s_cmp_ge_u32 s3, %d\ns_cbranch_scc1 L_cdone" % NF)
    cm("level 2 (workgroups 0..71): 16 output columns = sum over 128 row slices")
    F0 = 128
    if fpos >= 0:
        NL, J = e.newlabel("nl"), e.newlabel("fj")
        e("s_cmp_lg_u32 s61, 1\ns_cbranch_scc1 %s" % NL)
        lds_wait(F_T3, "ge", 1, cZ, cT)
        L = e.newlabel("fp")
        e("s_mov_b32 s35, 64\ns_mov_b32 exec_hi, 0xffff")
        e.label(L)
        e("global_load_dwordx2 v[108:109], v106, s[28:29] sc1\ns_waitcnt vmcnt(0)")
        e("v_xor_b32 v108, s62, v108\nv_bitop3_b32 v108, v108, v109, s63 bitop3:0xf6\nv_cmp_ne_u32 vcc, 0, v108")
        e("s_cbranch_vccz %s\ns_sub_u32 s35, s35, 1\ns_cbranch_scc0 %s\ns_branch %s" % (J, L, J))
        e.label(NL)
        lds_wait(F_T3, "ge", 6, cZ, cT)
        e.label(J)
        e("s_mov_b64 exec, -1")
        e.vm = []
    elif fdel:
        lds_wait(F_T3, "ge", fdel + w4, cZ, cT)
    if fsl:
        e("s_sleep %d" % fsl)
    L, D = e.newlabel("l2"), e.newlabel("l2d")
    e("s_mov_b32 s35, %d" % SPIN)
    e.label(L)
    NL2 = 2 << pb
    for k in range(NL2):
        e("global_load_dwordx4 %s, %s, s[%d:%d] offset:%d %s" % (v(F0 + 4 * k, 4), v(c16), 40 + k // 8 * 4, 41 + k // 8 * 4, 1024 * (k % 8) - 4096, l2lf))
    for k in range(NL2):
        x = F0 + 4 * k
        e("s_waitcnt vmcnt(%d)" % (NL2 - 1 - k))
        for r in range(4):
            e("v_xor_b32 %s, %s, %s" % (v(x + r), v(x + r), v(TG + r)))
        if k == 0:
            e("v_or_b32 %s, %s, %s\nv_or_b32 %s, %s, %s" % (v(cT), v(x), v(x + 1), v(cU), v(x + 2), v(x + 3)))
        else:
            e("v_or3_b32 %s, %s, %s, %s\nv_or3_b32 %s, %s, %s, %s" % (v(cT), v(cT), v(x), v(x + 1), v(cU), v(cU), v(x + 2), v(x + 3)))
            if trim & 1:
                for r in (0, 2):
                    e("v_pk_add_f32 %s, %s, %s" % (v(F0 + r, 2), v(F0 + r, 2), v(x + r, 2)))
            else:
                for r in range(4):
                    e("v_add_f32 %s, %s, %s" % (v(F0 + r), v(F0 + r), v(x + r)))
    e.vm = []
    e("v_or_b32 %s, %s, %s\nv_and_b32 %s, 0xff, %s\nv_cmp_ne_u32 vcc, 0, %s" % (v(cT), v(cT), v(cU), v(cT), v(cT), v(cT)))
    e("s_cbranch_vccz %s\ns_sub_u32 s35, s35, 1\ns_cbranch_scc0 %s" % (D, L))
    e.label(D)
    e.hist = []
    stamp()
    rr = [F0, F0 + 1, F0 + 2, F0 + 3]
    if trim & 2:
        e("v_permlane32_swap_b32 %s, %s\nv_permlane32_swap_b32 %s, %s" % (v(F0), v(F0 + 2), v(F0 + 1), v(F0 + 3)))
        e("v_pk_add_f32 %s, %s, %s" % (v(F0, 2), v(F0, 2), v(F0 + 2, 2)))
        e("v_permlane16_swap_b32 %s, %s\nv_add_f32 %s, %s, %s" % (v(F0), v(F0 + 1), v(F0), v(F0), v(F0 + 1)))
        dppred("v_add_f32", [F0], ["row_ror:4", "row_ror:8"])
        e("v_cvt_pk_bf16_f32 %s, %s, %s\ns_mov_b32 exec_lo, 0x000f000f\ns_mov_b32 exec_hi, 0x000f000f" % (v(A0), v(F0), v(F0)))
        e("global_store_short %s, %s, s[24:25] %s" % (v(cO), v(A0), outf))
    else:
        dppred("v_add_f32", rr, ["row_ror:%d" % (1 << k) for k in range(pb, 4)])
        xrow("v_add_f32", rr, [F0 + 4, F0 + 5, F0 + 6, F0 + 7])
        e("v_cvt_pk_bf16_f32 %s, %s, %s\nv_cvt_pk_bf16_f32 %s, %s, %s" % (v(A0), v(F0), v(F0 + 1), v(A0 + 1), v(F0 + 2), v(F0 + 3)))
        e("s_mov_b64 exec, %d\nglobal_store_dwordx2 %s, %s, s[24:25] %s" % ((1 << (1 << pb)) - 1, v(cO), v(A0, 2), outf))
    e.label("L_cdone")
    stamp()
    write_stamps(cT, "c")
    e.label("L_end")
    e("s_endpgm")
    e.raw('.section .rodata,"a"\n.p2align 6\n.amdhsa_kernel %s' % KN)
    e.raw("  .amdhsa_next_free_vgpr %d\n  .amdhsa_next_free_sgpr 102\n  .amdhsa_accum_offset %d" % (NV, (NV + 3) // 4 * 4))
    e.raw("  .amdhsa_group_segment_fixed_size 0\n  .amdhsa_kernarg_size 104\n  .amdhsa_user_sgpr_count 2")
    e.raw("  .amdhsa_user_sgpr_kernarg_segment_ptr 1\n  .amdhsa_system_sgpr_workgroup_id_x 1")
    e.raw("  .amdhsa_float_denorm_mode_32 3\n.end_amdhsa_kernel")
    txt = e.text()
    if nocomp:
        txt = "\n".join(l for l in txt.split("\n") if not l.strip().startswith(("v_mfma", "v_perm_b32", "v_add_f32_dpp", "v_mov_b32_dpp", "s_nop", "v_exp", "v_fma"))) + "\n"
    return txt


if __name__ == "__main__":
    for spec in sys.argv[1:]:
        name, _, kv = spec.partition(":")
        kw = {}
        for p in kv.split(","):
            if not p:
                continue
            k, val = p.split("=")
            val = val.replace("+", " ")
            kw[k] = int(val) if val.lstrip("-").isdigit() else ("" if val == "none" else val)
        path = name if "/" in name else "work/%s.s" % name
        open(path, "w").write(gen(**kw))
```

```python
import sys, struct, math, contextlib
sys.path.insert(0, "work")
from asmlib import Em

KN = "concat_heads__gqa_block_cached__sliding_block_cached__decode_kernel"
HDR = open("concat_heads__gqa_block_cached__sliding_block_cached__decode.s.ref").read().split("; Override launch")[0]

Q_OFF, G_OFF, X_OFF, RP_OFF, L1_OFF, L2_OFF = 0x0, 0x10000, 0x20000, 0x24000, 0x40000, 0xC0000
STAMP_OFF = 0x10000000
QP, QB, FL, ML, MW, DA_L, DB_L, W8_L, LDS_SZ = 0, 2048, 3072, 3328, 3392, 4096, 8192, 12288, 16384
WT = 3584
F_QP, F_Q, F_T1, F_T2, F_B1, F_ML, F_N0, F_N1, F_T3, F_LOC, F_REF, F_SLP, F_P, F_DB = [FL + 4 * i for i in range(14)]
AMAPS = {
    0: ([13, 15, 11, 16, 19, 22, 10, 20, 14, 18, 21, 17, 12], [0, 0, 0, 0, 1, 128, 64], [8, 0, 0, 0]),
    1: ([21, 15, 11, 16, 19, 10, 22, 20, 14, 18, 17, 12, 13], [0, 0, 0, 0, 1, 128, 64], [8, 0, 0, 1]),
    2: ([21, 10, 22, 19, 15, 13, 17, 11, 12, 18, 14, 16, 20], [32, 128, 0, 8, 64, 1, 0], [0, 0, 0, 0]),
    3: ([21, 10, 16, 22, 19, 17, 20, 14, 12, 13, 15, 18, 11], [128, 16, 0, 32, 0, 0, 32], [0, 4, 4, 1]),
    4: ([13, 14, 16, 22, 19, 17, 20, 10, 12, 21, 11, 18, 15], [8, 0, 0, 0, 256, 0, 8], [8, 4, 0, 0]),
    5: ([21, 17, 22, 16, 19, 10, 12, 14, 20, 18, 15, 13, 11], [0, 0, 16, 0, 0, 0, 4], [1, 1, 0, 1]),
    6: ([13, 11, 16, 22, 19, 17, 14, 12, 10, 21, 20, 18, 15], [0, 0, 0, 0, 0, 0, 1], [1, 0, 0, 2]),
    7: ([13, 14, 12, 16, 20, 22, 10, 19, 15, 11, 21, 18, 17], [0, 256, 8, 0, 1, 128, 0], [1, 0, 2, 8]),
    8: ([10, 12, 19, 15, 13, 21, 22, 16, 17, 11, 18, 14, 20], [2, 256, 0, 64, 2, 64, 64], [0, 0, 0, 4]),
    9: ([10, 12, 19, 15, 17, 22, 21, 16, 13, 20, 18, 14, 11], [128, 0, 0, 0, 256, 64, 128], [0, 4, 4, 0]),
    10: ([17, 15, 13, 19, 22, 10, 14, 21, 16, 20, 18, 11, 12], [512, 0, 0, 8, 64, 0, 256], [0, 8, 1, 2]),
    11: ([21, 14, 18, 22, 19, 17, 12, 11, 20, 13, 10, 16, 15], [0, 0, 8, 0, 1, 0, 8], [0, 4, 4, 4]),
    12: ([13, 14, 20, 15, 19, 22, 10, 12, 16, 11, 18, 21, 17], [0, 64, 8, 256, 1, 128, 0], [0, 0, 0, 0]),
    13: ([17, 21, 19, 16, 22, 10, 14, 13, 15, 20, 12, 11, 18], [0, 4, 0, 8, 64, 16, 256], [0, 2, 0, 1]),
    14: ([13, 10, 20, 16, 19, 14, 22, 12, 15, 11, 21, 18, 17], [0, 64, 0, 0, 1, 16, 0], [0, 4, 0, 0]),
}
BMAPS = {
    0: ([13, 11, 18, 12, 19, 14, 16, 15, 10, 17], [4, 16, 0, 1], [1, 0, 0, 0]),
    1: ([13, 11, 18, 19, 12, 17, 14, 16, 15, 10], [2, 16, 0, 1], [0, 0, 0, 0]),
    2: ([13, 12, 17, 19, 18, 10, 14, 16, 15, 11], [512, 16, 0, 1], [0, 0, 0, 0]),
}


def conv(perm, scr, rm):
    nt = len(scr)
    B, H = [256, 512] + [1 << b for b in perm], [0] * 4
    for i in range(nt):
        for j in range(10):
            if scr[i] >> j & 1:
                if j < 6:
                    B[2 + nt + j] ^= 1 << perm[i]
                else:
                    H[j - 6] ^= 1 << perm[i]
    for i in range(4):
        for k in range(4):
            if rm[i] >> k & 1:
                H[k] ^= B[4 + nt + i]
    return B, H


def bits(B, H):
    f = lambda l: [sum(1 << b for b in x) for x in l]
    return f(B), f(H)


def rank(vs):
    vs, r = list(vs), 0
    for b in range(8, 23):
        p = [i for i, x in enumerate(vs) if x >> b & 1]
        if p:
            r += 1
            q = vs.pop(p[0])
            vs = [x ^ q if x >> b & 1 else x for x in vs]
    return r


AMAPS = {k: conv(*x) for k, x in AMAPS.items()}
BMAPS = {k: conv(*x) for k, x in BMAPS.items()}
AMAPS[20] = bits([[8], [9], [8, 15, 16, 20], [13], [10, 12, 14], [16, 22], [19], [15, 17, 20], [14, 19], [8, 12, 17], [20], [11], [8, 14, 18], [21], [8, 9, 16]],
                 [[10, 13, 17, 18, 20, 21], [9], [8, 21], [8, 11]])
AMAPS[21] = bits([[12, 19], [8], [16], [13], [9, 20], [22], [19, 20], [14, 19], [10], [8, 15, 17], [9], [11], [16, 21], [14, 18], [17]],
                 [[10, 14], [22], [19, 21], [8, 9]])
CSC = struct.unpack("<I", struct.pack("<f", 128 ** -0.5 * math.log2(math.e)))[0]
SPIN = 1 << 19
MF = "v_mfma_f32_16x16x32_bf16"


DOC = r"""; ---------------------------------------------------------------------------------------------------------------------
;
; Arithmetic.  All products run on v_mfma_f32_16x16x32_bf16 with the data in the layout the coalesced load leaves:
;   P.V, x.wq, o.wo: the other operand is one-hot (one bf16 per lane, placed with v_perm_b32).
;   Stores are write-through (sc1); inside a group they stay in the L2 only when every member reported the same XCD.
; ---------------------------------------------------------------------------------------------------------------------"""


def v(a, n=1):
    return "v%d" % a if n == 1 else "v[%d:%d]" % (a, a + n - 1)


def gen(stamps=0, kvflags="nt", wflags="nt", warm=1, touch=0, W="5", L="4568", W0=5, Wc=5, boost=1, wqw=6,
        raw=0, fine=0, enc="", amap=14, bmap=2, hs="lo", qtrig=16, gtrig=80, gld=40, okeep=2, pre1=1, nsl=0, Wend=0, nend=0,
        ctl=2, cb=1063, t0=-24, t1=26, t2=75, mlist="5.9.15.21.28", mdel=2, l1f="auto", fdel=3, fack=1, outf="", order=2, xpos=2, pst=0, wl=10, olast=0, Wwo=7, fsl=0, l1c=1, stouch=0, pb=2, rsh=8, rf="sc1", nrep=8, swapt=0, smar=20, LP="", npump=0, rt=0, l1lf="sc1", l1sf="", noq=0, warm2=0, wob=0, wthr="", wearly=0, LW="", qsf="sc1", qlf="sc1", spre=0, qpre=0, swarm=0, fpos=-1, npoll=1, rcor=0, lcor=0, jit=0, nocomp=0, w4=0, g8a=12, g8d=3, wcap=99, tu=99, u0=-12, u1=14, u2=45, dbl=99, cpr=3, csl=0, trim=7, dg=0, pdirty=0, wskip=0, pfirst=0, wf=0, blate=0, gst=0, gsd=4, be=0, scp=22, wc=1, hb=0, sb=1, pend=0, qb=0, ot=0, otf="", p2=0, fb=0, tpr=0, wb=0, wbn=240, ssp=0):
    if wf:
        w4, g8a = 1, -2
    NF = 288 >> pb
    W = str(W)
    LV0 = [int(c, 16) for c in str(L)]
    if ctl:
        W = "%x" % LV0[3]
    ms = [int(x) for x in str(mlist).split(".")]
    sl1 = sl2 = l2pad = 0
    l2q = 1
    l2sf = l2lf = "sc1"
    e = Em()
    e.raw(HDR.rstrip())
    e.raw("; @launch grid=(256,1,1) block=(320,1,1) lds=%d" % (LDS_SZ if wf else W8_L))
    e.raw(DOC)
    e.raw('.amdgcn_target "amdgcn-amd-amdhsa--gfx950"')
    e.raw(".text\n.globl %s\n.p2align 8\n.type %s,@function\n%s:" % (KN, KN, KN))
    nst = [0]
    cm = lambda t: e.raw("; " + t)

    def stamp(p=0):
        if stamps and (p <= pst) and not (pst and nst[0] >= 11):
            assert nst[0] < 12
            e("s_memrealtime s[%d:%d]" % (70 + 2 * nst[0], 71 + 2 * nst[0]))
            nst[0] += 1

    def write_stamps(vt, role):
        if not stamps:
            return
        if enc:
            e("s_waitcnt lgkmcnt(0)\ns_mov_b64 exec, 1\nv_mov_b32 %s, 0" % v(vt))
            if role == "c":
                e("s_sleep 127\ns_sleep 127")
                e("s_not_b32 s33, s70\nv_mov_b32 %s, s33\nglobal_atomic_umax %s, %s, s[26:27] offset:128" % (v(vt + 1), v(vt), v(vt + 1)))
            if enc[0] == role:
                idx = int(enc[1:-1])
                e("s_mov_b32 s33, s%d" % (70 + 2 * idx))
                if enc[-1] == "n":
                    e("s_not_b32 s33, s33")
                skip = e.newlabel("sk")
                if role == "s" and idx == 9:
                    e("s_cmp_eq_u32 s30, 3\ns_cbranch_scc1 %s" % skip)
                if role == "c" and idx == 6:
                    e("s_cmp_ge_u32 s3, 72\ns_cbranch_scc1 %s" % skip)
                if role == "s":
                    e("s_sleep 127\ns_sleep 127")
                e("v_mov_b32 %s, s33\nglobal_atomic_umax %s, %s, s[26:27] offset:192" % (v(vt + 1), v(vt), v(vt + 1)))
                e.label(skip)
            if role == "c":
                L1, L2, D = e.newlabel("e1"), e.newlabel("e2"), e.newlabel("ed")
                e("s_cmp_lg_u32 s2, 0\ns_cbranch_scc1 %s" % D)
                e.label(L1)
                e("s_sleep 8\ns_memrealtime s[60:61]\ns_waitcnt lgkmcnt(0)\ns_sub_u32 s33, s60, s70\ns_cmp_lt_u32 s33, 19000\ns_cbranch_scc1 %s" % L1)
                e("s_load_dword s62, s[26:27], 128 glc\ns_load_dword s63, s[26:27], 192 glc\ns_waitcnt lgkmcnt(0)")
                e("s_not_b32 s62, s62")
                if enc[-1] == "n":
                    e("s_not_b32 s63, s63")
                e("s_sub_u32 s63, s63, s62")
                if enc == "z":
                    e("s_mov_b32 s63, 0")
                e("s_min_u32 s63, s63, 20000\ns_lshl_b32 s63, s63, 2\ns_add_u32 s63, s63, 20000")
                e.label(L2)
                e("s_memrealtime s[60:61]\ns_waitcnt lgkmcnt(0)\ns_sub_u32 s33, s60, s62\ns_cmp_lt_u32 s33, s63\ns_cbranch_scc1 %s" % L2)
                e.label(D)
            return
        e("s_waitcnt lgkmcnt(0)")
        e("s_mul_i32 s33, s3, 6\ns_add_u32 s33, s33, s30\ns_lshl_b32 s33, s33, 6\ns_add_u32 s33, s33, 0x%x" % STAMP_OFF)
        e("s_mov_b64 exec, 1\nv_mov_b32 %s, s33" % v(vt))
        for i in range(16):
            e("v_mov_b32 %s, s%d" % (v(vt + 1), 70 + 2 * min(i, nst[0] - 1)))
            e("global_store_dword %s, %s, s[28:29] offset:%d" % (v(vt), v(vt + 1), 4 * i))

    def jitter(k):
        if jit >> k & 1:
            L = e.newlabel("jt")
            e("s_memtime s[100:101]\ns_waitcnt lgkmcnt(0)\ns_mul_i32 s100, s100, 0x9e3779b1\ns_lshr_b32 s100, s100, 27")
            e.label(L)
            e("s_sleep 16\ns_sub_u32 s100, s100, 1\ns_cbranch_scc0 %s" % L)

    def lds_wait(flag, cmp, val, vz, vt, sleep=0):
        if raw:
            return
        L, D = e.newlabel("lw"), e.newlabel("lwd")
        e("s_mov_b32 s35, %d" % (SPIN * 16))
        e.label(L)
        e("ds_read_b32 %s, %s offset:%d\ns_waitcnt lgkmcnt(0)\nv_readfirstlane_b32 s34, %s" % (v(vt), v(vz), flag, v(vt)))
        e("s_cmp_%s_u32 s34, %s\ns_cbranch_scc1 %s" % (cmp, val, D))
        if sleep:
            e("s_sleep %d" % sleep)
        e("s_sub_u32 s35, s35, 1\ns_cbranch_scc0 %s" % L)
        e.label(D)

    @contextlib.contextmanager
    def optional(skipcmp):
        J = e.newlabel("opt")
        e("%s\ns_cbranch_scc1 %s" % (skipcmp, J))
        hist, vm = list(e.hist), list(e.vm)
        yield
        e("s_nop 1")
        e.label(J)
        e.hist, e.vm = hist, vm

    def xrow(op, r, t):
        for sw in ("v_permlane16_swap_b32", "v_permlane32_swap_b32"):
            for a, b in zip(r, t):
                e("v_mov_b32 %s, %s" % (v(b), v(a)))
            for a, b in zip(r, t):
                e("%s %s, %s" % (sw, v(a), v(b)))
            for a, b in zip(r, t):
                e("%s %s, %s, %s" % (op, v(a), v(a), v(b)))

    def dppred(op, r, pats):
        for p in pats:
            for a in r:
                e("%s_dpp %s, %s, %s %s row_mask:0xf bank_mask:0xf" % (op, v(a), v(a), v(a), p))

    def tagsel():
        for r in range(4):
            e("s_mov_b32 s%d, 0x%08x" % (64 + r, 0x07060500 + r))

    def tagreg(dst, bit, tmp, put=None, chk=None):
        e("v_and_b32 %s, %d, v1\nv_cmp_ne_u32 vcc, 0, %s\nv_mov_b32 %s, s62\nv_mov_b32 %s, s63" % (v(tmp), bit, v(tmp), v(dst), v(tmp)))
        e("v_cndmask_b32 %s, %s, %s, vcc" % (v(dst), v(dst), v(tmp)))
        if chk is not None:
            for r in (3, 2, 1, 0):
                e("v_bfe_u32 %s, %s, %d, 8" % (v(chk + r), v(dst), 8 * r))

    def tagput(x, t):
        for r in range(4):
            e("v_perm_b32 %s, %s, %s, s%d" % (v(x + r), v(x + r), v(t), 64 + r))

    def tagcheck(regs, t, a0, a1):
        for k, x in enumerate(regs):
            for r in range(4):
                e("v_xor_b32 %s, %s, %s" % (v(x + r), v(x + r), v(t + r)))
            if k == 0:
                e("v_or_b32 %s, %s, %s\nv_or_b32 %s, %s, %s" % (v(a0), v(x), v(x + 1), v(a1), v(x + 2), v(x + 3)))
            else:
                e("v_or3_b32 %s, %s, %s, %s\nv_or3_b32 %s, %s, %s, %s" % (v(a0), v(a0), v(x), v(x + 1), v(a1), v(a1), v(x + 2), v(x + 3)))
        e("v_or_b32 %s, %s, %s\nv_and_b32 %s, 0xff, %s\nv_cmp_ne_u32 vcc, 0, %s" % (v(a0), v(a0), v(a1), v(a0), v(a0), v(a0)))

    def groupstore(txt):
        if l1f != "auto":
            e(txt + " " + l1f)
            return
        A, J = e.newlabel("gs"), e.newlabel("gsj")
        e("s_cmp_eq_u32 s61, 1\ns_cbranch_scc1 %s\n%s sc1\ns_branch %s" % (A, txt, J))
        e.label(A)
        e(txt + " " + l1sf)
        e.label(J)

    def l1_out_addr(dst, t0, t1, sb, pr, tg):
        if l1c:
            e("v_lshlrev_b32 %s, 8, v1" % v(dst))
            e("s_lshl_b32 s33, s31, 15\ns_lshl_b32 s34, s32, 4\ns_add_u32 s33, s33, s34\ns_add_u32 s33, s33, 0x%x" % (L1_OFF + 16384 * pr))
            e("s_add_u32 s%d, s28, s33\ns_addc_u32 s%d, s29, 0" % (sb, sb + 1))
            e("s_bitcmp1_b32 s32, 0\ns_cselect_b32 s33, s63, s62\nv_mov_b32 %s, s33" % v(tg))
            return
        e("v_lshrrev_b32 %s, 3, v1\nv_lshlrev_b32 %s, 11, %s\nv_and_b32 %s, 7, v1\nv_lshl_add_u32 %s, %s, 4, %s" % (
            v(t0), v(t0), v(t0), v(t1), v(dst), v(t1), v(t0)))
        e("s_lshl_b32 s33, s31, 15\ns_lshl_b32 s34, s32, 7\ns_add_u32 s33, s33, s34\ns_add_u32 s33, s33, 0x%x" % (L1_OFF + 16384 * pr))
        e("s_add_u32 s%d, s28, s33\ns_addc_u32 s%d, s29, 0" % (sb, sb + 1))

    def sumpub(lds, a0, l16, adr, sb, t, send=True):
        for k in range(4):
            e("ds_read_b128 %s, %s offset:%d" % (v(a0 + 4 * k, 4), v(l16), lds + 1024 * k))
        e("s_waitcnt lgkmcnt(2)" if not stamps else "s_waitcnt lgkmcnt(0)")
        for k in range(4):
            e("v_add_f32 %s, %s, %s" % (v(a0 + k), v(a0 + k), v(a0 + 4 + k)))
        e("s_waitcnt lgkmcnt(0)")
        for k in range(4):
            e("v_add_f32 %s, %s, %s" % (v(a0 + 8 + k), v(a0 + 8 + k), v(a0 + 12 + k)))
        for k in range(4):
            e("v_add_f32 %s, %s, %s" % (v(a0 + k), v(a0 + k), v(a0 + 8 + k)))
        tagput(a0, t)
        jitter(1)
        if not send:
            return
        groupstore("global_store_dwordx4 %s, %s, s[%d:%d]" % (v(adr), v(a0, 4), sb, sb + 1))

    e("s_load_dwordx16 s[4:19], s[0:1], 0\ns_load_dwordx8 s[20:27], s[0:1], 64\ns_load_dwordx2 s[28:29], s[0:1], 96")
    stamp()
    cm("s30 = wave, s31 = kv head, s32 = split; later s3 = workgroup id, s2 = head*16 + split")
    e("v_readfirstlane_b32 s30, v0\nv_and_b32 v1, 63, v0\ns_and_b32 s31, s2, 15\ns_lshr_b32 s32, s2, 4")
    e("s_cmp_ge_u32 s32, 16\ns_cbranch_scc1 L_end")
    e("s_lshr_b32 s30, s30, 6\ns_cmp_eq_u32 s30, 4\ns_cbranch_scc1 L_comm")
    ids = "s_mov_b32 s3, s2\ns_lshl_b32 s2, s31, 4\ns_or_b32 s2, s2, s32"
    base_st = nst[0]

    def wavebase(dst, cfg, const):
        B, H = cfg
        assert rank(B) == len(B) and max(B + H) < 1 << (8 + len(B))
        masks = {b: sum(((x >> b) & 1) << j for j, x in enumerate(B[-6:] + H)) for b in range(8, 23)}
        e("s_lshl_b32 s%d, s31, 23" % dst)
        if const:
            e("s_or_b32 s%d, s%d, 0x%x" % (dst, dst, const))
        for b, m in sorted(masks.items()):
            if m == 0:
                continue
            if m & (m - 1) == 0:
                e("s_bfe_u32 s33, s41, 0x%x" % (0x10000 + m.bit_length() - 1))
            else:
                e("s_and_b32 s33, s41, 0x%x\ns_bcnt1_i32_b32 s33, s33\ns_and_b32 s33, s33, 1" % m)
            e("s_lshl_b32 s33, s33, %d\ns_or_b32 s%d, s%d, s33" % (b, dst, dst))

    def tmap(cfg, n):
        r = 0
        for i, x in enumerate(cfg[0][2:-6]):
            r ^= x if n >> i & 1 else 0
        return r

    vZ, vKO, vVO, vT0, vT1, vT2, vT3 = 2, 3, 4, 5, 6, 7, 8
    vMR, vLR, vMB, vLB, vPB, vFA, vDL, vFT = 9, 10, 11, 12, 13, 14, 15, 16
    vM0, vAD, vWO, vRF, vNX = 17, 18, 19, 252, 254
    SLO, SHI = 20, 24
    QB0, QB1 = 28, 32
    DA0, DBc = 36, 40
    GR, PI0, PI1 = 44, 48, 52
    DA1 = PI0
    BC = 56
    DQ, TT, SS = 64, 80, 84
    OP = 92
    RING = 124
    NV = 255
    slot = lambda i: RING + 32 * (i if i < 4 else i % 2)
    WO = slot(2)
    K0, NW = (24, 9) if wf else (32, 0)
    if wf:
        slot = lambda i: OP if i == 2 else RING + 32 * (i if i < 2 else (i + 1) % 2)

    cm("==== streaming waves.  q projection: 72 rows x 64 columns of wq per wave")
    e("s_and_b32 s33, s32, 4\ns_add_u32 s33, s33, s30\ns_mulk_i32 s33, 72")
    e("v_lshrrev_b32 %s, 4, v1\nv_mad_u32_u24 %s, %s, 18, s33\nv_bfe_u32 %s, v1, 3, 1\nv_add_u32 %s, %s, %s" % (
        v(vT3), v(vT3), v(vT3), v(vT0), v(vT0), v(vT0), v(vT3)))
    e("s_and_b32 s34, s32, 3\ns_lshl2_add_u32 s34, s31, s34\ns_lshl_b32 s34, s34, 7")
    e("v_and_b32 %s, 7, v1\nv_lshlrev_b32 %s, 4, %s\nv_add_u32 %s, s34, %s" % (v(vT1), v(vT1), v(vT1), v(vT2), v(vT1)))
    e("v_lshl_add_u32 %s, %s, 13, %s" % (v(vFA), v(vT0), v(vT2)))
    e("s_bitset0_b32 s32, 31\ns_movk_i32 s35, 0x4000\ns_cmp_ge_u32 s32, 8".split("\n", 1)[1])
    e("s_waitcnt lgkmcnt(0)")
    e("s_cselect_b64 s[36:37], s[20:21], s[10:11]")
    stamp(1)
    WQ = RING if wf else slot(2)
    XR = WQ + 40

    def ldwq(t):
        e("global_load_dwordx4 %s, %s, s[36:37] %s" % (v(WQ + 4 * t, 4), v(vFA), wflags), "wq%d" % t)
        if t < 8:
            e("v_add_u32 %s, %s, %s" % (v(vFA), "s35" if t < wqw else "0x4000", v(vFA)))

    for t in range(wqw):
        ldwq(t)
        if t == 0 and ssp & 1:
            e("s_cselect_b64 s[38:39], s[14:15], s[4:5]\ns_load_dword s46, s[38:39], 0")
        if t == xpos:
            e("s_cselect_b64 s[38:39], s[14:15], s[4:5]\nv_lshlrev_b32 %s, 1, %s" % (v(vT3), v(vT3)))
            for k in range(3):
                e("global_load_dwordx3 %s, %s, s[38:39] offset:%d" % (v(XR + 4 * k, 3), v(vT3), 12 * k), "x")
    e("s_cselect_b64 s[10:11], s[22:23], s[12:13]")
    if stouch:
        e("s_lshl2_add_u32 s33, s31, s30\ns_lshl_b32 s33, s33, 21\nv_mov_b32 %s, s33\ns_mov_b64 exec, 1" % v(vT2))
        e("global_load_dword %s, %s, s[6:7] nt\ns_mov_b64 exec, -1" % (v(GR), v(vT2)), "t")
    if ssp & 2:
        e("s_lshl2_add_u32 s33, s31, s30\ns_lshl_b32 s33, s33, 21\ns_load_dword s46, s[6:7], s33")
    if ssp & 4:
        e("s_load_dword s46, s[8:9], s33\ns_or_b32 s33, s33, 0x600000\ns_load_dword s46, s[16:17], s33\ns_load_dword s46, s[18:19], s33")
    e(ids)
    if swapt:
        e("s_bitcmp1_b32 s31, %d" % (swapt - 1))
        e("s_cselect_b64 s[46:47], s[16:17], s[6:7]\ns_cselect_b64 s[16:17], s[6:7], s[16:17]\ns_mov_b64 s[6:7], s[46:47]")
        e("s_cselect_b64 s[46:47], s[18:19], s[8:9]\ns_cselect_b64 s[18:19], s[8:9], s[18:19]\ns_mov_b64 s[8:9], s[46:47]")
    stamp(1)
    cm("lane offsets inside a 1 KiB load (K: 64-byte quads, V: linear) and the address map of problem A")
    e("v_lshlrev_b32 %s, 4, v1" % v(vVO))
    e("v_lshrrev_b32 %s, 4, v1\nv_lshlrev_b32 %s, 6, %s" % (v(vKO), v(vKO), v(vKO)))
    e("v_and_b32 %s, 3, v1\nv_lshl_add_u32 %s, %s, 4, %s" % (v(vT3), v(vKO), v(vT3), v(vKO)))
    e("s_lshl_b32 s41, s2, 2\ns_or_b32 s41, s41, s30")
    if rt:
        e("s_mov_b64 s[46:47], s[16:17]\ns_mov_b64 s[48:49], s[18:19]\ns_lshl_b32 s33, s3, 2\ns_or_b32 s33, s33, s30\ns_lshl_b32 s33, s33, 3")
        e("s_add_u32 s4, s28, 0x180000\ns_addc_u32 s5, s29, 0\ns_load_dwordx16 s[12:27], s[4:5], 0x2000\ns_load_dwordx2 s[44:45], s[4:5], s33\ns_load_dwordx2 s[94:95], s[4:5], 0x2040\ns_waitcnt lgkmcnt(0)")
        e("s_and_b32 s44, s44, 0x7ffff00\ns_and_b32 s45, s45, 0x7ffff00")
        e("s_and_b32 s26, s26, 0x7fff00\ns_and_b32 s27, s27, 0x7fff00\ns_and_b32 s94, s94, 0xfff00\ns_and_b32 s95, s95, 0xfff00")
        for k in range(11):
            e("s_and_b32 s%d, s%d, 0x%x" % (12 + k, 12 + k, 0x7fff00 if k < 7 else 0xfff00))
    else:
        wavebase(45, AMAPS[amap], 0)

    def segstart(dst, kind):
        lb = (AMAPS[amap] if kind[0] == "A" else BMAPS[bmap])[0][:2]
        lb = ["0x%x" % x for x in lb] if not rt else (["s26", "s27"] if kind[0] == "A" else ["s94", "s95"])
        if kind[1] == "K":
            e("v_xor_b32 %s, s%d, %s" % (v(dst), 45 if kind[0] == "A" else 44, v(vKO)))
        else:
            e("v_and_b32 %s, 0xf0, %s\nv_xor_b32 %s, s%d, %s" % (v(dst), v(vVO), v(dst), 45 if kind[0] == "A" else 44, v(dst)))
        for k in range(2):
            e("v_bfe_i32 %s, v1, %d, 1\nv_and_b32 %s, %s, %s\nv_xor_b32 %s, %s, %s" % (
                v(vT2), (2 if kind[1] == "K" else 4) + k, v(vT2), lb[k], v(vT2), v(dst), v(dst), v(vT2)))

    segstart(vAD, "AK")
    AK, AV = [("AK", u) for u in range(16)], [("AV", u) for u in range(16)]
    BB = [("BK", 0), ("BK", 1), ("BV", 0), ("BV", 1)]
    seq = AK + AV + BB if order == 1 else AK + BB + AV
    pos = {x: i for i, x in enumerate(seq)}
    breg = {"BK": 16, "BV": 18, "AK": 6, "AV": 8}
    if rt:
        breg.update(BK=46, BV=48)
    fdone = set()
    nxt = [None]
    NG = 2 if w4 else 3
    wok = lambda k: (k % NG) * 4 + k // NG
    NKV = 8 * len(seq)
    NLD = NKV if wf else NKV + 4 * NG
    st = {"next": -NW, "free": 0 if wf else 16, "landed": -1}

    def fstamp(n):
        if n % 2 == 1 and n // 2 + 1 < 64 and n not in fdone:
            fdone.add(n)
            e("s_memrealtime s[68:69]\ns_waitcnt lgkmcnt(0)\nv_writelane_b32 %s, s68, %d" % (v(vFT), n // 2 + 1))

    def issue_upto(n):
        n = min(n, st["free"], NLD)
        inwo = False
        while st["next"] < n:
            q = st["next"]
            i, j = q // 8, q % 8
            if q == -1:
                e("global_load_dwordx4 %s, %s, s[14:15] %s" % (v(WO + 32, 4), v(vWO), wflags), "u%d" % q)
            elif 0 <= i < len(seq):
                kind, u = seq[i]
                b = breg[kind]
                a = vAD
                cfg, nn, last = (AMAPS[amap], 8 * u + j, 127) if kind[0] == "A" else (BMAPS[bmap], 8 * u + j, 15)
                e("global_load_dwordx4 %s, %s, s[%d:%d] %s" % (v(slot(i) + 4 * j, 4), v(a), b, b + 1, kvflags), "u%d" % q)
                if nn < last and rt:
                    e("v_xor_b32 %s, s%d, %s" % (v(a), (12 if kind[0] == "A" else 19) + ((nn + 1) & -(nn + 1)).bit_length() - 1, v(a)))
                elif nn < last:
                    e("v_xor_b32 %s, 0x%x, %s" % (v(a), tmap(cfg, nn) ^ tmap(cfg, nn + 1), v(a)))
                elif i + 1 < len(seq):
                    assert nxt == [seq[i + 1][0]]
                    e("v_mov_b32 %s, %s" % (v(a), v(vNX)))
            else:
                k = q + NW if q < 0 else q - NKV
                if not inwo and not w4:
                    e("s_mov_b64 exec, s[50:51]")
                    inwo = True
                if k >= 12 - wskip:
                    e("s_mov_b64 exec, 1")
                k = wok(k)
                e("global_load_dwordx4 %s, %s, s[10:11] offset:%d %s" % (v(WO + 4 * k, 4), v(vWO), (k % 4) * 1152 + (k // 4) * 128, wflags), "u%d" % q)
            st["next"] += 1
        if inwo:
            e("s_mov_b64 exec, -1")

    thr = [t1]

    def setflags():
        e("s_cmp_gt_i32 s57, %s\ns_cselect_b64 vcc, -1, 0\ns_cselect_b32 s33, s98, s99\ns_cmp_gt_i32 s57, s33" % ("s24" if rt else thr[0]))

    def throttle(q):
        F, M, E = e.newlabel("tf"), e.newlabel("tm"), e.newlabel("te")
        LV = list(LV0)
        if LW and st["next"] >= NKV:
            LV[:3] = [int(c, 16) for c in str(LW)]
        if q >= NKV:
            LV = [int(c, 16) for c in str(wthr)] + [99]
        elif LP:
            pats = str(LP).split("x")[1 if seq[q // 8][0][1] == "V" else 0].split(".")
            LV[:3] = [int(c) for c in pats[q % len(pats)]]
        h = list(e.hist)
        e("s_cbranch_vccnz %s" % F)
        if LV[0] != LV[1]:
            e("s_cbranch_scc1 %s\ns_waitcnt vmcnt(%d)" % (M, LV[0] - 1))
            e.label(M)
        e("s_waitcnt vmcnt(%d)" % (LV[1] - 1))
        e.label(F)
        if LV[2] != LV[3]:
            e("s_cbranch_scc1 %s\ns_waitcnt vmcnt(%d)" % (E, LV[2] - 1))
            e.label(E)
        e.hist = h

    def pump():
        if ctl:
            want(st["next"] - LV0[3])

    def want(q, w=None):
        assert q < st["next"]
        if w is None:
            w = Wend if (nend and q >= NKV - nend) else int(W[q % len(W)], 16)
            if ctl and not (nend and q >= NKV - nend):
                while st["next"] < min(q + 1 + w, st["free"], NLD):
                    throttle(q)
                    e.waitvm("u%d" % q)
                    issue_upto(st["next"] + 1)
        e.waitvm("u%d" % q)
        st["landed"] = max(st["landed"], q)
        issue_upto(q + 1 + w)
        if fine == 1 and q // 8 not in fdone:
            fdone.add(q // 8)
            e("s_memrealtime s[68:69]\ns_waitcnt lgkmcnt(0)\nv_writelane_b32 %s, s68, %d" % (v(vFT), q // 8 + 1))
        if fine == 2:
            fstamp(q + 9)
        if fine == 3 and q >= NKV - 48 and q not in fdone:
            fdone.add(q)
            e("s_memrealtime s[68:69]\ns_waitcnt lgkmcnt(0)\nv_writelane_b32 %s, s68, %d" % (v(vFT), q - NKV + 49))

    def setup_wo():
        cm("wo rows of this workgroup: 32 rows x 192 columns per wave (waves 0..2)")
        e("v_lshrrev_b32 %s, 3, v1\nv_mul_u32_u24 %s, 4608, %s\nv_and_b32 %s, 7, v1" % (v(vT2), v(vT2), v(vT2), v(vT3)))
        e("v_lshl_add_u32 %s, %s, 4, %s" % (v(vWO), v(vT3), v(vT2)))
        e("s_lshl_b32 s34, s31, 3\ns_and_b32 s35, s32, 7\ns_add_u32 s56, s34, s35")
        if w4:
            e("s_mul_i32 s34, s56, %d\ns_lshl_b32 s35, s30, 8\ns_add_u32 s34, s34, s35" % (32 * 1152))
            e("s_add_u32 s10, s10, s34\ns_addc_u32 s11, s11, 0\ns_add_u32 s14, s10, 1024\ns_addc_u32 s15, s11, 0")
            if wf:
                e("s_mul_i32 s35, s30, %d\ns_add_u32 s14, s14, s35\ns_addc_u32 s15, s15, 0" % (1152 - 256))
            e("s_cmp_eq_u32 s30, 0\ns_cselect_b32 s50, -1, 0x00ff00ff\ns_mov_b32 s51, 0x00ff00ff")
            return
        e("s_mul_i32 s34, s56, %d\ns_min_u32 s35, s30, 2\ns_mul_i32 s35, s35, 384\ns_add_u32 s34, s34, s35" % (32 * 1152))
        e("s_add_u32 s10, s10, s34\ns_addc_u32 s11, s11, 0")
        e("s_cmp_lt_u32 s30, 3\ns_cselect_b64 s[50:51], -1, 1")

    if wf:
        setup_wo()
    issue_upto(W0 - 9 - NW)
    cm("v_perm selectors that build the one-hot MFMA operand")
    e("v_mov_b32 %s, 0" % v(vZ))
    e("v_and_b32 %s, 1, v1\nv_cmp_eq_u32 vcc, 1, %s" % (v(vT2), v(vT2)))
    e("v_mov_b32 %s, 0x0c0c0100\nv_mov_b32 %s, 0x01000c0c" % (v(BC), v(BC + 1)))
    e("v_mov_b32 %s, 0x0c0c0302\nv_mov_b32 %s, 0x03020c0c\nv_mov_b32 %s, 0x0c0c0c0c" % (v(BC + 2), v(BC + 3), v(BC + 4)))
    e("v_cndmask_b32 %s, %s, %s, vcc\nv_cndmask_b32 %s, %s, %s, vcc" % (v(BC), v(BC), v(BC + 1), v(BC + 2), v(BC + 2), v(BC + 3)))
    e("v_bfe_u32 %s, v1, 1, 2" % v(vT2))
    for i in range(4):
        e("v_cmp_eq_u32 vcc, %d, %s" % (i, v(vT2)))
        e("v_cndmask_b32 %s, %s, %s, vcc\nv_cndmask_b32 %s, %s, %s, vcc" % (v(SLO + i), v(BC + 4), v(BC), v(SHI + i), v(BC + 4), v(BC + 2)))
    e("v_and_b32 %s, 8, v1\nv_cmp_ne_u32 vcc, 0, %s" % (v(vT2), v(vT2)))
    for i in range(4):
        e("v_cndmask_b32 %s, %s, %s, vcc" % (v(BC + i), v(SLO + i), v(SHI + i)))
    e("v_lshrrev_b32 %s, 5, v1\nv_lshlrev_b32 %s, 8, %s" % (v(vT2), v(vT2), v(vT2)))
    e("v_lshl_add_u32 %s, %s, 1, %s" % (v(vT2), v(vT1), v(vT2)))
    e("v_and_b32 %s, 16, v1\ns_lshl_b32 s34, s30, 9\nv_add3_u32 %s, %s, %s, s34" % (v(vT3), v(vT2), v(vT2), v(vT3)))
    e("s_mov_b32 s40, 0x%x" % CSC)
    stamp(1)
    stamp(1)
    cm("x . wq while the first K loads go out")
    nwq = [wqw]
    for t in range(xpos + 1):
        e.waitvm("wq%d" % t)
        if t in (0, 2, 5):
            stamp(1)
        if t + wqw < 9:
            ldwq(t + wqw)
            nwq[0] += 1
        issue_upto(t + 1 + W0 - 9 - NW)
    e("s_barrier")
    e.waitvm("x")
    stamp(1)
    for t in range(9):
        o = OP + 4 * (t % 8)
        for i in range(4):
            xr = XR + 4 * (t // 3) + t % 3
            e("v_perm_b32 %s, %s, %s, %s" % (v(o + i), v(xr), v(xr), v(BC + i)))
        e.waitvm("wq%d" % t)
        if t + wqw < 9 and t + wqw >= nwq[0]:
            ldwq(t + wqw)
        issue_upto(t + 1 + W0 - 9 - NW)
        if fine == 2:
            fstamp(t)
        e("%s %s, %s, %s, %s" % (MF, v(DA0, 4), v(o, 4), v(WQ + 4 * t, 4), "0" if t == 0 else v(DA0, 4)))
    jitter(0)
    issue_upto(st["next"] + qb)
    e("s_mov_b32 exec_lo, 0x00ff00ff\ns_mov_b32 exec_hi, 0xff00ff00\nv_mov_b32 %s, 1" % v(vT3))
    e("ds_write_b128 %s, %s offset:%d" % (v(vT2), v(DA0, 4), QP))
    e("s_mov_b64 exec, 1\nds_add_u32 %s, %s offset:%d\ns_mov_b64 exec, -1" % (v(vZ), v(vT3), F_QP))
    stamp()
    st["free"] = K0
    if not rt:
        wavebase(44, BMAPS[bmap], 28672 * 256)
    e("v_and_b32 %s, 1, v1\nv_lshlrev_b32 %s, 8, %s" % (v(vT0), v(vT0), v(vT0)))
    e("v_lshrrev_b32 %s, 2, v1\nv_lshl_add_u32 %s, %s, 4, %s" % (v(vT2), v(vT0), v(vT2), v(vT0)))
    e("s_mov_b32 s42, 0xcccccccc\ns_mov_b32 s43, 0xcccccccc")
    e("v_and_b32 %s, 15, v1\nv_lshlrev_b32 %s, 5, %s" % (v(vT2), v(vT2), v(vT2)))
    e("v_and_b32 %s, 16, v1\nv_add_u32 %s, %s, %s" % (v(vT3), v(vT2), v(vT2), v(vT3)))
    e("v_and_b32 %s, 32, v1\nv_lshlrev_b32 %s, 4, %s\ns_lshl_b32 s34, s30, 10" % (v(vT3), v(vT3), v(vT3)))
    e("v_add3_u32 %s, %s, %s, s34" % (v(vDL), v(vT2), v(vT3)))
    e("v_lshrrev_b32 %s, 5, v1\nv_lshlrev_b32 %s, 4, %s" % (v(vT1), v(vT1), v(vT1)))
    def signal(flag):
        e("v_mov_b32 %s, 1\ns_mov_b64 exec, 1\nds_add_u32 %s, %s offset:%d\ns_mov_b64 exec, -1" % (v(vT3), v(vZ), v(vT3), flag))

    cm("fill the four-unit ring with K while q is exchanged")
    q = -NW
    while st["next"] < K0:
        want(q, W0 + (pend if st["next"] + 1 + pend >= K0 else 0))
        if q == qtrig + K0 - 32:
            signal(F_T1)
        q += 1
    catch = list(range(q + pend, K0))
    stamp()
    cm("wait for q")
    lds_wait(F_Q, "eq", 1, vZ, vT2)
    stamp()

    def catchup(n):
        for _ in range(n):
            if catch:
                want(catch.pop(0), Wc)

    def loadq(pr):
        e("ds_read_b128 %s, %s offset:%d\ns_waitcnt lgkmcnt(0)" % (v(QB0, 4), v(vT0), QB + 512 * pr))
        for i in range(4):
            e("v_cndmask_b32 %s, 0, %s, s[42:43]" % (v(QB1 + i), v(QB0 + i)))
        for i in range(4):
            e("v_cndmask_b32 %s, %s, 0, s[42:43]" % (v(QB0 + i), v(QB0 + i)))

    def mfK(i, j):
        r, t = j // 2, j % 2
        e("%s %s, %s, %s, %s" % (MF, v(DQ + 4 * r, 4), v(slot(i) + 4 * j, 4), v(QB1 if t else QB0, 4), v(DQ + 4 * r, 4) if t else "0"))

    def redK(rs, dst):
        for k in range(1, 4):
            for r in rs:
                c = (r + k) % 4
                src1 = DQ + 4 * r + r if k == 1 else TT + r
                e("v_add_f32_dpp %s, %s, %s row_ror:%d row_mask:0xf bank_mask:0x%x" % (
                    v(TT + r if k < 3 else dst), v(DQ + 4 * r + c), v(src1), 4 * ((r - c) % 4), 0xf if k < 3 else 1 << r))

    def finalize(n, m, l, pp, first):
        t = vT2
        if n == 2:
            e("v_max_f32 %s, %s, %s" % (v(t), v(SS), v(SS + 1)))
        else:
            e("v_max3_f32 %s, %s, %s, %s" % (v(t), v(SS), v(SS + 1), v(SS + 2)))
            e("v_max3_f32 %s, %s, %s, %s" % (v(t + 1), v(SS + 3), v(SS + 4), v(SS + 5)))
            e("v_max3_f32 %s, %s, %s, %s" % (v(t), v(t), v(SS + 6), v(SS + 7)))
            e("v_max_f32 %s, %s, %s" % (v(t), v(t), v(t + 1)))
        dppred("v_max_f32", [t], ["row_ror:2", "row_ror:4", "row_ror:8"])
        xrow("v_max_f32", [t], [t + 1])
        if first:
            e("v_mul_f32 %s, s40, %s" % (v(m), v(t)))
        else:
            e("v_mul_f32 %s, s40, %s\nv_max_f32 %s, %s, %s" % (v(t), v(t), v(t), v(t), v(m)))
            e("v_sub_f32 %s, %s, %s\nv_exp_f32 %s, %s\nv_mov_b32 %s, %s" % (v(t + 1), v(m), v(t), v(t + 1), v(t + 1), v(m), v(t)))
            e("v_mul_f32 %s, %s, %s" % (v(l), v(l), v(t + 1)))
        if n == 8 and npump >= 1:
            pump()
        for k in range(n):
            e("v_fma_f32 %s, %s, s40, -%s" % (v(SS + k), v(SS + k), v(m)))
        for k in range(n):
            e("v_exp_f32 %s, %s" % (v(SS + k), v(SS + k)))
        if n == 8 and npump >= 2:
            pump()
        for k in range(n // 2):
            e("v_cvt_pk_bf16_f32 %s, %s, %s" % (v(pp + k), v(SS + 2 * k), v(SS + 2 * k + 1)))
        for k in range(n):
            if first and k == 0:
                continue
            e("v_add_f32 %s, %s, %s" % (v(l), v(SS + k), v(SS) if (first and k == 1) else v(l)))

    def headsum(l):
        dppred("v_add_f32", [l], ["row_ror:2", "row_ror:4", "row_ror:8"])
        xrow("v_add_f32", [l], [vT2])

    def to_dlayout(dst, src):
        e("v_mov_b32_dpp %s, %s quad_perm:[0,0,0,0] row_mask:0x3 bank_mask:0xf" % (v(dst), v(src)))
        e("v_mov_b32_dpp %s, %s quad_perm:[1,1,1,1] row_mask:0xc bank_mask:0xf" % (v(dst), v(src)))

    def bc(j, pp, half):
        e("v_mov_b32_dpp %s, %s row_newbcast:%d row_mask:0xf bank_mask:0x%x" % (v(BC + j), v(pp), 2 * j + half, 0xc if half else 0x3))

    def perms(j, hi, lo_i=0, hi_i=4):
        for i in range(lo_i, hi_i):
            e("v_perm_b32 %s, %s, %s, %s" % (v(OP + 4 * j + i), v(BC + j), v(BC + j), v((SHI if hi else SLO) + i)))

    def prep_step(j, pp, hi):
        if j == 0:
            bc(0, pp, 0); bc(1, pp, 0); e("s_nop 0"); bc(0, pp, 1); bc(1, pp, 1)
            perms(0, hi)
            return
        if j < 7:
            bc(j + 1, pp, 0)
        perms(j, hi, 0, 2)
        if j < 7:
            bc(j + 1, pp, 1)
        perms(j, hi, 2, 4)

    def mfV(i, j, acc, first):
        e("%s %s, %s, %s, %s" % (MF, v(acc, 4), v(OP + 4 * j, 4), v(slot(i) + 4 * j, 4), "0" if first else v(acc, 4)))

    e("ds_read_b64 %s, %s offset:%d" % (v(GR, 2), v(vZ), F_N0))
    loadq(0)
    e("v_readfirstlane_b32 s62, %s\nv_readfirstlane_b32 s63, %s" % (v(GR), v(GR + 1)))
    if ctl:
        e("s_xor_b32 s55, s30, 1\ns_lshr_b32 s33, s3, %d\ns_or_b32 s55, s55, s33" % (nrep.bit_length() - 1))
        e("s_mov_b32 s98, %s\ns_mov_b32 s99, %s\ns_mov_b32 s57, 0" % (("s25", "s23") if rt else (t2, t0)))
        setflags()
    stamp()

    hooks = {}

    def at(q, f):
        hooks.setdefault(q, []).append(f)

    def send(c):
        cm("256 scores -> running max, probabilities (bf16 pairs), partial sum")
        issue_upto(st["next"] + boost)
        finalize(8, vMR, vLR, PI1 if c else PI0, c == 0)
        if c == 0:
            to_dlayout(vM0, vMR)
        stamp()

    def rec():
        cm("{max, sum} of this wave to LDS")
        headsum(vLB)
        e("v_mov_b32 %s, %s\nv_mov_b32 %s, %s\nv_mov_b32 %s, %s\nv_mov_b32 %s, %s" % (
            v(GR), v(vMR), v(GR + 1), v(vLR), v(GR + 2), v(vMB), v(GR + 3), v(vLB)))
        e("s_lshl_b32 s34, s30, 5\nv_add_u32 %s, s34, %s\ns_mov_b64 exec, 3" % (v(vT2), v(vVO)))
        e("ds_write_b128 %s, %s offset:%d" % (v(vT2), v(GR, 4), MW))
        signal(F_B1)

    TG1, TG2, AD1, AD2, AD3 = WO + 48, WO + 52, WO + 53, WO + 54, WO + 55

    def scales():
        cm("rescale to the maxima of the workgroup")
        issue_upto(st["next"] + sb)
        lds_wait(F_ML, "eq", 1, vZ, vT2)
        e("ds_read_b64 %s, %s offset:%d" % (v(GR, 2), v(vT1), ML))
        for k in range(4) if wf else ():
            e("ds_read_b128 %s, %s offset:%d" % (v(WO + 32 + 4 * k, 4), v(vVO), W8_L + 1024 * k))
        to_dlayout(vT2, vMB)
        to_dlayout(vFA, vMR)
        e("s_waitcnt lgkmcnt(0)")
        e("v_sub_f32 %s, %s, %s\nv_sub_f32 %s, %s, %s\nv_sub_f32 %s, %s, %s" % (
            v(vFA), v(vFA), v(GR), v(vT2), v(vT2), v(GR + 1), v(vT3), v(vM0), v(GR)))
        e("v_exp_f32 %s, %s\nv_exp_f32 %s, %s\nv_exp_f32 %s, %s" % (v(vFA), v(vFA), v(vT2), v(vT2), v(vT3), v(vT3)))
        for r in range(4):
            e("v_mul_f32 %s, %s, %s" % (v(DA0 + r), v(DA0 + r), v(vT3)))
        if order == 1:
            for r in range(4):
                e("v_fma_f32 %s, %s, %s, %s" % (v(DA0 + r), v(DA1 + r), v(vFA), v(DA0 + r)))
            e("v_mov_b32 %s, %s" % (v(vFA), v(vT2)))
            e("ds_write_b128 %s, %s offset:%d" % (v(vDL), v(DA0, 4), DA_L))
        else:
            for r in range(4):
                e("v_mul_f32 %s, %s, %s" % (v(DBc + r), v(DBc + r), v(vT2)))
            e("ds_write_b128 %s, %s offset:%d" % (v(vDL), v(DBc, 4), DB_L))
            if w4 or be:
                signal(F_DB)

    def setup_tail1():
        cm("addresses and tags of the level-1 inbox")
        tagsel()
        tagreg(TG1, 1 if l1c else 8, vT2, chk=TG1)
        e("v_and_b32 %s, 7, v1\nv_lshlrev_b32 %s, 7, %s\nv_lshrrev_b32 %s, 3, v1" % (v(vT2), v(vT2), v(vT2), v(vT3)))
        if l1c:
            e("v_lshrrev_b32 %s, 3, %s\nv_lshl_add_u32 %s, %s, 8, %s" % (v(AD1), v(vT2), v(AD1), v(vT3), v(AD1)))
        else:
            e("v_lshl_add_u32 %s, %s, 4, %s" % (v(AD1), v(vT3), v(vT2)))
        e("s_lshl_b32 s34, s2, 11\ns_add_u32 s34, s34, 0x%x\ns_add_u32 s46, s28, s34\ns_addc_u32 s47, s29, 0" % L1_OFF)
        if wc:
            e("v_lshrrev_b32 %s, 5, %s" % (v(AD3), v(vT2)))
            return
        e("v_mov_b32 %s, %s" % (v(AD3), v(vT2)))
        e("s_lshl_b32 s34, s31, 11\ns_lshr_b32 s35, s32, 2\ns_lshl_b32 s35, s35, 4\ns_add_u32 s34, s34, s35")
        e("s_add_u32 s34, s34, 0x%x\ns_add_u32 s52, s28, s34\ns_addc_u32 s53, s29, 0" % G_OFF)

    def setup_tail2():
        cm("address and tag of the level-2 outbox (wave 3: level-1 outbox of problem B)")
        tagreg(TG2, 1, vT2)
        e("v_and_b32 %s, 8, v1\nv_cmp_ne_u32 vcc, 0, %s\nv_lshrrev_b32 %s, 5, v1" % (v(vT2), v(vT2), v(vT3)))
        e("v_cndmask_b32 %s, %s, %d, vcc" % (v(vT3), v(vT3), 8 if w4 else 2))
        if pb < 3:
            e("v_bfe_u32 %s, v1, %d, %d\nv_lshl_add_u32 %s, %s, %d, %s" % (v(vT2), pb, 3 - pb, v(vT2), v(vT3), 3 - pb, v(vT2)))
        else:
            e("v_mov_b32 %s, %s" % (v(vT2), v(vT3)))
        e("v_bfe_u32 %s, v1, 4, 1\nv_lshl_add_u32 %s, %s, 1, %s\nv_lshlrev_b32 %s, %d, %s" % (v(vT3), v(vT2), v(vT2), v(vT3), v(vT2), 11 + pb, v(vT2)))
        e("v_and_b32 %s, %d, v1\nv_lshl_add_u32 %s, %s, 4, %s" % (v(vT3), (1 << pb) - 1, v(AD2), v(vT3), v(vT2)))
        e("s_lshr_b32 s34, s32, 3\ns_mul_i32 s34, s34, 9\ns_mul_i32 s35, s30, %d\ns_add_u32 s34, s34, s35\ns_lshl_b32 s34, s34, 15" % NG)
        e("s_lshl_b32 s35, s56, %d\ns_add_u32 s34, s34, s35\ns_add_u32 s34, s34, 0x%x" % (4 + pb, L2_OFF))
        e("s_add_u32 s48, s28, s34\ns_addc_u32 s49, s29, 0")
        if w4 or be:
            return
        with optional("s_cmp_lg_u32 s30, 3"):
            tagreg(TG2, 1, vT2)
            l1_out_addr(AD2, vT2, vT3, 48, 1, TG2)
        e("ds_read_b32 %s, %s offset:%d\ns_waitcnt lgkmcnt(0)\nv_readfirstlane_b32 s61, %s" % (v(vT2), v(vZ), F_LOC, v(vT2)))
        if fpos >= 0:
            e("s_lshl_b32 s33, s2, 7\ns_lshl_b32 s34, s30, 4\ns_add_u32 s33, s33, s34\ns_add_u32 s33, s33, 0x%x" % (G_OFF + 64))
            e("s_add_u32 s4, s28, s33\ns_addc_u32 s5, s29, 0\nv_mov_b32 %s, s62\nv_mov_b32 %s, s63\nv_mov_b32 %s, 1" % (v(QB0), v(QB0 + 1), v(QB0 + 2)))

    at(8 * 8 + 1, lambda: send(0))
    at(8 * 16 + 1, lambda: send(1))
    hsum = lambda: headsum(vLR)
    at(8 * 17 + 2, hsum)
    at(8 * pos[("BV", 0)] + 1, rec)
    if wf:
        at(8 * 4 + 2, lambda: e("s_lshl_b32 s33, s30, 10\nv_add_u32 %s, s33, %s\nds_write_b128 %s, %s offset:%d" % (v(vT2), v(vVO), v(vT2), v(WO + 32, 4), W8_L)))
    else:
        at(8 * 22 + 2, setup_wo)

    def prepnext(kind):
        segstart(vNX, kind)
        nxt[0] = kind
    for i in range(1, len(seq)):
        if seq[i][0] != seq[i - 1][0]:
            at(8 * i - 20, lambda kind=seq[i][0]: prepnext(kind))

    def ldg8(rg):
        with optional("s_cmp_lg_u32 s30, 0"):
            e("global_load_dwordx4 %s, %s, s[14:15] offset:%d %s" % (v(WO + 32 + 4 * rg, 4), v(vWO), rg * 1152, wflags))
    for rg in range(4) if (w4 and g8a > 0) else ():
        at(NKV - g8a + g8d * rg, lambda rg=rg: ldg8(rg))
    for qq in (70, 140, 150, 230, 280) if jit else ():
        at(qq, lambda: jitter(5))
    at(8 * 28, stamp)
    at(NKV - (7 if order == 1 else scp), scales)
    at(8 * 24 + 2, setup_tail1)
    at(8 * 26 + 2, setup_tail2)
    for k in range(1 << gst):
        at(NKV - gtrig + gsd * k, lambda: signal(F_T2))
    GA, GB = WO + 56, WO + 60
    ldg = "global_load_dwordx4 %s, %s, s[52:53] sc1\nglobal_load_dwordx4 %s, %s, s[52:53] offset:1024 sc1" % (v(GA, 4), v(AD3), v(GB, 4), v(AD3))
    ldg = ldg.replace("sc1", l1lf)
    red8 = ["quad_perm:[1,0,3,2]", "quad_perm:[2,3,0,1]", "row_half_mirror"]

    def weights(GA=GA, GB=GB, vT2=vT2, vT3=vT3, ldg=ldg):
        cm("softmax weights of the 16 splits")
        L, D = e.newlabel("g1"), e.newlabel("g1d")
        e.waitvm("g")
        e("s_mov_b32 s35, %d" % SPIN)
        e.label(L)
        e("v_xor_b32 %s, s62, %s\nv_xor_b32 %s, s63, %s" % (v(vT2), v(GA + 1), v(vT3), v(GA + 3)))
        e("v_bitop3_b32 %s, %s, %s, s62 bitop3:0xf6\nv_bitop3_b32 %s, %s, %s, s63 bitop3:0xf6" % (v(vT2), v(vT2), v(GB + 1), v(vT3), v(vT3), v(GB + 3)))
        e("v_or_b32 %s, %s, %s\nv_cmp_ne_u32 vcc, 0, %s\ns_cbranch_vccz %s" % (v(vT2), v(vT2), v(vT3), v(vT2), D))
        h, vm = list(e.hist), list(e.vm)
        if not raw:
            e(ldg + "\ns_waitcnt vmcnt(0)\ns_sub_u32 s35, s35, 1\ns_cbranch_scc0 %s" % L)
        e.label(D)
        e.hist, e.vm = h, vm
        e("v_max_f32 %s, %s, %s" % (v(vT2), v(GA), v(GB)))
        dppred("v_max_f32", [vT2], red8)
        e("v_sub_f32 %s, %s, %s\nv_sub_f32 %s, %s, %s" % (v(GA), v(GA), v(vT2), v(GB), v(GB), v(vT2)))
        e("v_exp_f32 %s, %s\nv_exp_f32 %s, %s" % (v(GA), v(GA), v(GB), v(GB)))
        e("v_mul_f32 %s, %s, %s\nv_fma_f32 %s, %s, %s, %s" % (v(vT2), v(GA), v(GA + 2), v(vT2), v(GB), v(GB + 2), v(vT2)))
        dppred("v_add_f32", [vT2], red8)
        e("v_rcp_f32 %s, %s" % (v(vT2), v(vT2)))
        e("v_mul_f32 %s, %s, %s\nv_mul_f32 %s, %s, %s" % (v(GA), v(GA), v(vT2), v(GB), v(GB), v(vT2)))

    if gld and not wc:
        at(NKV - gld, lambda: e(ldg, "g"))
        if wearly:
            at(NKV - gld + 11, weights)

    def ppof(kind, u):
        return (vPB, u) if kind == "BV" else ((PI1 if u >= 8 else PI0) + (u % 8) // 2, u % 2)

    reddone = set()

    def red(qq):
        if qq >= 0 and seq[qq // 8][0][1] == "K" and qq not in reddone:
            reddone.add(qq)
            redK([(qq % 8) // 2], SS + seq[qq // 8][1] % 8)

    for q in range(NKV):
        i, j = q // 8, q % 8
        kind, u = seq[i]
        if j == 0:
            cm("---- unit %d: %s %s %d" % (i, kind[0], "keys" if kind[1] == "K" else "values", u))
        if (kind, u, j) == ("BK", 0, 0):
            issue_upto(st["next"] + hb)
            loadq(1)
        if (kind, u, j) == ("BV", 0, 0):
            want(q)
            red(q - 1)
            finalize(2, vMB, vLB, vPB, True)
            want(q + 1)
            for k in range(8):
                prep_step(k, vPB, False)
            if npump:
                want(q + 2)
        if q < K0:
            want(q, 0 if q < catch[0] else Wc)
        else:
            want(q)
        if kind[1] == "K":
            mfK(i, j)
        else:
            mfV(i, j, DBc if kind == "BV" else (DA1 if u >= 8 else DA0), u % 8 == 0 and j == 0)
        st["free"] = min(K0 + 1 + q if q < 16 else max(K0 + 16, q + 17), NKV + wcap)
        if q < K0 and q % (K0 // 5) == 0 and len(catch) > 1:
            catchup(1)
        if j % 2 == 1:
            red(q - 2)
        if i + 1 < len(seq) and seq[i + 1][0][1] == "V" and seq[i + 1] != ("BV", 0):
            prep_step(j, *ppof(*seq[i + 1]))
        hk = hooks.pop(q, [])
        if hb and any(f in (rec, setup_tail1, setup_tail2, hsum) for f in hk):
            issue_upto(st["next"] + hb)
        for f in hk:
            f()
        if ctl and q >= K0:
            dirty = bool(hk)
            use = i > ms[0] + mdel
            if i == tu and j == 6:
                e("s_mov_b32 s98, %d\ns_mov_b32 s99, %d" % (u2, u0))
                thr[0] = u1
            if i >= dbl and j == 0:
                e("s_memrealtime s[96:97]")
            if i >= dbl and j == 2:
                e("s_waitcnt lgkmcnt(0)\ns_sub_u32 s57, s96, s54\ns_mul_i32 s33, s59, %d\ns_lshr_b32 s33, s33, 5\ns_cselect_b32 s57, s57, 0\ns_sub_u32 s57, s57, s33" % (2 * i - 1))
                dirty = True
            if j == 4 and i - mdel in ms:
                signal(F_P)
            if j == 4 and (use or i in ms):
                e("s_memrealtime s[58:59]")
                if use:
                    e("ds_read_b64 %s, %s offset:%d" % (v(vRF, 2), v(vZ), F_REF))
            if j == 6 and (use or i in ms):
                e("s_waitcnt lgkmcnt(0)")
                per = cb / 80.0
                cor = "s_cmp_gt_i32 s60, %d\ns_cselect_b32 s33, 0, %d\ns_cmp_gt_i32 s60, %d\ns_cselect_b32 s33, %d, s33\ns_cmp_gt_i32 s60, %d\ns_cselect_b32 s33, %d, s33\ns_add_u32 s58, s58, s33"
                cork = lambda k: cor % (t0, round(k * per * (LV0[0] - LV0[1])), t1, round(k * per * (LV0[2] - LV0[1])), t2, round(k * per * (LV0[3] - LV0[1])))
                if (rcor and i in ms) or lcor:
                    e("s_mov_b32 s60, s57")
                if lcor:
                    e(cork(lcor / 10.0))
                if use:
                    e("v_readfirstlane_b32 s54, %s\nv_readfirstlane_b32 s59, %s\ns_sub_u32 s57, s58, s54" % (v(vRF), v(vRF + 1)))
                    e("s_mul_i32 s33, s59, %d\ns_lshr_b32 s33, s33, 4\ns_cselect_b32 s57, s57, 0\ns_sub_u32 s57, s57, s33" % i)
                if fine == 1 and i % 2 == 0:
                    e("v_writelane_b32 %s, s57, %d" % (v(vFT), 41 + i // 2))
                if i in ms:
                    with optional("s_cmp_lg_u32 s55, 0"):
                        if rcor:
                            e(cork(1 - lcor / 10.0))
                        e("s_add_u32 s58, s58, s62\ns_lshl_b32 s33, s3, %d\ns_add_u32 s33, s33, %d" % (rsh, RP_OFF + 4352 * ms.index(i)))
                        e("v_mov_b32 %s, s33\nv_mov_b32 %s, s58\ns_mov_b64 exec, 1" % (v(vT2), v(vT3)))
                        e("global_store_dword %s, %s, s[28:29] %s\ns_mov_b64 exec, -1" % (v(vT2), v(vT3), rf))
                dirty = True
            if dirty:
                setflags()
    assert not hooks, hooks.keys()
    stamp()
    if order == 1:
        for r in range(4):
            e("v_mul_f32 %s, %s, %s" % (v(DBc + r), v(DBc + r), v(vFA)))
        e("ds_write_b128 %s, %s offset:%d" % (v(vDL), v(DBc, 4), DB_L))
    else:
        for r in range(4):
            e("v_fma_f32 %s, %s, %s, %s" % (v(DA0 + r), v(DA1 + r), v(vFA), v(DA0 + r)))
        e("ds_write_b128 %s, %s offset:%d" % (v(vDL), v(DA0, 4), DA_L))
    def ldg8all():
        with optional("s_cmp_lg_u32 s30, 0"):
            for rg in range(4):
                e("global_load_dwordx4 %s, %s, s[14:15] offset:%d %s" % (v(WO + 32 + 4 * rg, 4), v(vWO), rg * 1152, wflags))
    if w4 and g8a == -1:
        ldg8all()
    if wob:
        issue_upto(NLD)
    e("s_waitcnt lgkmcnt(0)\ns_barrier")
    st["free"] = NLD
    if w4 and g8a == 0:
        ldg8all()
    if not w4:
        e("s_cmp_eq_u32 s30, 3\ns_cbranch_scc1 L_w3")
    if pfirst:
        if not wearly:
            weights()
        e("s_barrier")
    if not gld and not wc:
        e(ldg, "g")
    if olast:
        st["free"] = NLD - olast
        issue_upto(NKV + Wwo)
    elif wthr:
        setflags()
        while st["next"] < NLD:
            throttle(NKV)
            issue_upto(st["next"] + 1)
    else:
        issue_upto(NLD)
    if wc:
        e("ds_read_b32 %s, %s offset:%d\nds_read_b32 %s, %s offset:%d\ns_waitcnt lgkmcnt(0)" % (v(GA), v(AD3), WT, v(GB), v(AD3), WT + 32))
    elif not wearly and not pfirst:
        weights()
    if fine == 3:
        for q in range(NKV, NLD):
            want(q, 0)
    cm("level 1: o[32] of our wo rows = weighted sum over the splits, then o . wo")
    X, Y = OP, OP + 4
    ldo = "global_load_dwordx4 %s, %s, s[46:47] sc1\nglobal_load_dwordx4 %s, %s, s[46:47] offset:%d sc1" % (v(X, 4), v(AD1), v(Y, 4), v(AD1), 128 if l1c else 1024)
    ldo = ldo.replace("sc1", l1lf)
    L, D = e.newlabel("l1"), e.newlabel("l1d")
    if olast:
        q = NKV
        while q + Wwo <= NLD - olast + okeep:
            want(q, Wwo)
            q += 1
        e(ldo + "\ns_mov_b32 s35, %d" % SPIN, "o")
        st["free"] = NLD
        issue_upto(NLD)
        e.waitvm("o")
    else:
        e.waitvm("u%d" % (NLD - 1 - okeep))
        if dg:
            e("s_memrealtime s[72:73]")
        e(ldo + "\ns_mov_b32 s35, %d" % SPIN)
        e.waitvm()
        if dg:
            e("s_memrealtime s[74:75]")
    if trim & 8:
        G = [RING, RING + 4, RING + 8]
        Z, R, O = RING + 12, RING + 16, OP + 24
        RT = e.newlabel("l1r")
        e.label(L)
        stamp()
        for x in (X, Y):
            for r in range(4):
                e("v_xor_b32 %s, %s, %s" % (v(x + r), v(x + r), v(TG1 + r)))
        for r in (0, 2):
            e("v_pk_mul_f32 %s, %s, %s op_sel_hi:[1,0]" % (v(O + r, 2), v(X + r, 2), v(GA, 2)))
        for r in (0, 2):
            e("v_pk_fma_f32 %s, %s, %s, %s op_sel_hi:[1,0,1]" % (v(O + r, 2), v(Y + r, 2), v(GB, 2), v(O + r, 2)))
        dppred("v_add_f32", [O, O + 1, O + 2, O + 3], red8)
        e("v_cvt_pk_bf16_f32 %s, %s, %s\nv_cvt_pk_bf16_f32 %s, %s, %s" % (v(BC), v(O), v(O + 1), v(BC + 1), v(O + 2), v(O + 3)))
        mf = lambda g, rg: e("%s %s, %s, %s, %s" % (MF, v(G[g], 4), v(OP + 8 + 4 * rg, 4), v(WO + 4 * (4 * g + rg), 4), "0" if rg == 0 else v(G[g], 4)))
        for rg in range(5):
            if rg < 4:
                for i in range(4):
                    e("v_perm_b32 %s, %s, %s, %s" % (v(OP + 8 + 4 * rg + i), v(BC + rg // 2), v(BC + rg // 2), v((SHI if rg % 2 else SLO) + i)))
            if rg > 0:
                mf(0, rg - 1)
                mf(1, rg - 1)
        chk = ["v_or3_b32 %s, %s, %s, %s\nv_or3_b32 %s, %s, %s, %s" % (v(vT2), v(X), v(X + 1), v(X + 2), v(vT3), v(X + 3), v(Y), v(Y + 1)),
               "v_or3_b32 %s, %s, %s, %s\nv_or_b32 %s, %s, %s" % (v(vT2), v(vT2), v(Y + 2), v(Y + 3), v(vT2), v(vT2), v(vT3)),
               "v_and_b32 %s, 0xff, %s\nv_cmp_ne_u32 vcc, 0, %s" % (v(vT2), v(vT2), v(vT2)), ""]
        for rg in range(4):
            mf(2, rg)
            e(chk[rg])
        if not raw:
            e("s_cbranch_vccnz %s" % RT)
        e.label(D)
        for r in range(4):
            e("v_permlane32_swap_b32 %s, %s" % (v(G[0] + r), v(G[1] + r)))
        for r in range(4):
            e("v_add_f32_dpp %s, %s, %s row_ror:8 row_mask:0xf bank_mask:0x3" % (v(R + r), v(G[1] + r), v(G[0] + r)))
        for r in range(4):
            e("v_permlane32_swap_b32 %s, %s" % (v(G[2] + r), v(Z + r)))
        for r in range(4):
            e("v_add_f32_dpp %s, %s, %s row_ror:8 row_mask:0xf bank_mask:0xc" % (v(R + r), v(G[2] + r), v(Z + r)))
        ready = lambda p: None
        retry = [ldo, "s_waitcnt vmcnt(0)", "v_xor_b32 %s, %s, %s" % (v(vT2), v(X), v(TG1))]
        retry += ["v_bitop3_b32 %s, %s, %s, %s bitop3:0xf6" % (v(vT2), v(vT2), v(X + k), v(TG1 + k % 4)) for k in range(1, 8)]
        retry += ["v_and_b32 %s, 0xff, %s\nv_cmp_ne_u32 vcc, 0, %s\ns_cbranch_vccz %s" % (v(vT2), v(vT2), v(vT2), L)]
        retry += ["s_sub_u32 s35, s35, 1\ns_cbranch_scc0 %s\ns_branch %s" % (RT, D)]
        retry = RT + ":\n  " + "\n".join(retry).replace("\n", "\n  ")
    else:
        retry = ""
        e.label(L)
        tagcheck([X, Y], TG1, vT2, vT3)
        e("s_cbranch_vccz %s" % D)
        vm = list(e.vm)
        if not raw:
            e(ldo + "\ns_waitcnt vmcnt(0)\ns_sub_u32 s35, s35, 1\ns_cbranch_scc0 %s" % L)
        e.label(D)
        e.hist, e.vm = [], vm
        stamp()

        def ready(p):
            if p == fpos:
                e("s_mov_b64 exec, 1\nglobal_store_dwordx2 %s, %s, s[4:5]" % (v(vZ), v(QB0, 2)), "fl")
                e("ds_add_u32 %s, %s offset:%d\ns_mov_b64 exec, -1" % (v(vZ), v(QB0 + 2), F_T3))

        ready(0)
        if trim & 4:
            for r in (0, 2):
                e("v_pk_mul_f32 %s, %s, %s op_sel_hi:[1,0]" % (v(X + r, 2), v(X + r, 2), v(GA, 2)))
            for r in (0, 2):
                e("v_pk_fma_f32 %s, %s, %s, %s op_sel_hi:[1,0,1]" % (v(X + r, 2), v(Y + r, 2), v(GB, 2), v(X + r, 2)))
        else:
            for r in range(4):
                e("v_mul_f32 %s, %s, %s" % (v(X + r), v(X + r), v(GA)))
            for r in range(4):
                e("v_fma_f32 %s, %s, %s, %s" % (v(X + r), v(Y + r), v(GB), v(X + r)))
        dppred("v_add_f32", [X, X + 1, X + 2, X + 3], ["quad_perm:[1,0,3,2]", "quad_perm:[2,3,0,1]", "row_half_mirror"])
        e("v_cvt_pk_bf16_f32 %s, %s, %s\nv_cvt_pk_bf16_f32 %s, %s, %s" % (v(BC), v(X), v(X + 1), v(BC + 1), v(X + 2), v(X + 3)))
        ready(1)
        G = [RING, RING + 4, RING + 8]
        Z, R = RING + 12, RING + 16
        for rg in range(5):
            if rg < 4:
                for i in range(4):
                    e("v_perm_b32 %s, %s, %s, %s" % (v(OP + 8 + 4 * rg + i), v(BC + rg // 2), v(BC + rg // 2), v((SHI if rg % 2 else SLO) + i)))
            if rg > 0:
                for g in range(3):
                    e.waitvm("u%d" % (NKV + NG * (rg - 1) + g))
                    e("%s %s, %s, %s, %s" % (MF, v(G[g], 4), v(OP + 4 + 4 * rg, 4), v(WO + 4 * (4 * g + rg - 1), 4), "0" if rg == 1 else v(G[g], 4)))
        ready(2)
        for r in range(4):
            e("v_permlane32_swap_b32 %s, %s" % (v(G[0] + r), v(G[1] + r)))
        for r in range(4):
            e("v_permlane32_swap_b32 %s, %s" % (v(G[2] + r), v(Z + r)))
        for r in range(4):
            e("v_add_f32_dpp %s, %s, %s row_ror:8 row_mask:0xf bank_mask:0x3" % (v(R + r), v(G[1] + r), v(G[0] + r)))
        for r in range(4):
            e("v_add_f32_dpp %s, %s, %s row_ror:8 row_mask:0xf bank_mask:0xc" % (v(R + r), v(G[2] + r), v(Z + r)))
    tagput(R, TG2)
    jitter(2)
    e("s_mov_b64 exec, s[50:51]" if w4 else "s_mov_b32 exec_hi, 0x00ff00ff")
    e("global_store_dwordx4 %s, %s, s[48:49] %s" % (v(AD2), v(R, 4), l2sf))
    stamp()
    if wb:
        with optional("s_lshl_b32 s33, s30, 8\ns_add_u32 s33, s33, s3\ns_cmp_lt_u32 s33, %d" % (512 + wbn)):
            if wb == 2:
                e("s_waitcnt vmcnt(0)")
            e("buffer_wbl2 sc1")
    ready(3)
    if fdel:
        if fack:
            e("s_waitcnt vmcnt(0)")
        if fb:
            e("s_barrier")
        else:
            signal(F_T3)
    e.label("L_sdone")
    if fine:
        e("s_mov_b64 exec, -1\ns_waitcnt lgkmcnt(0)\nv_writelane_b32 %s, s70, 0" % v(vFT))
        if fine == 1:
            e("s_getreg_b32 s33, hwreg(HW_REG_HW_ID)\nv_writelane_b32 %s, s33, 40" % v(vFT))
        e("s_lshl_b32 s33, s3, 2\ns_add_u32 s33, s33, s30\ns_lshl_b32 s33, s33, 8\ns_add_u32 s33, s33, 0x%x" % (STAMP_OFF + 0x100000))
        e("v_lshl_add_u32 v19, v1, 2, s33\nglobal_store_dword v19, %s, s[28:29]" % v(vFT))
    write_stamps(vT2, "s")
    e("s_endpgm")
    e.raw(retry)
    e.hist, e.vm = [], []
    if not w4:
        cm("wave 3: sum the B partials of the four waves and send them")
        e.label("L_w3")
        if not be:
            sumpub(DB_L, OP, vVO, AD2, 48, TG2)
        if pfirst:
            e("s_barrier")
        e("s_branch L_sdone" if stamps else "s_endpgm")

    e.hist, e.vm = [], []
    nst[0] = base_st
    e.raw(".p2align 6")
    cm("==== communication wave")
    e.label("L_comm")
    e("s_setprio %d\ns_memrealtime s[56:57]" % cpr)
    e(ids)
    e("v_lshlrev_b32 v2, 2, v1\nv_mov_b32 v3, 0\nds_write_b32 v2, v3 offset:%d" % FL)
    cZ, c16, cT, cU, cA, cO = 2, 3, 4, 5, 6, 7
    A0 = 8
    TG, TP = 60, 100
    e("v_mov_b32 %s, 0\nv_lshlrev_b32 %s, 4, v1" % (v(cZ), v(c16)))
    if warm:
        cm("pull a slice of this kernel's own code into the L2")
        e("s_getpc_b64 s[36:37]")
        e.label("L_pc0")
        e("s_sub_u32 s36, s36, L_pc0-%s\ns_subb_u32 s37, s37, 0" % KN)
    if warm and swarm:
        e("s_lshr_b32 s33, s3, 3\ns_mulk_i32 s33, %d\ns_min_u32 s33, s33, L_end-%s-%d\ns_add_u32 s36, s36, s33\ns_addc_u32 s37, s37, 0" % (128 * wl, KN, 128 * wl - 64))
    if warm and not swarm:
        e("s_lshr_b32 s33, s3, 3\ns_mulk_i32 s33, %d\nv_lshl_add_u32 %s, v1, 7, s33" % (128 * wl, v(cU)))
        e("v_min_u32 %s, L_end-%s, %s\ns_mov_b64 exec, 0x%x" % (v(cU), KN, v(cU), (1 << wl) - 1))
        e("global_load_dword %s, %s, s[36:37]" % (v(A0), v(cU)))
    if touch:
        e("s_lshl_b32 s38, s31, 23\ns_add_u32 s39, s38, %d" % (28672 * 256))
        e("v_lshl_add_u32 %s, v1, 21, s38\nv_mov_b32 %s, s39" % (v(A0 + 12), v(A0 + 13)))
        e("s_lshl_b32 s33, s31, 3\ns_and_b32 s34, s32, 7\ns_add_u32 s33, s33, s34\ns_mul_i32 s33, s33, %d\nv_mov_b32 %s, s33" % (32 * 1152, v(A0 + 15)))
    e("s_cmp_ge_u32 s32, 8\ns_waitcnt lgkmcnt(0)\ns_cselect_b64 s[12:13], s[22:23], s[12:13]\ns_mov_b64 exec, 1")
    cm("workgroup 0 publishes the launch nonce")
    e("s_cmp_lg_u32 s3, 0\ns_cbranch_scc1 L_nolead")
    e("s_lshr_b64 s[56:57], s[56:57], 8\ns_mul_i32 s33, s56, 0x9e3779b1\ns_mul_i32 s34, s56, 0x85ebca6b\ns_add_u32 s34, s34, s57")

    for r in (33, 34):
        e("s_and_b32 s35, s%d, 0x7f\ns_lshr_b32 s%d, s%d, 7\ns_lshl_b32 s%d, s%d, 9\ns_lshl_b32 s35, s35, 1\ns_or_b32 s%d, s%d, s35\ns_or_b32 s%d, s%d, 1" % (
            r, r, r, r, r, r, r, r, r))
    jitter(4)
    e("v_mov_b32 v16, s33\nv_mov_b32 v17, s34\nv_mov_b32 v18, 0\nv_mov_b32 v19, 0")
    e("global_atomic_cmpswap_x2 %s, v[16:19], s[26:27] sc1" % v(cZ))
    e.label("L_nolead")
    if touch:
        e("global_load_dword %s, %s, s[16:17] nt\nglobal_load_dword %s, %s, s[18:19] nt" % (v(A0), v(A0 + 13), v(A0), v(A0 + 13)))
        e("global_load_dword %s, %s, s[12:13] nt\ns_mov_b64 exec, 15" % (v(A0), v(A0 + 15)))
        e("global_load_dword %s, %s, s[6:7] nt\nglobal_load_dword %s, %s, s[8:9] nt" % (v(A0), v(A0 + 12), v(A0), v(A0 + 12)))
        e("s_mov_b64 exec, 1")
    def pretouch(ex):
        if spre:
            e("s_lshl_b32 s33, s2, 11\ns_add_u32 s46, s28, s33\ns_addc_u32 s47, s29, 0\ns_lshl_b32 s33, s2, 7\ns_add_u32 s33, s33, 0x%x" % G_OFF)
            e("s_load_dword s48, s[28:29], s33\ns_add_u32 s33, s33, 64\ns_load_dword s48, s[28:29], s33")
            for k in range(32):
                e("s_load_dword s48, s[46:47], 0x%x" % (L1_OFF + 64 * k))
            return
        e("s_mov_b64 exec, 0xffff\ns_lshl_b32 s33, s2, 11\ns_add_u32 s33, s33, 0x%x\nv_lshl_add_u32 %s, v1, 7, s33" % (L1_OFF, v(cT)))
        e("s_lshl_b32 s33, s2, 7\ns_add_u32 s33, s33, 0x%x\nv_writelane_b32 %s, s33, 16\ns_mov_b64 exec, 0x1ffff" % (G_OFF, v(cT)))
        e("global_load_dword %s, %s, s[28:29] sc1\ns_mov_b64 exec, %d" % (v(A0 + 45), v(cT), ex))

    if warm and swarm:
        for k in range(2 * wl):
            e("s_load_dword s48, s[36:37], %d" % (64 * k))
    if pre1 == 2:
        pretouch(1)
    e("s_barrier")
    if raw:
        e("s_endpgm")
    cm("read the nonce")
    L, D = e.newlabel("gf"), e.newlabel("gfd")
    e("s_mov_b32 s35, %d" % SPIN)
    if nsl:
        e("s_sleep %d" % nsl)
    if npoll == 2:
        e("global_load_dwordx2 %s, %s, s[26:27] sc1\ns_sleep 12" % (v(A0 + 2, 2), v(cZ)))
    e.label(L)
    for k in range(npoll):
        e("global_load_dwordx2 %s, %s, s[26:27] sc1" % (v(A0 + 2 * npoll - 2 * k, 2), v(cZ)))
        e("s_waitcnt vmcnt(%d)" % (npoll - 1))
        e("v_readfirstlane_b32 s62, %s\nv_readfirstlane_b32 s63, %s" % (v(A0 + 2 + 2 * k), v(A0 + 3 + 2 * k)))
        e("s_and_b32 s34, s62, s63\ns_bitcmp1_b32 s34, 0\ns_cbranch_scc1 %s" % D)
    e("s_sub_u32 s35, s35, 1\ns_cbranch_scc0 %s" % L)
    e.label(D)
    e.vm = []
    e("s_mov_b64 exec, -1\nv_mov_b32 %s, s62\nv_mov_b32 %s, s63" % (v(A0 + 16), v(A0 + 17)))
    e("ds_write_b64 %s, %s offset:%d" % (v(cZ), v(A0 + 16, 2), F_N0))
    stamp()
    tagsel()
    tagreg(TP, 1, cT, chk=TG)
    e("s_lshl_b32 s33, s31, 12\ns_add_u32 s33, s33, 0x%x\ns_add_u32 s36, s28, s33\ns_addc_u32 s37, s29, 0" % Q_OFF)
    e("s_lshl_b32 s33, s32, 8\ns_add_u32 s38, s36, s33\ns_addc_u32 s39, s37, 0")
    e("s_getreg_b32 s60, hwreg(HW_REG_XCC_ID, 0, 4)\ns_lshl_b32 s33, s60, 24\nv_xor_b32 v103, s33, %s" % v(TP))
    cm("sum and send our 64 partial q values (the XCD id rides in a tag)")
    lds_wait(F_QP, "eq", 4, cZ, cT, sleep=csl)
    e("s_mov_b64 exec, 0xffff")
    R0 = A0 + 16
    for k in range(8):
        e("ds_read_b128 %s, %s offset:%d" % (v(R0 + 4 * k, 4), v(c16), QP + 256 * k))
    e("s_waitcnt lgkmcnt(0)")
    for stp in (16, 8, 4):
        for k in range(stp):
            e("v_add_f32 %s, %s, %s" % (v(R0 + k), v(R0 + k), v(R0 + stp + k)))
    tagput(R0, 103)
    e("global_store_dwordx4 %s, %s, s[38:39] %s\ns_mov_b64 exec, -1" % (v(c16), v(R0, 4), qsf) if not noq else "s_mov_b64 exec, -1")
    stamp()
    if ssp & 8:
        cm("first touch of the pages streamed later, so that their translations are there in time")
        e("s_lshl_b32 s33, s31, 23")
        for k in range(4):
            e("s_load_dword s48, s[8:9], s33" + ("\ns_add_u32 s33, s33, 0x200000" if k < 3 else ""))
        e("s_load_dword s48, s[16:17], s33\ns_load_dword s48, s[18:19], s33")
        e("s_lshl_b32 s33, s31, 3\ns_and_b32 s34, s32, 7\ns_add_u32 s33, s33, s34\ns_mul_i32 s33, s33, %d\ns_load_dword s48, s[12:13], s33" % (32 * 1152))
    if qpre:
        e("s_waitcnt vmcnt(0)\ns_load_dword s48, s[38:39], 0\ns_load_dword s48, s[38:39], 64\ns_load_dword s48, s[38:39], 128\ns_load_dword s48, s[38:39], 192")
    if pre1 == 3:
        pretouch(-1)
    QS = 64
    cm("fetch q of the head once the stream is far enough that it is normally complete")
    lds_wait(F_T1, "ge", 1, cZ, cT, sleep=max(1, 2 * csl))
    L, D = e.newlabel("qp"), e.newlabel("qd")
    e("s_mov_b32 s35, %d" % SPIN)
    if noq:
        for j in range(16):
            e("v_mov_b32 %s, s60" % v(QS + j))
        e("s_branch %s" % D)
    e.label(L)
    for j in range(4):
        e("global_load_dwordx4 %s, %s, s[36:37] offset:%d %s" % (v(QS + 4 * j, 4), v(c16), 1024 * j, qlf))
    e.waitvm()
    for j in range(4):
        for r in range(4):
            e("v_xor_b32 %s, %s, %s" % (v(QS + 4 * j + r), v(QS + 4 * j + r), v(TG + r)))
    e("v_or3_b32 %s, %s, %s, %s\nv_or_b32 %s, %s, %s" % (v(cU), v(QS + 3), v(QS + 7), v(QS + 11), v(cU), v(cU), v(QS + 15)))
    e("v_and_b32 %s, 0xf0, %s" % (v(cT), v(cU)))
    for j in range(4):
        e("v_or3_b32 %s, %s, %s, %s\nv_or_b32 %s, %s, %s" % (v(cT), v(cT), v(QS + 4 * j), v(QS + 4 * j + 1), v(cT), v(cT), v(QS + 4 * j + 2)))
    e("v_and_b32 %s, 0xff, %s\nv_cmp_ne_u32 vcc, 0, %s" % (v(cT), v(cT), v(cT)))
    e("s_cbranch_vccz %s\ns_sub_u32 s35, s35, 1\ns_cbranch_scc0 %s" % (D, L))
    e.label(D)
    e("v_xor_b32 %s, s60, %s" % (v(QS + 16), v(QS + 3)))
    for j in range(1, 4):
        e("v_bitop3_b32 %s, %s, %s, s60 bitop3:0xf6" % (v(QS + 16), v(QS + 16), v(QS + 4 * j + 3)))
    for j in range(4):
        e("v_and_b32 %s, -16, %s" % (v(QS + 4 * j + 3), v(QS + 4 * j + 3)))
    for pr in range(2):
        for r in range(4):
            e("v_add_f32 %s, %s, %s" % (v(A0 + 4 * pr + r), v(QS + 8 * pr + r), v(QS + 8 * pr + 4 + r)))
    e("v_lshlrev_b32 %s, 3, v1\nv_mov_b32 %s, 1" % (v(cO), v(cU)))
    for k in range(4):
        e("v_cvt_pk_bf16_f32 %s, %s, %s" % (v(A0 + 8 + k), v(A0 + 2 * k), v(A0 + 2 * k + 1)))
    e("ds_write_b64 %s, %s offset:%d\nds_write_b64 %s, %s offset:%d" % (v(cO), v(A0 + 8, 2), QB, v(cO), v(A0 + 10, 2), QB + 512))
    e("ds_write_b32 %s, %s offset:%d" % (v(cZ), v(cU), F_Q))
    e("v_and_b32 %s, 15, %s" % (v(QS + 16), v(QS + 16)))
    e("v_cmp_ne_u32 vcc, 0, %s\ns_nop 1\ns_cmp_eq_u64 vcc, 0\ns_cselect_b32 s61, 1, 0\nv_mov_b32 %s, s61" % (v(QS + 16), v(cU)))
    e("ds_write_b32 %s, %s offset:%d" % (v(cZ), v(cU), F_LOC))
    stamp()
    e("v_and_b32 %s, 1, v1\nv_bfe_u32 %s, v1, 1, 1\nv_lshlrev_b32 %s, 4, %s" % (v(cT), v(cU), v(cT), v(cT)))
    e("v_lshl_add_u32 %s, %s, 3, %s\nv_lshl_add_u32 %s, %s, 2, %s" % (v(A0 + 20), v(cU), v(cT), v(A0 + 21), v(cU), v(cT)))
    e("s_lshl_b32 s33, s2, 7\ns_add_u32 s33, s33, 0x%x\ns_add_u32 s38, s28, s33\ns_addc_u32 s39, s29, 0" % G_OFF)
    l1_out_addr(cA, cT, cU, 36, 0, TP)
    e("s_lshl_b32 s33, s3, %d\ns_add_u32 s33, s33, 0x%x\ns_add_u32 s40, s28, s33\ns_addc_u32 s41, s29, 0" % (11 + pb, L2_OFF + 4096))
    e("s_add_u32 s44, s40, 8192\ns_addc_u32 s45, s41, 0")
    if fpos >= 0:
        e("v_and_b32 %s, 15, v1\nv_lshlrev_b32 %s, 7, %s\nv_and_b32 %s, 48, v1" % (v(cT), v(cT), v(cT), v(cU)))
        e("s_lshl_b32 s33, s31, 11\ns_add_u32 s33, s33, 0x%x\nv_add3_u32 v106, %s, %s, s33" % (G_OFF + 64, v(cT), v(cU)))
    e("s_lshr_b32 s33, s3, 1\ns_lshl_b32 s33, s33, %d\ns_and_b32 s34, s3, 1\ns_lshl_b32 s34, s34, 3\ns_add_u32 s33, s33, s34" % (4 + pb))
    e("s_add_u32 s24, s24, s33\ns_addc_u32 s25, s25, 0\nv_mov_b32 %s, %s" % (v(cO), v(c16)))
    if trim & 2:
        e("v_and_b32 %s, 48, %s\nv_lshrrev_b32 %s, 4, v1\nv_lshl_add_u32 %s, %s, 1, %s" % (v(cO), v(c16), v(cT), v(cO), v(cT), v(cO)))
    def reference(n):
        cm("progress reference: mean time of the reporters at the milestone, time per unit")
        lds_wait(F_P, "ge", 4 * n + 1, cZ, cT, sleep=4)
        if rsh == 2:
            e("s_load_dwordx16 s[4:19], s[28:29], 0x%x" % (RP_OFF + 4352 * n))
        else:
            for k in range(nrep):
                e("s_load_dword s%d, s[28:29], 0x%x" % (4 + k, RP_OFF + 4352 * n + (k << rsh)))
        e("s_memrealtime s[58:59]\ns_waitcnt lgkmcnt(0)")
        e("s_add_u32 s20, s58, s62\ns_mov_b32 s21, %d\ns_mov_b32 s22, 0" % (cb * mdel // 10))
        for k in range(nrep):
            e("s_sub_u32 s33, s20, s%d\ns_cmp_lt_u32 s33, 2048\ns_cselect_b32 s21, s33, s21\ns_add_u32 s22, s22, s21" % (4 + k))
        e("s_lshr_b32 s22, s22, %d\ns_sub_u32 s22, s58, s22\ns_mov_b32 s21, %d" % (nrep.bit_length() - 1, cb * 16 // 10))
        if n and smar >= 0:
            e("s_sub_u32 s33, s22, s23\ns_mul_i32 s33, s33, %d\ns_lshr_b32 s33, s33, 8\ns_sub_u32 s33, s33, %d" % (
                4096 // (ms[n] - ms[n - 1]), smar * 16 // 10))
            e("s_max_i32 s21, s21, s33\ns_min_i32 s21, s21, %d" % (cb * 32 // 10))
        e("s_mov_b32 s23, s22\ns_mul_i32 s33, s21, %d\ns_lshr_b32 s33, s33, 4\ns_sub_u32 s22, s22, s33" % ms[n])
        e("v_mov_b32 v104, s22\nv_mov_b32 v105, s21\nds_write_b64 %s, v[104:105] offset:%d" % (v(cZ), F_REF))

    e("s_setprio 0")
    early = [n for n in range(len(ms)) if 8 * (ms[n] + mdel) + 4 <= 288 - gtrig] if ctl else []
    for n in early:
        reference(n)
    cm("touch the lines of the group exchange, then {max, sum} of the workgroup")
    if gst:
        e("s_and_b32 s50, s32, %d\ns_lshl2_add_u32 s50, s50, 1" % ((1 << gst) - 1))
    lds_wait(F_T2, "ge", "s50" if gst else 1, cZ, cT, sleep=8)
    if p2:
        with optional("s_cmp_ge_u32 s3, %d" % NF):
            if p2 == 3:
                e("v_lshlrev_b32 %s, 7, v1\nglobal_load_dword %s, %s, s[40:41] offset:-4096 sc1" % (v(cT), v(A0 + 46), v(cT)))
            else:
                for k in range(0, 8192, 128 // p2):
                    e("s_load_dword s48, s[40:41], %d glc" % (k - 4096))
    if ot:
        with optional("s_cmp_ge_u32 s3, %d" % NF):
            e("s_mov_b64 exec, 1\nglobal_load_dword %s, %s, s[24:25] %s\ns_mov_b64 exec, -1" % (v(A0 + 46), v(cZ), otf))
    if pre1 == 1:
        pretouch(-1)
        e.waitvm()
        if pdirty:
            with optional("s_cmp_lg_u32 s61, 1"):
                e("v_not_b32 %s, %s" % (v(cU), v(TP)))
                e("global_store_dword %s, %s, s[36:37]" % (v(cA), v(cU)))
                e("v_add_u32 %s, 0x4000, %s\nglobal_store_dword %s, %s, s[36:37]" % (v(cT), v(cA), v(cT), v(cU)))
    lds_wait(F_B1, "eq", 4, cZ, cT, sleep=1)
    for k in range(4):
        e("ds_read_b64 %s, %s offset:%d" % (v(A0 + 2 * k, 2), v(A0 + 20), MW + 32 * k))
    e("s_waitcnt lgkmcnt(0)")
    GN = 56
    e("v_max3_f32 %s, %s, %s, %s\nv_max_f32 %s, %s, %s" % (v(GN), v(A0), v(A0 + 2), v(A0 + 4), v(GN), v(GN), v(A0 + 6)))
    for k in range(4):
        e("v_sub_f32 %s, %s, %s" % (v(A0 + 2 * k), v(A0 + 2 * k), v(GN)))
    for k in range(4):
        e("v_exp_f32 %s, %s" % (v(A0 + 2 * k), v(A0 + 2 * k)))
    e("v_mul_f32 %s, %s, %s" % (v(GN + 2), v(A0), v(A0 + 1)))
    for k in range(1, 4):
        e("v_fma_f32 %s, %s, %s, %s" % (v(GN + 2), v(A0 + 2 * k), v(A0 + 2 * k + 1), v(GN + 2)))
    e("v_mov_b32 %s, s62\nv_mov_b32 %s, s63\nv_mov_b32 %s, 1" % (v(GN + 1), v(GN + 3), v(cU)))
    e("ds_write_b32 %s, %s offset:%d\nds_write_b32 %s, %s offset:%d" % (v(A0 + 21), v(GN), ML, v(cZ), v(cU), F_ML))
    stamp()
    if be:
        cm("sum the B partials of the four waves and send them")
        lds_wait(F_DB, "eq", 4, cZ, cT, sleep=2)
        e("s_add_u32 s46, s36, 16384\ns_addc_u32 s47, s37, 0\ns_waitcnt lgkmcnt(0)")
        sumpub(DB_L, A0, c16, cA, 46, TP)
    jitter(3)
    jitter(3)
    e("s_mov_b64 exec, 0xff")
    groupstore("global_store_dwordx4 %s, %s, s[38:39]" % (v(c16), v(GN, 4)))
    e("s_mov_b64 exec, -1")
    for n in range(len(early), len(ms) if ctl else 0):
        reference(n)
    if w4 and blate:
        lds_wait(F_DB, "eq", 4, cZ, cT, sleep=2)
        e("s_add_u32 s46, s36, 16384\ns_addc_u32 s47, s37, 0\ns_waitcnt lgkmcnt(0)")
        sumpub(DB_L, 112, c16, cA, 46, TP, False)
    elif w4:
        cm("sum the B partials of the four waves and send them")
        lds_wait(F_DB, "eq", 4, cZ, cT, sleep=2)
        e("s_add_u32 s46, s36, 16384\ns_addc_u32 s47, s37, 0\ns_waitcnt lgkmcnt(0)")
        sumpub(DB_L, A0, c16, cA, 46, TP)
    if wc:
        e("v_and_b32 v110, 7, v1\nv_lshlrev_b32 v111, 2, v110\nv_lshlrev_b32 v110, 7, v110")
        e("s_lshl_b32 s34, s31, 11\ns_lshr_b32 s35, s32, 2\ns_lshl_b32 s35, s35, 4\ns_add_u32 s34, s34, s35")
        e("s_add_u32 s34, s34, 0x%x\ns_add_u32 s52, s28, s34\ns_addc_u32 s53, s29, 0\ns_mov_b64 exec, 0xffff" % G_OFF)
        lg = "global_load_dwordx4 v[112:115], v110, s[52:53] sc1\nglobal_load_dwordx4 v[116:119], v110, s[52:53] offset:1024 sc1"
        e(lg, "g")
        weights(112, 116, cT, cU, lg)
        e("ds_write_b32 v111, v112 offset:%d\nds_write_b32 v111, v116 offset:%d\ns_mov_b64 exec, -1" % (WT, WT + 32))
    e("s_setprio 3")
    if warm and warm2:
        e("s_getpc_b64 s[42:43]")
        e.label("L_pc1")
        e("s_sub_u32 s42, s42, L_pc1-L_sdone+4096\ns_subb_u32 s43, s43, 0")
        e("v_lshlrev_b32 %s, 7, v1\nv_min_u32 %s, L_end-L_sdone+4096, %s" % (v(cU), v(cU), v(cU)))
        e("global_load_dword %s, %s, s[42:43]" % (v(A0 + 44), v(cU)))
    e("s_waitcnt lgkmcnt(0)\ns_barrier")
    if w4 and blate:
        groupstore("global_store_dwordx4 %s, %s, s[46:47]" % (v(cA), v(112, 4)))
    cm("sum the A partials of the four waves and send them")
    sumpub(DA_L, A0, c16, cA, 36, TP)
    if pfirst:
        e("s_barrier")
    stamp()
    e("s_cmp_ge_u32 s3, %d\ns_cbranch_scc1 L_cdone" % NF)
    cm("level 2 (workgroups 0..71): 16 output columns = sum over 128 row slices")
    F0 = 128
    if tpr:
        e("s_setprio 0")
    if fpos >= 0:
        NL, J = e.newlabel("nl"), e.newlabel("fj")
        e("s_cmp_lg_u32 s61, 1\ns_cbranch_scc1 %s" % NL)
        lds_wait(F_T3, "ge", 1, cZ, cT)
        L = e.newlabel("fp")
        e("s_mov_b32 s35, 64\ns_mov_b32 exec_hi, 0xffff")
        e.label(L)
        e("global_load_dwordx2 v[108:109], v106, s[28:29] sc1\ns_waitcnt vmcnt(0)")
        e("v_xor_b32 v108, s62, v108\nv_bitop3_b32 v108, v108, v109, s63 bitop3:0xf6\nv_cmp_ne_u32 vcc, 0, v108")
        e("s_cbranch_vccz %s\ns_sub_u32 s35, s35, 1\ns_cbranch_scc0 %s\ns_branch %s" % (J, L, J))
        e.label(NL)
        lds_wait(F_T3, "ge", 6, cZ, cT)
        e.label(J)
        e("s_mov_b64 exec, -1")
        e.vm = []
    elif fb:
        e("s_barrier")
    elif fdel:
        lds_wait(F_T3, "ge", fdel + w4, cZ, cT)
    if fsl:
        e("s_sleep %d" % fsl)
    L, D = e.newlabel("l2"), e.newlabel("l2d")
    e("s_mov_b32 s35, %d" % SPIN)
    e.label(L)
    NL2 = 2 << pb
    for k in range(NL2):
        e("global_load_dwordx4 %s, %s, s[%d:%d] offset:%d %s" % (v(F0 + 4 * k, 4), v(c16), 40 + k // 8 * 4, 41 + k // 8 * 4, 1024 * (k % 8) - 4096, l2lf))
    for k in range(NL2):
        x = F0 + 4 * k
        e("s_waitcnt vmcnt(%d)" % (NL2 - 1 - k))
        for r in range(4):
            e("v_xor_b32 %s, %s, %s" % (v(x + r), v(x + r), v(TG + r)))
        if k == 0:
            e("v_or_b32 %s, %s, %s\nv_or_b32 %s, %s, %s" % (v(cT), v(x), v(x + 1), v(cU), v(x + 2), v(x + 3)))
        else:
            e("v_or3_b32 %s, %s, %s, %s\nv_or3_b32 %s, %s, %s, %s" % (v(cT), v(cT), v(x), v(x + 1), v(cU), v(cU), v(x + 2), v(x + 3)))
            if trim & 1:
                for r in (0, 2):
                    e("v_pk_add_f32 %s, %s, %s" % (v(F0 + r, 2), v(F0 + r, 2), v(x + r, 2)))
            else:
                for r in range(4):
                    e("v_add_f32 %s, %s, %s" % (v(F0 + r), v(F0 + r), v(x + r)))
    e.vm = []
    e("v_or_b32 %s, %s, %s\nv_and_b32 %s, 0xff, %s\nv_cmp_ne_u32 vcc, 0, %s" % (v(cT), v(cT), v(cU), v(cT), v(cT), v(cT)))
    e("s_cbranch_vccz %s\ns_sub_u32 s35, s35, 1\ns_cbranch_scc0 %s" % (D, L))
    e.label(D)
    e.hist = []
    stamp()
    rr = [F0, F0 + 1, F0 + 2, F0 + 3]
    if trim & 2:
        e("v_permlane32_swap_b32 %s, %s\nv_permlane32_swap_b32 %s, %s" % (v(F0), v(F0 + 2), v(F0 + 1), v(F0 + 3)))
        e("v_pk_add_f32 %s, %s, %s" % (v(F0, 2), v(F0, 2), v(F0 + 2, 2)))
        e("v_permlane16_swap_b32 %s, %s\nv_add_f32 %s, %s, %s" % (v(F0), v(F0 + 1), v(F0), v(F0), v(F0 + 1)))
        dppred("v_add_f32", [F0], ["row_ror:4", "row_ror:8"])
        e("v_cvt_pk_bf16_f32 %s, %s, %s\ns_mov_b32 exec_lo, 0x000f000f\ns_mov_b32 exec_hi, 0x000f000f" % (v(A0), v(F0), v(F0)))
        e("global_store_short %s, %s, s[24:25] %s" % (v(cO), v(A0), outf))
    else:
        dppred("v_add_f32", rr, ["row_ror:%d" % (1 << k) for k in range(pb, 4)])
        xrow("v_add_f32", rr, [F0 + 4, F0 + 5, F0 + 6, F0 + 7])
        e("v_cvt_pk_bf16_f32 %s, %s, %s\nv_cvt_pk_bf16_f32 %s, %s, %s" % (v(A0), v(F0), v(F0 + 1), v(A0 + 1), v(F0 + 2), v(F0 + 3)))
        e("s_mov_b64 exec, %d\nglobal_store_dwordx2 %s, %s, s[24:25] %s" % ((1 << (1 << pb)) - 1, v(cO), v(A0, 2), outf))
    e.label("L_cdone")
    stamp()
    write_stamps(cT, "c")
    e.label("L_end")
    e("s_endpgm")
    e.raw('.section .rodata,"a"\n.p2align 6\n.amdhsa_kernel %s' % KN)
    e.raw("  .amdhsa_next_free_vgpr %d\n  .amdhsa_next_free_sgpr 102\n  .amdhsa_accum_offset %d" % (NV, (NV + 3) // 4 * 4))
    e.raw("  .amdhsa_group_segment_fixed_size 0\n  .amdhsa_kernarg_size 104\n  .amdhsa_user_sgpr_count 2")
    e.raw("  .amdhsa_user_sgpr_kernarg_segment_ptr 1\n  .amdhsa_system_sgpr_workgroup_id_x 1")
    e.raw("  .amdhsa_float_denorm_mode_32 3\n.end_amdhsa_kernel")
    txt = e.text()
    if nocomp:
        txt = "\n".join(l for l in txt.split("\n") if not l.strip().startswith(("v_mfma", "v_perm_b32", "v_add_f32_dpp", "v_mov_b32_dpp", "s_nop", "v_exp", "v_fma"))) + "\n"
    return txt


if __name__ == "__main__":
    for spec in sys.argv[1:]:
        name, _, kv = spec.partition(":")
        kw = {}
        for p in kv.split(","):
            if not p:
                continue
            k, val = p.split("=")
            val = val.replace("+", " ")
            kw[k] = int(val) if val.lstrip("-").isdigit() else ("" if val == "none" else val)
        path = name if "/" in name else "work/%s.s" % name
        open(path, "w").write(gen(**kw))
```

```python
import sys, struct, math, contextlib
sys.path.insert(0, "work")
from asmlib import Em

KN = "concat_heads__gqa_block_cached__sliding_block_cached__decode_kernel"
HDR = open("concat_heads__gqa_block_cached__sliding_block_cached__decode.s.ref").read().split("; Override launch")[0]

Q_OFF, G_OFF, X_OFF, RP_OFF, L1_OFF, L2_OFF = 0x0, 0x10000, 0x20000, 0x24000, 0x40000, 0xC0000
STAMP_OFF = 0x10000000
QP, QB, FL, ML, MW, DA_L, DB_L, W8_L, LDS_SZ = 0, 2048, 3072, 3328, 3392, 4096, 8192, 12288, 16384
WT = 3584
F_QP, F_Q, F_T1, F_T2, F_B1, F_ML, F_N0, F_N1, F_T3, F_LOC, F_REF, F_SLP, F_P, F_DB = [FL + 4 * i for i in range(14)]
AMAPS = {
    0: ([13, 15, 11, 16, 19, 22, 10, 20, 14, 18, 21, 17, 12], [0, 0, 0, 0, 1, 128, 64], [8, 0, 0, 0]),
    1: ([21, 15, 11, 16, 19, 10, 22, 20, 14, 18, 17, 12, 13], [0, 0, 0, 0, 1, 128, 64], [8, 0, 0, 1]),
    2: ([21, 10, 22, 19, 15, 13, 17, 11, 12, 18, 14, 16, 20], [32, 128, 0, 8, 64, 1, 0], [0, 0, 0, 0]),
    3: ([21, 10, 16, 22, 19, 17, 20, 14, 12, 13, 15, 18, 11], [128, 16, 0, 32, 0, 0, 32], [0, 4, 4, 1]),
    4: ([13, 14, 16, 22, 19, 17, 20, 10, 12, 21, 11, 18, 15], [8, 0, 0, 0, 256, 0, 8], [8, 4, 0, 0]),
    5: ([21, 17, 22, 16, 19, 10, 12, 14, 20, 18, 15, 13, 11], [0, 0, 16, 0, 0, 0, 4], [1, 1, 0, 1]),
    6: ([13, 11, 16, 22, 19, 17, 14, 12, 10, 21, 20, 18, 15], [0, 0, 0, 0, 0, 0, 1], [1, 0, 0, 2]),
    7: ([13, 14, 12, 16, 20, 22, 10, 19, 15, 11, 21, 18, 17], [0, 256, 8, 0, 1, 128, 0], [1, 0, 2, 8]),
    8: ([10, 12, 19, 15, 13, 21, 22, 16, 17, 11, 18, 14, 20], [2, 256, 0, 64, 2, 64, 64], [0, 0, 0, 4]),
    9: ([10, 12, 19, 15, 17, 22, 21, 16, 13, 20, 18, 14, 11], [128, 0, 0, 0, 256, 64, 128], [0, 4, 4, 0]),
    10: ([17, 15, 13, 19, 22, 10, 14, 21, 16, 20, 18, 11, 12], [512, 0, 0, 8, 64, 0, 256], [0, 8, 1, 2]),
    11: ([21, 14, 18, 22, 19, 17, 12, 11, 20, 13, 10, 16, 15], [0, 0, 8, 0, 1, 0, 8], [0, 4, 4, 4]),
    12: ([13, 14, 20, 15, 19, 22, 10, 12, 16, 11, 18, 21, 17], [0, 64, 8, 256, 1, 128, 0], [0, 0, 0, 0]),
    13: ([17, 21, 19, 16, 22, 10, 14, 13, 15, 20, 12, 11, 18], [0, 4, 0, 8, 64, 16, 256], [0, 2, 0, 1]),
    14: ([13, 10, 20, 16, 19, 14, 22, 12, 15, 11, 21, 18, 17], [0, 64, 0, 0, 1, 16, 0], [0, 4, 0, 0]),
}
BMAPS = {
    0: ([13, 11, 18, 12, 19, 14, 16, 15, 10, 17], [4, 16, 0, 1], [1, 0, 0, 0]),
    1: ([13, 11, 18, 19, 12, 17, 14, 16, 15, 10], [2, 16, 0, 1], [0, 0, 0, 0]),
    2: ([13, 12, 17, 19, 18, 10, 14, 16, 15, 11], [512, 16, 0, 1], [0, 0, 0, 0]),
}


def conv(perm, scr, rm):
    nt = len(scr)
    B, H = [256, 512] + [1 << b for b in perm], [0] * 4
    for i in range(nt):
        for j in range(10):
            if scr[i] >> j & 1:
                if j < 6:
                    B[2 + nt + j] ^= 1 << perm[i]
                else:
                    H[j - 6] ^= 1 << perm[i]
    for i in range(4):
        for k in range(4):
            if rm[i] >> k & 1:
                H[k] ^= B[4 + nt + i]
    return B, H


def bits(B, H):
    f = lambda l: [sum(1 << b for b in x) for x in l]
    return f(B), f(H)


def rank(vs):
    vs, r = list(vs), 0
    for b in range(8, 23):
        p = [i for i, x in enumerate(vs) if x >> b & 1]
        if p:
            r += 1
            q = vs.pop(p[0])
            vs = [x ^ q if x >> b & 1 else x for x in vs]
    return r


AMAPS = {k: conv(*x) for k, x in AMAPS.items()}
BMAPS = {k: conv(*x) for k, x in BMAPS.items()}
AMAPS[20] = bits([[8], [9], [8, 15, 16, 20], [13], [10, 12, 14], [16, 22], [19], [15, 17, 20], [14, 19], [8, 12, 17], [20], [11], [8, 14, 18], [21], [8, 9, 16]],
                 [[10, 13, 17, 18, 20, 21], [9], [8, 21], [8, 11]])
AMAPS[21] = bits([[12, 19], [8], [16], [13], [9, 20], [22], [19, 20], [14, 19], [10], [8, 15, 17], [9], [11], [16, 21], [14, 18], [17]],
                 [[10, 14], [22], [19, 21], [8, 9]])
CSC = struct.unpack("<I", struct.pack("<f", 128 ** -0.5 * math.log2(math.e)))[0]
SPIN = 1 << 19
MF = "v_mfma_f32_16x16x32_bf16"


DOC = r"""; ---------------------------------------------------------------------------------------------------------------------
;
; Arithmetic.  All products run on v_mfma_f32_16x16x32_bf16 with the data in the layout the coalesced load leaves:
;   P.V, x.wq, o.wo: the other operand is one-hot (one bf16 per lane, placed with v_perm_b32).
;   Stores are write-through (sc1); inside a group they stay in the L2 only when every member reported the same XCD.
; ---------------------------------------------------------------------------------------------------------------------"""


def v(a, n=1):
    return "v%d" % a if n == 1 else "v[%d:%d]" % (a, a + n - 1)


def gen(stamps=0, kvflags="nt", wflags="nt", warm=1, touch=0, W="5", L="4568", W0=5, Wc=5, boost=1, wqw=6,
        raw=0, fine=0, enc="", amap=14, bmap=2, hs="lo", qtrig=16, gtrig=80, gld=40, okeep=2, pre1=1, nsl=0, Wend=0, nend=0,
        ctl=2, cb=1063, t0=-24, t1=26, t2=75, mlist="5.9.15.21.28", mdel=2, l1f="auto", fdel=3, fack=1, outf="", order=2, xpos=2, pst=0, wl=10, olast=0, Wwo=7, fsl=0, l1c=1, stouch=0, pb=2, rsh=8, rf="sc1", nrep=8, swapt=0, smar=20, LP="", npump=0, rt=0, l1lf="sc1", l1sf="", noq=0, warm2=0, wob=0, wthr="", wearly=0, LW="", qsf="sc1", qlf="sc1", spre=0, qpre=0, swarm=0, fpos=-1, npoll=1, rcor=0, lcor=0, jit=0, nocomp=0, w4=0, g8a=12, g8d=3, wcap=99, tu=99, u0=-12, u1=14, u2=45, dbl=99, cpr=3, csl=0, trim=7, dg=0, pdirty=0, wskip=0, pfirst=0, wf=0, blate=0, gst=0, gsd=4, be=0, scp=22, wc=1, hb=0, sb=1, pend=0, qb=0, ot=0, otf="", p2=0, fb=0, tpr=0, wb=0, wbn=240, ssp=0, pad=0):
    if wf:
        w4, g8a = 1, -2
    NF = 288 >> pb
    W = str(W)
    LV0 = [int(c, 16) for c in str(L)]
    if ctl:
        W = "%x" % LV0[3]
    ms = [int(x) for x in str(mlist).split(".")]
    sl1 = sl2 = l2pad = 0
    l2q = 1
    l2sf = l2lf = "sc1"
    e = Em()
    e.raw(HDR.rstrip())
    e.raw("; @launch grid=(256,1,1) block=(320,1,1) lds=%d" % (LDS_SZ if wf else W8_L))
    e.raw(DOC)
    e.raw('.amdgcn_target "amdgcn-amd-amdhsa--gfx950"')
    if pad:
        e.raw(".text\n.fill %d, 4, 0xbf810000" % (64 * pad))
    e.raw(".text\n.globl %s\n.p2align 8\n.type %s,@function\n%s:" % (KN, KN, KN))
    nst = [0]
    cm = lambda t: e.raw("; " + t)

    def stamp(p=0):
        if stamps and (p <= pst) and not (pst and nst[0] >= 11):
            assert nst[0] < 12
            e("s_memrealtime s[%d:%d]" % (70 + 2 * nst[0], 71 + 2 * nst[0]))
            nst[0] += 1

    def write_stamps(vt, role):
        if not stamps:
            return
        if enc:
            e("s_waitcnt lgkmcnt(0)\ns_mov_b64 exec, 1\nv_mov_b32 %s, 0" % v(vt))
            if role == "c":
                e("s_sleep 127\ns_sleep 127")
                e("s_not_b32 s33, s70\nv_mov_b32 %s, s33\nglobal_atomic_umax %s, %s, s[26:27] offset:128" % (v(vt + 1), v(vt), v(vt + 1)))
            if enc[0] == role:
                idx = int(enc[1:-1])
                e("s_mov_b32 s33, s%d" % (70 + 2 * idx))
                if enc[-1] == "n":
                    e("s_not_b32 s33, s33")
                skip = e.newlabel("sk")
                if role == "s" and idx == 9:
                    e("s_cmp_eq_u32 s30, 3\ns_cbranch_scc1 %s" % skip)
                if role == "c" and idx == 6:
                    e("s_cmp_ge_u32 s3, 72\ns_cbranch_scc1 %s" % skip)
                if role == "s":
                    e("s_sleep 127\ns_sleep 127")
                e("v_mov_b32 %s, s33\nglobal_atomic_umax %s, %s, s[26:27] offset:192" % (v(vt + 1), v(vt), v(vt + 1)))
                e.label(skip)
            if role == "c":
                L1, L2, D = e.newlabel("e1"), e.newlabel("e2"), e.newlabel("ed")
                e("s_cmp_lg_u32 s2, 0\ns_cbranch_scc1 %s" % D)
                e.label(L1)
                e("s_sleep 8\ns_memrealtime s[60:61]\ns_waitcnt lgkmcnt(0)\ns_sub_u32 s33, s60, s70\ns_cmp_lt_u32 s33, 19000\ns_cbranch_scc1 %s" % L1)
                e("s_load_dword s62, s[26:27], 128 glc\ns_load_dword s63, s[26:27], 192 glc\ns_waitcnt lgkmcnt(0)")
                e("s_not_b32 s62, s62")
                if enc[-1] == "n":
                    e("s_not_b32 s63, s63")
                e("s_sub_u32 s63, s63, s62")
                if enc == "z":
                    e("s_mov_b32 s63, 0")
                e("s_min_u32 s63, s63, 20000\ns_lshl_b32 s63, s63, 2\ns_add_u32 s63, s63, 20000")
                e.label(L2)
                e("s_memrealtime s[60:61]\ns_waitcnt lgkmcnt(0)\ns_sub_u32 s33, s60, s62\ns_cmp_lt_u32 s33, s63\ns_cbranch_scc1 %s" % L2)
                e.label(D)
            return
        e("s_waitcnt lgkmcnt(0)")
        e("s_mul_i32 s33, s3, 6\ns_add_u32 s33, s33, s30\ns_lshl_b32 s33, s33, 6\ns_add_u32 s33, s33, 0x%x" % STAMP_OFF)
        e("s_mov_b64 exec, 1\nv_mov_b32 %s, s33" % v(vt))
        for i in range(16):
            e("v_mov_b32 %s, s%d" % (v(vt + 1), 70 + 2 * min(i, nst[0] - 1)))
            e("global_store_dword %s, %s, s[28:29] offset:%d" % (v(vt), v(vt + 1), 4 * i))

    def jitter(k):
        if jit >> k & 1:
            L = e.newlabel("jt")
            e("s_memtime s[100:101]\ns_waitcnt lgkmcnt(0)\ns_mul_i32 s100, s100, 0x9e3779b1\ns_lshr_b32 s100, s100, 27")
            e.label(L)
            e("s_sleep 16\ns_sub_u32 s100, s100, 1\ns_cbranch_scc0 %s" % L)

    def lds_wait(flag, cmp, val, vz, vt, sleep=0):
        if raw:
            return
        L, D = e.newlabel("lw"), e.newlabel("lwd")
        e("s_mov_b32 s35, %d" % (SPIN * 16))
        e.label(L)
        e("ds_read_b32 %s, %s offset:%d\ns_waitcnt lgkmcnt(0)\nv_readfirstlane_b32 s34, %s" % (v(vt), v(vz), flag, v(vt)))
        e("s_cmp_%s_u32 s34, %s\ns_cbranch_scc1 %s" % (cmp, val, D))
        if sleep:
            e("s_sleep %d" % sleep)
        e("s_sub_u32 s35, s35, 1\ns_cbranch_scc0 %s" % L)
        e.label(D)

    @contextlib.contextmanager
    def optional(skipcmp):
        J = e.newlabel("opt")
        e("%s\ns_cbranch_scc1 %s" % (skipcmp, J))
        hist, vm = list(e.hist), list(e.vm)
        yield
        e("s_nop 1")
        e.label(J)
        e.hist, e.vm = hist, vm

    def xrow(op, r, t):
        for sw in ("v_permlane16_swap_b32", "v_permlane32_swap_b32"):
            for a, b in zip(r, t):
                e("v_mov_b32 %s, %s" % (v(b), v(a)))
            for a, b in zip(r, t):
                e("%s %s, %s" % (sw, v(a), v(b)))
            for a, b in zip(r, t):
                e("%s %s, %s, %s" % (op, v(a), v(a), v(b)))

    def dppred(op, r, pats):
        for p in pats:
            for a in r:
                e("%s_dpp %s, %s, %s %s row_mask:0xf bank_mask:0xf" % (op, v(a), v(a), v(a), p))

    def tagsel():
        for r in range(4):
            e("s_mov_b32 s%d, 0x%08x" % (64 + r, 0x07060500 + r))

    def tagreg(dst, bit, tmp, put=None, chk=None):
        e("v_and_b32 %s, %d, v1\nv_cmp_ne_u32 vcc, 0, %s\nv_mov_b32 %s, s62\nv_mov_b32 %s, s63" % (v(tmp), bit, v(tmp), v(dst), v(tmp)))
        e("v_cndmask_b32 %s, %s, %s, vcc" % (v(dst), v(dst), v(tmp)))
        if chk is not None:
            for r in (3, 2, 1, 0):
                e("v_bfe_u32 %s, %s, %d, 8" % (v(chk + r), v(dst), 8 * r))

    def tagput(x, t):
        for r in range(4):
            e("v_perm_b32 %s, %s, %s, s%d" % (v(x + r), v(x + r), v(t), 64 + r))

    def tagcheck(regs, t, a0, a1):
        for k, x in enumerate(regs):
            for r in range(4):
                e("v_xor_b32 %s, %s, %s" % (v(x + r), v(x + r), v(t + r)))
            if k == 0:
                e("v_or_b32 %s, %s, %s\nv_or_b32 %s, %s, %s" % (v(a0), v(x), v(x + 1), v(a1), v(x + 2), v(x + 3)))
            else:
                e("v_or3_b32 %s, %s, %s, %s\nv_or3_b32 %s, %s, %s, %s" % (v(a0), v(a0), v(x), v(x + 1), v(a1), v(a1), v(x + 2), v(x + 3)))
        e("v_or_b32 %s, %s, %s\nv_and_b32 %s, 0xff, %s\nv_cmp_ne_u32 vcc, 0, %s" % (v(a0), v(a0), v(a1), v(a0), v(a0), v(a0)))

    def groupstore(txt):
        if l1f != "auto":
            e(txt + " " + l1f)
            return
        A, J = e.newlabel("gs"), e.newlabel("gsj")
        e("s_cmp_eq_u32 s61, 1\ns_cbranch_scc1 %s\n%s sc1\ns_branch %s" % (A, txt, J))
        e.label(A)
        e(txt + " " + l1sf)
        e.label(J)

    def l1_out_addr(dst, t0, t1, sb, pr, tg):
        if l1c:
            e("v_lshlrev_b32 %s, 8, v1" % v(dst))
            e("s_lshl_b32 s33, s31, 15\ns_lshl_b32 s34, s32, 4\ns_add_u32 s33, s33, s34\ns_add_u32 s33, s33, 0x%x" % (L1_OFF + 16384 * pr))
            e("s_add_u32 s%d, s28, s33\ns_addc_u32 s%d, s29, 0" % (sb, sb + 1))
            e("s_bitcmp1_b32 s32, 0\ns_cselect_b32 s33, s63, s62\nv_mov_b32 %s, s33" % v(tg))
            return
        e("v_lshrrev_b32 %s, 3, v1\nv_lshlrev_b32 %s, 11, %s\nv_and_b32 %s, 7, v1\nv_lshl_add_u32 %s, %s, 4, %s" % (
            v(t0), v(t0), v(t0), v(t1), v(dst), v(t1), v(t0)))
        e("s_lshl_b32 s33, s31, 15\ns_lshl_b32 s34, s32, 7\ns_add_u32 s33, s33, s34\ns_add_u32 s33, s33, 0x%x" % (L1_OFF + 16384 * pr))
        e("s_add_u32 s%d, s28, s33\ns_addc_u32 s%d, s29, 0" % (sb, sb + 1))

    def sumpub(lds, a0, l16, adr, sb, t, send=True):
        for k in range(4):
            e("ds_read_b128 %s, %s offset:%d" % (v(a0 + 4 * k, 4), v(l16), lds + 1024 * k))
        e("s_waitcnt lgkmcnt(2)" if not stamps else "s_waitcnt lgkmcnt(0)")
        for k in range(4):
            e("v_add_f32 %s, %s, %s" % (v(a0 + k), v(a0 + k), v(a0 + 4 + k)))
        e("s_waitcnt lgkmcnt(0)")
        for k in range(4):
            e("v_add_f32 %s, %s, %s" % (v(a0 + 8 + k), v(a0 + 8 + k), v(a0 + 12 + k)))
        for k in range(4):
            e("v_add_f32 %s, %s, %s" % (v(a0 + k), v(a0 + k), v(a0 + 8 + k)))
        tagput(a0, t)
        jitter(1)
        if not send:
            return
        groupstore("global_store_dwordx4 %s, %s, s[%d:%d]" % (v(adr), v(a0, 4), sb, sb + 1))

    e("s_load_dwordx16 s[4:19], s[0:1], 0\ns_load_dwordx8 s[20:27], s[0:1], 64\ns_load_dwordx2 s[28:29], s[0:1], 96")
    stamp()
    cm("s30 = wave, s31 = kv head, s32 = split; later s3 = workgroup id, s2 = head*16 + split")
    e("v_readfirstlane_b32 s30, v0\nv_and_b32 v1, 63, v0\ns_and_b32 s31, s2, 15\ns_lshr_b32 s32, s2, 4")
    e("s_cmp_ge_u32 s32, 16\ns_cbranch_scc1 L_end")
    e("s_lshr_b32 s30, s30, 6\ns_cmp_eq_u32 s30, 4\ns_cbranch_scc1 L_comm")
    ids = "s_mov_b32 s3, s2\ns_lshl_b32 s2, s31, 4\ns_or_b32 s2, s2, s32"
    base_st = nst[0]

    def wavebase(dst, cfg, const):
        B, H = cfg
        assert rank(B) == len(B) and max(B + H) < 1 << (8 + len(B))
        masks = {b: sum(((x >> b) & 1) << j for j, x in enumerate(B[-6:] + H)) for b in range(8, 23)}
        e("s_lshl_b32 s%d, s31, 23" % dst)
        if const:
            e("s_or_b32 s%d, s%d, 0x%x" % (dst, dst, const))
        for b, m in sorted(masks.items()):
            if m == 0:
                continue
            if m & (m - 1) == 0:
                e("s_bfe_u32 s33, s41, 0x%x" % (0x10000 + m.bit_length() - 1))
            else:
                e("s_and_b32 s33, s41, 0x%x\ns_bcnt1_i32_b32 s33, s33\ns_and_b32 s33, s33, 1" % m)
            e("s_lshl_b32 s33, s33, %d\ns_or_b32 s%d, s%d, s33" % (b, dst, dst))

    def tmap(cfg, n):
        r = 0
        for i, x in enumerate(cfg[0][2:-6]):
            r ^= x if n >> i & 1 else 0
        return r

    vZ, vKO, vVO, vT0, vT1, vT2, vT3 = 2, 3, 4, 5, 6, 7, 8
    vMR, vLR, vMB, vLB, vPB, vFA, vDL, vFT = 9, 10, 11, 12, 13, 14, 15, 16
    vM0, vAD, vWO, vRF, vNX = 17, 18, 19, 252, 254
    SLO, SHI = 20, 24
    QB0, QB1 = 28, 32
    DA0, DBc = 36, 40
    GR, PI0, PI1 = 44, 48, 52
    DA1 = PI0
    BC = 56
    DQ, TT, SS = 64, 80, 84
    OP = 92
    RING = 124
    NV = 255
    slot = lambda i: RING + 32 * (i if i < 4 else i % 2)
    WO = slot(2)
    K0, NW = (24, 9) if wf else (32, 0)
    if wf:
        slot = lambda i: OP if i == 2 else RING + 32 * (i if i < 2 else (i + 1) % 2)

    cm("==== streaming waves.  q projection: 72 rows x 64 columns of wq per wave")
    e("s_and_b32 s33, s32, 4\ns_add_u32 s33, s33, s30\ns_mulk_i32 s33, 72")
    e("v_lshrrev_b32 %s, 4, v1\nv_mad_u32_u24 %s, %s, 18, s33\nv_bfe_u32 %s, v1, 3, 1\nv_add_u32 %s, %s, %s" % (
        v(vT3), v(vT3), v(vT3), v(vT0), v(vT0), v(vT0), v(vT3)))
    e("s_and_b32 s34, s32, 3\ns_lshl2_add_u32 s34, s31, s34\ns_lshl_b32 s34, s34, 7")
    e("v_and_b32 %s, 7, v1\nv_lshlrev_b32 %s, 4, %s\nv_add_u32 %s, s34, %s" % (v(vT1), v(vT1), v(vT1), v(vT2), v(vT1)))
    e("v_lshl_add_u32 %s, %s, 13, %s" % (v(vFA), v(vT0), v(vT2)))
    e("s_bitset0_b32 s32, 31\ns_movk_i32 s35, 0x4000\ns_cmp_ge_u32 s32, 8".split("\n", 1)[1])
    e("s_waitcnt lgkmcnt(0)")
    e("s_cselect_b64 s[36:37], s[20:21], s[10:11]")
    stamp(1)
    WQ = RING if wf else slot(2)
    XR = WQ + 40

    def ldwq(t):
        e("global_load_dwordx4 %s, %s, s[36:37] %s" % (v(WQ + 4 * t, 4), v(vFA), wflags), "wq%d" % t)
        if t < 8:
            e("v_add_u32 %s, %s, %s" % (v(vFA), "s35" if t < wqw else "0x4000", v(vFA)))

    for t in range(wqw):
        ldwq(t)
        if t == 0 and ssp & 1:
            e("s_cselect_b64 s[38:39], s[14:15], s[4:5]\ns_load_dword s46, s[38:39], 0")
        if t == xpos:
            e("s_cselect_b64 s[38:39], s[14:15], s[4:5]\nv_lshlrev_b32 %s, 1, %s" % (v(vT3), v(vT3)))
            for k in range(3):
                e("global_load_dwordx3 %s, %s, s[38:39] offset:%d" % (v(XR + 4 * k, 3), v(vT3), 12 * k), "x")
    e("s_cselect_b64 s[10:11], s[22:23], s[12:13]")
    if stouch:
        e("s_lshl2_add_u32 s33, s31, s30\ns_lshl_b32 s33, s33, 21\nv_mov_b32 %s, s33\ns_mov_b64 exec, 1" % v(vT2))
        e("global_load_dword %s, %s, s[6:7] nt\ns_mov_b64 exec, -1" % (v(GR), v(vT2)), "t")
    if ssp & 2:
        e("s_lshl2_add_u32 s33, s31, s30\ns_lshl_b32 s33, s33, 21\ns_load_dword s46, s[6:7], s33")
    if ssp & 4:
        e("s_load_dword s46, s[8:9], s33\ns_or_b32 s33, s33, 0x600000\ns_load_dword s46, s[16:17], s33\ns_load_dword s46, s[18:19], s33")
    e(ids)
    if swapt:
        e("s_bitcmp1_b32 s31, %d" % (swapt - 1))
        e("s_cselect_b64 s[46:47], s[16:17], s[6:7]\ns_cselect_b64 s[16:17], s[6:7], s[16:17]\ns_mov_b64 s[6:7], s[46:47]")
        e("s_cselect_b64 s[46:47], s[18:19], s[8:9]\ns_cselect_b64 s[18:19], s[8:9], s[18:19]\ns_mov_b64 s[8:9], s[46:47]")
    stamp(1)
    cm("lane offsets inside a 1 KiB load (K: 64-byte quads, V: linear) and the address map of problem A")
    e("v_lshlrev_b32 %s, 4, v1" % v(vVO))
    e("v_lshrrev_b32 %s, 4, v1\nv_lshlrev_b32 %s, 6, %s" % (v(vKO), v(vKO), v(vKO)))
    e("v_and_b32 %s, 3, v1\nv_lshl_add_u32 %s, %s, 4, %s" % (v(vT3), v(vKO), v(vT3), v(vKO)))
    e("s_lshl_b32 s41, s2, 2\ns_or_b32 s41, s41, s30")
    if rt:
        e("s_mov_b64 s[46:47], s[16:17]\ns_mov_b64 s[48:49], s[18:19]\ns_lshl_b32 s33, s3, 2\ns_or_b32 s33, s33, s30\ns_lshl_b32 s33, s33, 3")
        e("s_add_u32 s4, s28, 0x180000\ns_addc_u32 s5, s29, 0\ns_load_dwordx16 s[12:27], s[4:5], 0x2000\ns_load_dwordx2 s[44:45], s[4:5], s33\ns_load_dwordx2 s[94:95], s[4:5], 0x2040\ns_waitcnt lgkmcnt(0)")
        e("s_and_b32 s44, s44, 0x7ffff00\ns_and_b32 s45, s45, 0x7ffff00")
        e("s_and_b32 s26, s26, 0x7fff00\ns_and_b32 s27, s27, 0x7fff00\ns_and_b32 s94, s94, 0xfff00\ns_and_b32 s95, s95, 0xfff00")
        for k in range(11):
            e("s_and_b32 s%d, s%d, 0x%x" % (12 + k, 12 + k, 0x7fff00 if k < 7 else 0xfff00))
    else:
        wavebase(45, AMAPS[amap], 0)

    def segstart(dst, kind):
        lb = (AMAPS[amap] if kind[0] == "A" else BMAPS[bmap])[0][:2]
        lb = ["0x%x" % x for x in lb] if not rt else (["s26", "s27"] if kind[0] == "A" else ["s94", "s95"])
        if kind[1] == "K":
            e("v_xor_b32 %s, s%d, %s" % (v(dst), 45 if kind[0] == "A" else 44, v(vKO)))
        else:
            e("v_and_b32 %s, 0xf0, %s\nv_xor_b32 %s, s%d, %s" % (v(dst), v(vVO), v(dst), 45 if kind[0] == "A" else 44, v(dst)))
        for k in range(2):
            e("v_bfe_i32 %s, v1, %d, 1\nv_and_b32 %s, %s, %s\nv_xor_b32 %s, %s, %s" % (
                v(vT2), (2 if kind[1] == "K" else 4) + k, v(vT2), lb[k], v(vT2), v(dst), v(dst), v(vT2)))

    segstart(vAD, "AK")
    AK, AV = [("AK", u) for u in range(16)], [("AV", u) for u in range(16)]
    BB = [("BK", 0), ("BK", 1), ("BV", 0), ("BV", 1)]
    seq = AK + AV + BB if order == 1 else AK + BB + AV
    pos = {x: i for i, x in enumerate(seq)}
    breg = {"BK": 16, "BV": 18, "AK": 6, "AV": 8}
    if rt:
        breg.update(BK=46, BV=48)
    fdone = set()
    nxt = [None]
    NG = 2 if w4 else 3
    wok = lambda k: (k % NG) * 4 + k // NG
    NKV = 8 * len(seq)
    NLD = NKV if wf else NKV + 4 * NG
    st = {"next": -NW, "free": 0 if wf else 16, "landed": -1}

    def fstamp(n):
        if n % 2 == 1 and n // 2 + 1 < 64 and n not in fdone:
            fdone.add(n)
            e("s_memrealtime s[68:69]\ns_waitcnt lgkmcnt(0)\nv_writelane_b32 %s, s68, %d" % (v(vFT), n // 2 + 1))

    def issue_upto(n):
        n = min(n, st["free"], NLD)
        inwo = False
        while st["next"] < n:
            q = st["next"]
            i, j = q // 8, q % 8
            if q == -1:
                e("global_load_dwordx4 %s, %s, s[14:15] %s" % (v(WO + 32, 4), v(vWO), wflags), "u%d" % q)
            elif 0 <= i < len(seq):
                kind, u = seq[i]
                b = breg[kind]
                a = vAD
                cfg, nn, last = (AMAPS[amap], 8 * u + j, 127) if kind[0] == "A" else (BMAPS[bmap], 8 * u + j, 15)
                e("global_load_dwordx4 %s, %s, s[%d:%d] %s" % (v(slot(i) + 4 * j, 4), v(a), b, b + 1, kvflags), "u%d" % q)
                if nn < last and rt:
                    e("v_xor_b32 %s, s%d, %s" % (v(a), (12 if kind[0] == "A" else 19) + ((nn + 1) & -(nn + 1)).bit_length() - 1, v(a)))
                elif nn < last:
                    e("v_xor_b32 %s, 0x%x, %s" % (v(a), tmap(cfg, nn) ^ tmap(cfg, nn + 1), v(a)))
                elif i + 1 < len(seq):
                    assert nxt == [seq[i + 1][0]]
                    e("v_mov_b32 %s, %s" % (v(a), v(vNX)))
            else:
                k = q + NW if q < 0 else q - NKV
                if not inwo and not w4:
                    e("s_mov_b64 exec, s[50:51]")
                    inwo = True
                if k >= 12 - wskip:
                    e("s_mov_b64 exec, 1")
                k = wok(k)
                e("global_load_dwordx4 %s, %s, s[10:11] offset:%d %s" % (v(WO + 4 * k, 4), v(vWO), (k % 4) * 1152 + (k // 4) * 128, wflags), "u%d" % q)
            st["next"] += 1
        if inwo:
            e("s_mov_b64 exec, -1")

    thr = [t1]

    def setflags():
        e("s_cmp_gt_i32 s57, %s\ns_cselect_b64 vcc, -1, 0\ns_cselect_b32 s33, s98, s99\ns_cmp_gt_i32 s57, s33" % ("s24" if rt else thr[0]))

    def throttle(q):
        F, M, E = e.newlabel("tf"), e.newlabel("tm"), e.newlabel("te")
        LV = list(LV0)
        if LW and st["next"] >= NKV:
            LV[:3] = [int(c, 16) for c in str(LW)]
        if q >= NKV:
            LV = [int(c, 16) for c in str(wthr)] + [99]
        elif LP:
            pats = str(LP).split("x")[1 if seq[q // 8][0][1] == "V" else 0].split(".")
            LV[:3] = [int(c) for c in pats[q % len(pats)]]
        h = list(e.hist)
        e("s_cbranch_vccnz %s" % F)
        if LV[0] != LV[1]:
            e("s_cbranch_scc1 %s\ns_waitcnt vmcnt(%d)" % (M, LV[0] - 1))
            e.label(M)
        e("s_waitcnt vmcnt(%d)" % (LV[1] - 1))
        e.label(F)
        if LV[2] != LV[3]:
            e("s_cbranch_scc1 %s\ns_waitcnt vmcnt(%d)" % (E, LV[2] - 1))
            e.label(E)
        e.hist = h

    def pump():
        if ctl:
            want(st["next"] - LV0[3])

    def want(q, w=None):
        assert q < st["next"]
        if w is None:
            w = Wend if (nend and q >= NKV - nend) else int(W[q % len(W)], 16)
            if ctl and not (nend and q >= NKV - nend):
                while st["next"] < min(q + 1 + w, st["free"], NLD):
                    throttle(q)
                    e.waitvm("u%d" % q)
                    issue_upto(st["next"] + 1)
        e.waitvm("u%d" % q)
        st["landed"] = max(st["landed"], q)
        issue_upto(q + 1 + w)
        if fine == 1 and q // 8 not in fdone:
            fdone.add(q // 8)
            e("s_memrealtime s[68:69]\ns_waitcnt lgkmcnt(0)\nv_writelane_b32 %s, s68, %d" % (v(vFT), q // 8 + 1))
        if fine == 2:
            fstamp(q + 9)
        if fine == 3 and q >= NKV - 48 and q not in fdone:
            fdone.add(q)
            e("s_memrealtime s[68:69]\ns_waitcnt lgkmcnt(0)\nv_writelane_b32 %s, s68, %d" % (v(vFT), q - NKV + 49))

    def setup_wo():
        cm("wo rows of this workgroup: 32 rows x 192 columns per wave (waves 0..2)")
        e("v_lshrrev_b32 %s, 3, v1\nv_mul_u32_u24 %s, 4608, %s\nv_and_b32 %s, 7, v1" % (v(vT2), v(vT2), v(vT2), v(vT3)))
        e("v_lshl_add_u32 %s, %s, 4, %s" % (v(vWO), v(vT3), v(vT2)))
        e("s_lshl_b32 s34, s31, 3\ns_and_b32 s35, s32, 7\ns_add_u32 s56, s34, s35")
        if w4:
            e("s_mul_i32 s34, s56, %d\ns_lshl_b32 s35, s30, 8\ns_add_u32 s34, s34, s35" % (32 * 1152))
            e("s_add_u32 s10, s10, s34\ns_addc_u32 s11, s11, 0\ns_add_u32 s14, s10, 1024\ns_addc_u32 s15, s11, 0")
            if wf:
                e("s_mul_i32 s35, s30, %d\ns_add_u32 s14, s14, s35\ns_addc_u32 s15, s15, 0" % (1152 - 256))
            e("s_cmp_eq_u32 s30, 0\ns_cselect_b32 s50, -1, 0x00ff00ff\ns_mov_b32 s51, 0x00ff00ff")
            return
        e("s_mul_i32 s34, s56, %d\ns_min_u32 s35, s30, 2\ns_mul_i32 s35, s35, 384\ns_add_u32 s34, s34, s35" % (32 * 1152))
        e("s_add_u32 s10, s10, s34\ns_addc_u32 s11, s11, 0")
        e("s_cmp_lt_u32 s30, 3\ns_cselect_b64 s[50:51], -1, 1")

    if wf:
        setup_wo()
    issue_upto(W0 - 9 - NW)
    cm("v_perm selectors that build the one-hot MFMA operand")
    e("v_mov_b32 %s, 0" % v(vZ))
    e("v_and_b32 %s, 1, v1\nv_cmp_eq_u32 vcc, 1, %s" % (v(vT2), v(vT2)))
    e("v_mov_b32 %s, 0x0c0c0100\nv_mov_b32 %s, 0x01000c0c" % (v(BC), v(BC + 1)))
    e("v_mov_b32 %s, 0x0c0c0302\nv_mov_b32 %s, 0x03020c0c\nv_mov_b32 %s, 0x0c0c0c0c" % (v(BC + 2), v(BC + 3), v(BC + 4)))
    e("v_cndmask_b32 %s, %s, %s, vcc\nv_cndmask_b32 %s, %s, %s, vcc" % (v(BC), v(BC), v(BC + 1), v(BC + 2), v(BC + 2), v(BC + 3)))
    e("v_bfe_u32 %s, v1, 1, 2" % v(vT2))
    for i in range(4):
        e("v_cmp_eq_u32 vcc, %d, %s" % (i, v(vT2)))
        e("v_cndmask_b32 %s, %s, %s, vcc\nv_cndmask_b32 %s, %s, %s, vcc" % (v(SLO + i), v(BC + 4), v(BC), v(SHI + i), v(BC + 4), v(BC + 2)))
    e("v_and_b32 %s, 8, v1\nv_cmp_ne_u32 vcc, 0, %s" % (v(vT2), v(vT2)))
    for i in range(4):
        e("v_cndmask_b32 %s, %s, %s, vcc" % (v(BC + i), v(SLO + i), v(SHI + i)))
    e("v_lshrrev_b32 %s, 5, v1\nv_lshlrev_b32 %s, 8, %s" % (v(vT2), v(vT2), v(vT2)))
    e("v_lshl_add_u32 %s, %s, 1, %s" % (v(vT2), v(vT1), v(vT2)))
    e("v_and_b32 %s, 16, v1\ns_lshl_b32 s34, s30, 9\nv_add3_u32 %s, %s, %s, s34" % (v(vT3), v(vT2), v(vT2), v(vT3)))
    e("s_mov_b32 s40, 0x%x" % CSC)
    stamp(1)
    stamp(1)
    cm("x . wq while the first K loads go out")
    nwq = [wqw]
    for t in range(xpos + 1):
        e.waitvm("wq%d" % t)
        if t in (0, 2, 5):
            stamp(1)
        if t + wqw < 9:
            ldwq(t + wqw)
            nwq[0] += 1
        issue_upto(t + 1 + W0 - 9 - NW)
    e("s_barrier")
    e.waitvm("x")
    stamp(1)
    for t in range(9):
        o = OP + 4 * (t % 8)
        for i in range(4):
            xr = XR + 4 * (t // 3) + t % 3
            e("v_perm_b32 %s, %s, %s, %s" % (v(o + i), v(xr), v(xr), v(BC + i)))
        e.waitvm("wq%d" % t)
        if t + wqw < 9 and t + wqw >= nwq[0]:
            ldwq(t + wqw)
        issue_upto(t + 1 + W0 - 9 - NW)
        if fine == 2:
            fstamp(t)
        e("%s %s, %s, %s, %s" % (MF, v(DA0, 4), v(o, 4), v(WQ + 4 * t, 4), "0" if t == 0 else v(DA0, 4)))
    jitter(0)
    issue_upto(st["next"] + qb)
    e("s_mov_b32 exec_lo, 0x00ff00ff\ns_mov_b32 exec_hi, 0xff00ff00\nv_mov_b32 %s, 1" % v(vT3))
    e("ds_write_b128 %s, %s offset:%d" % (v(vT2), v(DA0, 4), QP))
    e("s_mov_b64 exec, 1\nds_add_u32 %s, %s offset:%d\ns_mov_b64 exec, -1" % (v(vZ), v(vT3), F_QP))
    stamp()
    st["free"] = K0
    if not rt:
        wavebase(44, BMAPS[bmap], 28672 * 256)
    e("v_and_b32 %s, 1, v1\nv_lshlrev_b32 %s, 8, %s" % (v(vT0), v(vT0), v(vT0)))
    e("v_lshrrev_b32 %s, 2, v1\nv_lshl_add_u32 %s, %s, 4, %s" % (v(vT2), v(vT0), v(vT2), v(vT0)))
    e("s_mov_b32 s42, 0xcccccccc\ns_mov_b32 s43, 0xcccccccc")
    e("v_and_b32 %s, 15, v1\nv_lshlrev_b32 %s, 5, %s" % (v(vT2), v(vT2), v(vT2)))
    e("v_and_b32 %s, 16, v1\nv_add_u32 %s, %s, %s" % (v(vT3), v(vT2), v(vT2), v(vT3)))
    e("v_and_b32 %s, 32, v1\nv_lshlrev_b32 %s, 4, %s\ns_lshl_b32 s34, s30, 10" % (v(vT3), v(vT3), v(vT3)))
    e("v_add3_u32 %s, %s, %s, s34" % (v(vDL), v(vT2), v(vT3)))
    e("v_lshrrev_b32 %s, 5, v1\nv_lshlrev_b32 %s, 4, %s" % (v(vT1), v(vT1), v(vT1)))
    def signal(flag):
        e("v_mov_b32 %s, 1\ns_mov_b64 exec, 1\nds_add_u32 %s, %s offset:%d\ns_mov_b64 exec, -1" % (v(vT3), v(vZ), v(vT3), flag))

    cm("fill the four-unit ring with K while q is exchanged")
    q = -NW
    while st["next"] < K0:
        want(q, W0 + (pend if st["next"] + 1 + pend >= K0 else 0))
        if q == qtrig + K0 - 32:
            signal(F_T1)
        q += 1
    catch = list(range(q + pend, K0))
    stamp()
    cm("wait for q")
    lds_wait(F_Q, "eq", 1, vZ, vT2)
    stamp()

    def catchup(n):
        for _ in range(n):
            if catch:
                want(catch.pop(0), Wc)

    def loadq(pr):
        e("ds_read_b128 %s, %s offset:%d\ns_waitcnt lgkmcnt(0)" % (v(QB0, 4), v(vT0), QB + 512 * pr))
        for i in range(4):
            e("v_cndmask_b32 %s, 0, %s, s[42:43]" % (v(QB1 + i), v(QB0 + i)))
        for i in range(4):
            e("v_cndmask_b32 %s, %s, 0, s[42:43]" % (v(QB0 + i), v(QB0 + i)))

    def mfK(i, j):
        r, t = j // 2, j % 2
        e("%s %s, %s, %s, %s" % (MF, v(DQ + 4 * r, 4), v(slot(i) + 4 * j, 4), v(QB1 if t else QB0, 4), v(DQ + 4 * r, 4) if t else "0"))

    def redK(rs, dst):
        for k in range(1, 4):
            for r in rs:
                c = (r + k) % 4
                src1 = DQ + 4 * r + r if k == 1 else TT + r
                e("v_add_f32_dpp %s, %s, %s row_ror:%d row_mask:0xf bank_mask:0x%x" % (
                    v(TT + r if k < 3 else dst), v(DQ + 4 * r + c), v(src1), 4 * ((r - c) % 4), 0xf if k < 3 else 1 << r))

    def finalize(n, m, l, pp, first):
        t = vT2
        if n == 2:
            e("v_max_f32 %s, %s, %s" % (v(t), v(SS), v(SS + 1)))
        else:
            e("v_max3_f32 %s, %s, %s, %s" % (v(t), v(SS), v(SS + 1), v(SS + 2)))
            e("v_max3_f32 %s, %s, %s, %s" % (v(t + 1), v(SS + 3), v(SS + 4), v(SS + 5)))
            e("v_max3_f32 %s, %s, %s, %s" % (v(t), v(t), v(SS + 6), v(SS + 7)))
            e("v_max_f32 %s, %s, %s" % (v(t), v(t), v(t + 1)))
        dppred("v_max_f32", [t], ["row_ror:2", "row_ror:4", "row_ror:8"])
        xrow("v_max_f32", [t], [t + 1])
        if first:
            e("v_mul_f32 %s, s40, %s" % (v(m), v(t)))
        else:
            e("v_mul_f32 %s, s40, %s\nv_max_f32 %s, %s, %s" % (v(t), v(t), v(t), v(t), v(m)))
            e("v_sub_f32 %s, %s, %s\nv_exp_f32 %s, %s\nv_mov_b32 %s, %s" % (v(t + 1), v(m), v(t), v(t + 1), v(t + 1), v(m), v(t)))
            e("v_mul_f32 %s, %s, %s" % (v(l), v(l), v(t + 1)))
        if n == 8 and npump >= 1:
            pump()
        for k in range(n):
            e("v_fma_f32 %s, %s, s40, -%s" % (v(SS + k), v(SS + k), v(m)))
        for k in range(n):
            e("v_exp_f32 %s, %s" % (v(SS + k), v(SS + k)))
        if n == 8 and npump >= 2:
            pump()
        for k in range(n // 2):
            e("v_cvt_pk_bf16_f32 %s, %s, %s" % (v(pp + k), v(SS + 2 * k), v(SS + 2 * k + 1)))
        for k in range(n):
            if first and k == 0:
                continue
            e("v_add_f32 %s, %s, %s" % (v(l), v(SS + k), v(SS) if (first and k == 1) else v(l)))

    def headsum(l):
        dppred("v_add_f32", [l], ["row_ror:2", "row_ror:4", "row_ror:8"])
        xrow("v_add_f32", [l], [vT2])

    def to_dlayout(dst, src):
        e("v_mov_b32_dpp %s, %s quad_perm:[0,0,0,0] row_mask:0x3 bank_mask:0xf" % (v(dst), v(src)))
        e("v_mov_b32_dpp %s, %s quad_perm:[1,1,1,1] row_mask:0xc bank_mask:0xf" % (v(dst), v(src)))

    def bc(j, pp, half):
        e("v_mov_b32_dpp %s, %s row_newbcast:%d row_mask:0xf bank_mask:0x%x" % (v(BC + j), v(pp), 2 * j + half, 0xc if half else 0x3))

    def perms(j, hi, lo_i=0, hi_i=4):
        for i in range(lo_i, hi_i):
            e("v_perm_b32 %s, %s, %s, %s" % (v(OP + 4 * j + i), v(BC + j), v(BC + j), v((SHI if hi else SLO) + i)))

    def prep_step(j, pp, hi):
        if j == 0:
            bc(0, pp, 0); bc(1, pp, 0); e("s_nop 0"); bc(0, pp, 1); bc(1, pp, 1)
            perms(0, hi)
            return
        if j < 7:
            bc(j + 1, pp, 0)
        perms(j, hi, 0, 2)
        if j < 7:
            bc(j + 1, pp, 1)
        perms(j, hi, 2, 4)

    def mfV(i, j, acc, first):
        e("%s %s, %s, %s, %s" % (MF, v(acc, 4), v(OP + 4 * j, 4), v(slot(i) + 4 * j, 4), "0" if first else v(acc, 4)))

    e("ds_read_b64 %s, %s offset:%d" % (v(GR, 2), v(vZ), F_N0))
    loadq(0)
    e("v_readfirstlane_b32 s62, %s\nv_readfirstlane_b32 s63, %s" % (v(GR), v(GR + 1)))
    if ctl:
        e("s_xor_b32 s55, s30, 1\ns_lshr_b32 s33, s3, %d\ns_or_b32 s55, s55, s33" % (nrep.bit_length() - 1))
        e("s_mov_b32 s98, %s\ns_mov_b32 s99, %s\ns_mov_b32 s57, 0" % (("s25", "s23") if rt else (t2, t0)))
        setflags()
    stamp()

    hooks = {}

    def at(q, f):
        hooks.setdefault(q, []).append(f)

    def send(c):
        cm("256 scores -> running max, probabilities (bf16 pairs), partial sum")
        issue_upto(st["next"] + boost)
        finalize(8, vMR, vLR, PI1 if c else PI0, c == 0)
        if c == 0:
            to_dlayout(vM0, vMR)
        stamp()

    def rec():
        cm("{max, sum} of this wave to LDS")
        headsum(vLB)
        e("v_mov_b32 %s, %s\nv_mov_b32 %s, %s\nv_mov_b32 %s, %s\nv_mov_b32 %s, %s" % (
            v(GR), v(vMR), v(GR + 1), v(vLR), v(GR + 2), v(vMB), v(GR + 3), v(vLB)))
        e("s_lshl_b32 s34, s30, 5\nv_add_u32 %s, s34, %s\ns_mov_b64 exec, 3" % (v(vT2), v(vVO)))
        e("ds_write_b128 %s, %s offset:%d" % (v(vT2), v(GR, 4), MW))
        signal(F_B1)

    TG1, TG2, AD1, AD2, AD3 = WO + 48, WO + 52, WO + 53, WO + 54, WO + 55

    def scales():
        cm("rescale to the maxima of the workgroup")
        issue_upto(st["next"] + sb)
        lds_wait(F_ML, "eq", 1, vZ, vT2)
        e("ds_read_b64 %s, %s offset:%d" % (v(GR, 2), v(vT1), ML))
        for k in range(4) if wf else ():
            e("ds_read_b128 %s, %s offset:%d" % (v(WO + 32 + 4 * k, 4), v(vVO), W8_L + 1024 * k))
        to_dlayout(vT2, vMB)
        to_dlayout(vFA, vMR)
        e("s_waitcnt lgkmcnt(0)")
        e("v_sub_f32 %s, %s, %s\nv_sub_f32 %s, %s, %s\nv_sub_f32 %s, %s, %s" % (
            v(vFA), v(vFA), v(GR), v(vT2), v(vT2), v(GR + 1), v(vT3), v(vM0), v(GR)))
        e("v_exp_f32 %s, %s\nv_exp_f32 %s, %s\nv_exp_f32 %s, %s" % (v(vFA), v(vFA), v(vT2), v(vT2), v(vT3), v(vT3)))
        for r in range(4):
            e("v_mul_f32 %s, %s, %s" % (v(DA0 + r), v(DA0 + r), v(vT3)))
        if order == 1:
            for r in range(4):
                e("v_fma_f32 %s, %s, %s, %s" % (v(DA0 + r), v(DA1 + r), v(vFA), v(DA0 + r)))
            e("v_mov_b32 %s, %s" % (v(vFA), v(vT2)))
            e("ds_write_b128 %s, %s offset:%d" % (v(vDL), v(DA0, 4), DA_L))
        else:
            for r in range(4):
                e("v_mul_f32 %s, %s, %s" % (v(DBc + r), v(DBc + r), v(vT2)))
            e("ds_write_b128 %s, %s offset:%d" % (v(vDL), v(DBc, 4), DB_L))
            if w4 or be:
                signal(F_DB)

    def setup_tail1():
        cm("addresses and tags of the level-1 inbox")
        tagsel()
        tagreg(TG1, 1 if l1c else 8, vT2, chk=TG1)
        e("v_and_b32 %s, 7, v1\nv_lshlrev_b32 %s, 7, %s\nv_lshrrev_b32 %s, 3, v1" % (v(vT2), v(vT2), v(vT2), v(vT3)))
        if l1c:
            e("v_lshrrev_b32 %s, 3, %s\nv_lshl_add_u32 %s, %s, 8, %s" % (v(AD1), v(vT2), v(AD1), v(vT3), v(AD1)))
        else:
            e("v_lshl_add_u32 %s, %s, 4, %s" % (v(AD1), v(vT3), v(vT2)))
        e("s_lshl_b32 s34, s2, 11\ns_add_u32 s34, s34, 0x%x\ns_add_u32 s46, s28, s34\ns_addc_u32 s47, s29, 0" % L1_OFF)
        if wc:
            e("v_lshrrev_b32 %s, 5, %s" % (v(AD3), v(vT2)))
            return
        e("v_mov_b32 %s, %s" % (v(AD3), v(vT2)))
        e("s_lshl_b32 s34, s31, 11\ns_lshr_b32 s35, s32, 2\ns_lshl_b32 s35, s35, 4\ns_add_u32 s34, s34, s35")
        e("s_add_u32 s34, s34, 0x%x\ns_add_u32 s52, s28, s34\ns_addc_u32 s53, s29, 0" % G_OFF)

    def setup_tail2():
        cm("address and tag of the level-2 outbox (wave 3: level-1 outbox of problem B)")
        tagreg(TG2, 1, vT2)
        e("v_and_b32 %s, 8, v1\nv_cmp_ne_u32 vcc, 0, %s\nv_lshrrev_b32 %s, 5, v1" % (v(vT2), v(vT2), v(vT3)))
        e("v_cndmask_b32 %s, %s, %d, vcc" % (v(vT3), v(vT3), 8 if w4 else 2))
        if pb < 3:
            e("v_bfe_u32 %s, v1, %d, %d\nv_lshl_add_u32 %s, %s, %d, %s" % (v(vT2), pb, 3 - pb, v(vT2), v(vT3), 3 - pb, v(vT2)))
        else:
            e("v_mov_b32 %s, %s" % (v(vT2), v(vT3)))
        e("v_bfe_u32 %s, v1, 4, 1\nv_lshl_add_u32 %s, %s, 1, %s\nv_lshlrev_b32 %s, %d, %s" % (v(vT3), v(vT2), v(vT2), v(vT3), v(vT2), 11 + pb, v(vT2)))
        e("v_and_b32 %s, %d, v1\nv_lshl_add_u32 %s, %s, 4, %s" % (v(vT3), (1 << pb) - 1, v(AD2), v(vT3), v(vT2)))
        e("s_lshr_b32 s34, s32, 3\ns_mul_i32 s34, s34, 9\ns_mul_i32 s35, s30, %d\ns_add_u32 s34, s34, s35\ns_lshl_b32 s34, s34, 15" % NG)
        e("s_lshl_b32 s35, s56, %d\ns_add_u32 s34, s34, s35\ns_add_u32 s34, s34, 0x%x" % (4 + pb, L2_OFF))
        e("s_add_u32 s48, s28, s34\ns_addc_u32 s49, s29, 0")
        if w4 or be:
            return
        with optional("s_cmp_lg_u32 s30, 3"):
            tagreg(TG2, 1, vT2)
            l1_out_addr(AD2, vT2, vT3, 48, 1, TG2)
        e("ds_read_b32 %s, %s offset:%d\ns_waitcnt lgkmcnt(0)\nv_readfirstlane_b32 s61, %s" % (v(vT2), v(vZ), F_LOC, v(vT2)))
        if fpos >= 0:
            e("s_lshl_b32 s33, s2, 7\ns_lshl_b32 s34, s30, 4\ns_add_u32 s33, s33, s34\ns_add_u32 s33, s33, 0x%x" % (G_OFF + 64))
            e("s_add_u32 s4, s28, s33\ns_addc_u32 s5, s29, 0\nv_mov_b32 %s, s62\nv_mov_b32 %s, s63\nv_mov_b32 %s, 1" % (v(QB0), v(QB0 + 1), v(QB0 + 2)))

    at(8 * 8 + 1, lambda: send(0))
    at(8 * 16 + 1, lambda: send(1))
    hsum = lambda: headsum(vLR)
    at(8 * 17 + 2, hsum)
    at(8 * pos[("BV", 0)] + 1, rec)
    if wf:
        at(8 * 4 + 2, lambda: e("s_lshl_b32 s33, s30, 10\nv_add_u32 %s, s33, %s\nds_write_b128 %s, %s offset:%d" % (v(vT2), v(vVO), v(vT2), v(WO + 32, 4), W8_L)))
    else:
        at(8 * 22 + 2, setup_wo)

    def prepnext(kind):
        segstart(vNX, kind)
        nxt[0] = kind
    for i in range(1, len(seq)):
        if seq[i][0] != seq[i - 1][0]:
            at(8 * i - 20, lambda kind=seq[i][0]: prepnext(kind))

    def ldg8(rg):
        with optional("s_cmp_lg_u32 s30, 0"):
            e("global_load_dwordx4 %s, %s, s[14:15] offset:%d %s" % (v(WO + 32 + 4 * rg, 4), v(vWO), rg * 1152, wflags))
    for rg in range(4) if (w4 and g8a > 0) else ():
        at(NKV - g8a + g8d * rg, lambda rg=rg: ldg8(rg))
    for qq in (70, 140, 150, 230, 280) if jit else ():
        at(qq, lambda: jitter(5))
    at(8 * 28, stamp)
    at(NKV - (7 if order == 1 else scp), scales)
    at(8 * 24 + 2, setup_tail1)
    at(8 * 26 + 2, setup_tail2)
    for k in range(1 << gst):
        at(NKV - gtrig + gsd * k, lambda: signal(F_T2))
    GA, GB = WO + 56, WO + 60
    ldg = "global_load_dwordx4 %s, %s, s[52:53] sc1\nglobal_load_dwordx4 %s, %s, s[52:53] offset:1024 sc1" % (v(GA, 4), v(AD3), v(GB, 4), v(AD3))
    ldg = ldg.replace("sc1", l1lf)
    red8 = ["quad_perm:[1,0,3,2]", "quad_perm:[2,3,0,1]", "row_half_mirror"]

    def weights(GA=GA, GB=GB, vT2=vT2, vT3=vT3, ldg=ldg):
        cm("softmax weights of the 16 splits")
        L, D = e.newlabel("g1"), e.newlabel("g1d")
        e.waitvm("g")
        e("s_mov_b32 s35, %d" % SPIN)
        e.label(L)
        e("v_xor_b32 %s, s62, %s\nv_xor_b32 %s, s63, %s" % (v(vT2), v(GA + 1), v(vT3), v(GA + 3)))
        e("v_bitop3_b32 %s, %s, %s, s62 bitop3:0xf6\nv_bitop3_b32 %s, %s, %s, s63 bitop3:0xf6" % (v(vT2), v(vT2), v(GB + 1), v(vT3), v(vT3), v(GB + 3)))
        e("v_or_b32 %s, %s, %s\nv_cmp_ne_u32 vcc, 0, %s\ns_cbranch_vccz %s" % (v(vT2), v(vT2), v(vT3), v(vT2), D))
        h, vm = list(e.hist), list(e.vm)
        if not raw:
            e(ldg + "\ns_waitcnt vmcnt(0)\ns_sub_u32 s35, s35, 1\ns_cbranch_scc0 %s" % L)
        e.label(D)
        e.hist, e.vm = h, vm
        e("v_max_f32 %s, %s, %s" % (v(vT2), v(GA), v(GB)))
        dppred("v_max_f32", [vT2], red8)
        e("v_sub_f32 %s, %s, %s\nv_sub_f32 %s, %s, %s" % (v(GA), v(GA), v(vT2), v(GB), v(GB), v(vT2)))
        e("v_exp_f32 %s, %s\nv_exp_f32 %s, %s" % (v(GA), v(GA), v(GB), v(GB)))
        e("v_mul_f32 %s, %s, %s\nv_fma_f32 %s, %s, %s, %s" % (v(vT2), v(GA), v(GA + 2), v(vT2), v(GB), v(GB + 2), v(vT2)))
        dppred("v_add_f32", [vT2], red8)
        e("v_rcp_f32 %s, %s" % (v(vT2), v(vT2)))
        e("v_mul_f32 %s, %s, %s\nv_mul_f32 %s, %s, %s" % (v(GA), v(GA), v(vT2), v(GB), v(GB), v(vT2)))

    if gld and not wc:
        at(NKV - gld, lambda: e(ldg, "g"))
        if wearly:
            at(NKV - gld + 11, weights)

    def ppof(kind, u):
        return (vPB, u) if kind == "BV" else ((PI1 if u >= 8 else PI0) + (u % 8) // 2, u % 2)

    reddone = set()

    def red(qq):
        if qq >= 0 and seq[qq // 8][0][1] == "K" and qq not in reddone:
            reddone.add(qq)
            redK([(qq % 8) // 2], SS + seq[qq // 8][1] % 8)

    for q in range(NKV):
        i, j = q // 8, q % 8
        kind, u = seq[i]
        if j == 0:
            cm("---- unit %d: %s %s %d" % (i, kind[0], "keys" if kind[1] == "K" else "values", u))
        if (kind, u, j) == ("BK", 0, 0):
            issue_upto(st["next"] + hb)
            loadq(1)
        if (kind, u, j) == ("BV", 0, 0):
            want(q)
            red(q - 1)
            finalize(2, vMB, vLB, vPB, True)
            want(q + 1)
            for k in range(8):
                prep_step(k, vPB, False)
            if npump:
                want(q + 2)
        if q < K0:
            want(q, 0 if q < catch[0] else Wc)
        else:
            want(q)
        if kind[1] == "K":
            mfK(i, j)
        else:
            mfV(i, j, DBc if kind == "BV" else (DA1 if u >= 8 else DA0), u % 8 == 0 and j == 0)
        st["free"] = min(K0 + 1 + q if q < 16 else max(K0 + 16, q + 17), NKV + wcap)
        if q < K0 and q % (K0 // 5) == 0 and len(catch) > 1:
            catchup(1)
        if j % 2 == 1:
            red(q - 2)
        if i + 1 < len(seq) and seq[i + 1][0][1] == "V" and seq[i + 1] != ("BV", 0):
            prep_step(j, *ppof(*seq[i + 1]))
        hk = hooks.pop(q, [])
        if hb and any(f in (rec, setup_tail1, setup_tail2, hsum) for f in hk):
            issue_upto(st["next"] + hb)
        for f in hk:
            f()
        if ctl and q >= K0:
            dirty = bool(hk)
            use = i > ms[0] + mdel
            if i == tu and j == 6:
                e("s_mov_b32 s98, %d\ns_mov_b32 s99, %d" % (u2, u0))
                thr[0] = u1
            if i >= dbl and j == 0:
                e("s_memrealtime s[96:97]")
            if i >= dbl and j == 2:
                e("s_waitcnt lgkmcnt(0)\ns_sub_u32 s57, s96, s54\ns_mul_i32 s33, s59, %d\ns_lshr_b32 s33, s33, 5\ns_cselect_b32 s57, s57, 0\ns_sub_u32 s57, s57, s33" % (2 * i - 1))
                dirty = True
            if j == 4 and i - mdel in ms:
                signal(F_P)
            if j == 4 and (use or i in ms):
                e("s_memrealtime s[58:59]")
                if use:
                    e("ds_read_b64 %s, %s offset:%d" % (v(vRF, 2), v(vZ), F_REF))
            if j == 6 and (use or i in ms):
                e("s_waitcnt lgkmcnt(0)")
                per = cb / 80.0
                cor = "s_cmp_gt_i32 s60, %d\ns_cselect_b32 s33, 0, %d\ns_cmp_gt_i32 s60, %d\ns_cselect_b32 s33, %d, s33\ns_cmp_gt_i32 s60, %d\ns_cselect_b32 s33, %d, s33\ns_add_u32 s58, s58, s33"
                cork = lambda k: cor % (t0, round(k * per * (LV0[0] - LV0[1])), t1, round(k * per * (LV0[2] - LV0[1])), t2, round(k * per * (LV0[3] - LV0[1])))
                if (rcor and i in ms) or lcor:
                    e("s_mov_b32 s60, s57")
                if lcor:
                    e(cork(lcor / 10.0))
                if use:
                    e("v_readfirstlane_b32 s54, %s\nv_readfirstlane_b32 s59, %s\ns_sub_u32 s57, s58, s54" % (v(vRF), v(vRF + 1)))
                    e("s_mul_i32 s33, s59, %d\ns_lshr_b32 s33, s33, 4\ns_cselect_b32 s57, s57, 0\ns_sub_u32 s57, s57, s33" % i)
                if fine == 1 and i % 2 == 0:
                    e("v_writelane_b32 %s, s57, %d" % (v(vFT), 41 + i // 2))
                if i in ms:
                    with optional("s_cmp_lg_u32 s55, 0"):
                        if rcor:
                            e(cork(1 - lcor / 10.0))
                        e("s_add_u32 s58, s58, s62\ns_lshl_b32 s33, s3, %d\ns_add_u32 s33, s33, %d" % (rsh, RP_OFF + 4352 * ms.index(i)))
                        e("v_mov_b32 %s, s33\nv_mov_b32 %s, s58\ns_mov_b64 exec, 1" % (v(vT2), v(vT3)))
                        e("global_store_dword %s, %s, s[28:29] %s\ns_mov_b64 exec, -1" % (v(vT2), v(vT3), rf))
                dirty = True
            if dirty:
                setflags()
    assert not hooks, hooks.keys()
    stamp()
    if order == 1:
        for r in range(4):
            e("v_mul_f32 %s, %s, %s" % (v(DBc + r), v(DBc + r), v(vFA)))
        e("ds_write_b128 %s, %s offset:%d" % (v(vDL), v(DBc, 4), DB_L))
    else:
        for r in range(4):
            e("v_fma_f32 %s, %s, %s, %s" % (v(DA0 + r), v(DA1 + r), v(vFA), v(DA0 + r)))
        e("ds_write_b128 %s, %s offset:%d" % (v(vDL), v(DA0, 4), DA_L))
    def ldg8all():
        with optional("s_cmp_lg_u32 s30, 0"):
            for rg in range(4):
                e("global_load_dwordx4 %s, %s, s[14:15] offset:%d %s" % (v(WO + 32 + 4 * rg, 4), v(vWO), rg * 1152, wflags))
    if w4 and g8a == -1:
        ldg8all()
    if wob:
        issue_upto(NLD)
    e("s_waitcnt lgkmcnt(0)\ns_barrier")
    st["free"] = NLD
    if w4 and g8a == 0:
        ldg8all()
    if not w4:
        e("s_cmp_eq_u32 s30, 3\ns_cbranch_scc1 L_w3")
    if pfirst:
        if not wearly:
            weights()
        e("s_barrier")
    if not gld and not wc:
        e(ldg, "g")
    if olast:
        st["free"] = NLD - olast
        issue_upto(NKV + Wwo)
    elif wthr:
        setflags()
        while st["next"] < NLD:
            throttle(NKV)
            issue_upto(st["next"] + 1)
    else:
        issue_upto(NLD)
    if wc:
        e("ds_read_b32 %s, %s offset:%d\nds_read_b32 %s, %s offset:%d\ns_waitcnt lgkmcnt(0)" % (v(GA), v(AD3), WT, v(GB), v(AD3), WT + 32))
    elif not wearly and not pfirst:
        weights()
    if fine == 3:
        for q in range(NKV, NLD):
            want(q, 0)
    cm("level 1: o[32] of our wo rows = weighted sum over the splits, then o . wo")
    X, Y = OP, OP + 4
    ldo = "global_load_dwordx4 %s, %s, s[46:47] sc1\nglobal_load_dwordx4 %s, %s, s[46:47] offset:%d sc1" % (v(X, 4), v(AD1), v(Y, 4), v(AD1), 128 if l1c else 1024)
    ldo = ldo.replace("sc1", l1lf)
    L, D = e.newlabel("l1"), e.newlabel("l1d")
    if olast:
        q = NKV
        while q + Wwo <= NLD - olast + okeep:
            want(q, Wwo)
            q += 1
        e(ldo + "\ns_mov_b32 s35, %d" % SPIN, "o")
        st["free"] = NLD
        issue_upto(NLD)
        e.waitvm("o")
    else:
        e.waitvm("u%d" % (NLD - 1 - okeep))
        if dg:
            e("s_memrealtime s[72:73]")
        e(ldo + "\ns_mov_b32 s35, %d" % SPIN)
        e.waitvm()
        if dg:
            e("s_memrealtime s[74:75]")
    if trim & 8:
        G = [RING, RING + 4, RING + 8]
        Z, R, O = RING + 12, RING + 16, OP + 24
        RT = e.newlabel("l1r")
        e.label(L)
        stamp()
        for x in (X, Y):
            for r in range(4):
                e("v_xor_b32 %s, %s, %s" % (v(x + r), v(x + r), v(TG1 + r)))
        for r in (0, 2):
            e("v_pk_mul_f32 %s, %s, %s op_sel_hi:[1,0]" % (v(O + r, 2), v(X + r, 2), v(GA, 2)))
        for r in (0, 2):
            e("v_pk_fma_f32 %s, %s, %s, %s op_sel_hi:[1,0,1]" % (v(O + r, 2), v(Y + r, 2), v(GB, 2), v(O + r, 2)))
        dppred("v_add_f32", [O, O + 1, O + 2, O + 3], red8)
        e("v_cvt_pk_bf16_f32 %s, %s, %s\nv_cvt_pk_bf16_f32 %s, %s, %s" % (v(BC), v(O), v(O + 1), v(BC + 1), v(O + 2), v(O + 3)))
        mf = lambda g, rg: e("%s %s, %s, %s, %s" % (MF, v(G[g], 4), v(OP + 8 + 4 * rg, 4), v(WO + 4 * (4 * g + rg), 4), "0" if rg == 0 else v(G[g], 4)))
        for rg in range(5):
            if rg < 4:
                for i in range(4):
                    e("v_perm_b32 %s, %s, %s, %s" % (v(OP + 8 + 4 * rg + i), v(BC + rg // 2), v(BC + rg // 2), v((SHI if rg % 2 else SLO) + i)))
            if rg > 0:
                mf(0, rg - 1)
                mf(1, rg - 1)
        chk = ["v_or3_b32 %s, %s, %s, %s\nv_or3_b32 %s, %s, %s, %s" % (v(vT2), v(X), v(X + 1), v(X + 2), v(vT3), v(X + 3), v(Y), v(Y + 1)),
               "v_or3_b32 %s, %s, %s, %s\nv_or_b32 %s, %s, %s" % (v(vT2), v(vT2), v(Y + 2), v(Y + 3), v(vT2), v(vT2), v(vT3)),
               "v_and_b32 %s, 0xff, %s\nv_cmp_ne_u32 vcc, 0, %s" % (v(vT2), v(vT2), v(vT2)), ""]
        for rg in range(4):
            mf(2, rg)
            e(chk[rg])
        if not raw:
            e("s_cbranch_vccnz %s" % RT)
        e.label(D)
        for r in range(4):
            e("v_permlane32_swap_b32 %s, %s" % (v(G[0] + r), v(G[1] + r)))
        for r in range(4):
            e("v_add_f32_dpp %s, %s, %s row_ror:8 row_mask:0xf bank_mask:0x3" % (v(R + r), v(G[1] + r), v(G[0] + r)))
        for r in range(4):
            e("v_permlane32_swap_b32 %s, %s" % (v(G[2] + r), v(Z + r)))
        for r in range(4):
            e("v_add_f32_dpp %s, %s, %s row_ror:8 row_mask:0xf bank_mask:0xc" % (v(R + r), v(G[2] + r), v(Z + r)))
        ready = lambda p: None
        retry = [ldo, "s_waitcnt vmcnt(0)", "v_xor_b32 %s, %s, %s" % (v(vT2), v(X), v(TG1))]
        retry += ["v_bitop3_b32 %s, %s, %s, %s bitop3:0xf6" % (v(vT2), v(vT2), v(X + k), v(TG1 + k % 4)) for k in range(1, 8)]
        retry += ["v_and_b32 %s, 0xff, %s\nv_cmp_ne_u32 vcc, 0, %s\ns_cbranch_vccz %s" % (v(vT2), v(vT2), v(vT2), L)]
        retry += ["s_sub_u32 s35, s35, 1\ns_cbranch_scc0 %s\ns_branch %s" % (RT, D)]
        retry = RT + ":\n  " + "\n".join(retry).replace("\n", "\n  ")
    else:
        retry = ""
        e.label(L)
        tagcheck([X, Y], TG1, vT2, vT3)
        e("s_cbranch_vccz %s" % D)
        vm = list(e.vm)
        if not raw:
            e(ldo + "\ns_waitcnt vmcnt(0)\ns_sub_u32 s35, s35, 1\ns_cbranch_scc0 %s" % L)
        e.label(D)
        e.hist, e.vm = [], vm
        stamp()

        def ready(p):
            if p == fpos:
                e("s_mov_b64 exec, 1\nglobal_store_dwordx2 %s, %s, s[4:5]" % (v(vZ), v(QB0, 2)), "fl")
                e("ds_add_u32 %s, %s offset:%d\ns_mov_b64 exec, -1" % (v(vZ), v(QB0 + 2), F_T3))

        ready(0)
        if trim & 4:
            for r in (0, 2):
                e("v_pk_mul_f32 %s, %s, %s op_sel_hi:[1,0]" % (v(X + r, 2), v(X + r, 2), v(GA, 2)))
            for r in (0, 2):
                e("v_pk_fma_f32 %s, %s, %s, %s op_sel_hi:[1,0,1]" % (v(X + r, 2), v(Y + r, 2), v(GB, 2), v(X + r, 2)))
        else:
            for r in range(4):
                e("v_mul_f32 %s, %s, %s" % (v(X + r), v(X + r), v(GA)))
            for r in range(4):
                e("v_fma_f32 %s, %s, %s, %s" % (v(X + r), v(Y + r), v(GB), v(X + r)))
        dppred("v_add_f32", [X, X + 1, X + 2, X + 3], ["quad_perm:[1,0,3,2]", "quad_perm:[2,3,0,1]", "row_half_mirror"])
        e("v_cvt_pk_bf16_f32 %s, %s, %s\nv_cvt_pk_bf16_f32 %s, %s, %s" % (v(BC), v(X), v(X + 1), v(BC + 1), v(X + 2), v(X + 3)))
        ready(1)
        G = [RING, RING + 4, RING + 8]
        Z, R = RING + 12, RING + 16
        for rg in range(5):
            if rg < 4:
                for i in range(4):
                    e("v_perm_b32 %s, %s, %s, %s" % (v(OP + 8 + 4 * rg + i), v(BC + rg // 2), v(BC + rg // 2), v((SHI if rg % 2 else SLO) + i)))
            if rg > 0:
                for g in range(3):
                    e.waitvm("u%d" % (NKV + NG * (rg - 1) + g))
                    e("%s %s, %s, %s, %s" % (MF, v(G[g], 4), v(OP + 4 + 4 * rg, 4), v(WO + 4 * (4 * g + rg - 1), 4), "0" if rg == 1 else v(G[g], 4)))
        ready(2)
        for r in range(4):
            e("v_permlane32_swap_b32 %s, %s" % (v(G[0] + r), v(G[1] + r)))
        for r in range(4):
            e("v_permlane32_swap_b32 %s, %s" % (v(G[2] + r), v(Z + r)))
        for r in range(4):
            e("v_add_f32_dpp %s, %s, %s row_ror:8 row_mask:0xf bank_mask:0x3" % (v(R + r), v(G[1] + r), v(G[0] + r)))
        for r in range(4):
            e("v_add_f32_dpp %s, %s, %s row_ror:8 row_mask:0xf bank_mask:0xc" % (v(R + r), v(G[2] + r), v(Z + r)))
    tagput(R, TG2)
    jitter(2)
    e("s_mov_b64 exec, s[50:51]" if w4 else "s_mov_b32 exec_hi, 0x00ff00ff")
    e("global_store_dwordx4 %s, %s, s[48:49] %s" % (v(AD2), v(R, 4), l2sf))
    stamp()
    if wb:
        with optional("s_lshl_b32 s33, s30, 8\ns_add_u32 s33, s33, s3\ns_cmp_lt_u32 s33, %d" % (512 + wbn)):
            if wb == 2:
                e("s_waitcnt vmcnt(0)")
            e("buffer_wbl2 sc1")
    ready(3)
    if fdel:
        if fack:
            e("s_waitcnt vmcnt(0)")
        if fb:
            e("s_barrier")
        else:
            signal(F_T3)
    e.label("L_sdone")
    if fine:
        e("s_mov_b64 exec, -1\ns_waitcnt lgkmcnt(0)\nv_writelane_b32 %s, s70, 0" % v(vFT))
        if fine == 1:
            e("s_getreg_b32 s33, hwreg(HW_REG_HW_ID)\nv_writelane_b32 %s, s33, 40" % v(vFT))
        e("s_lshl_b32 s33, s3, 2\ns_add_u32 s33, s33, s30\ns_lshl_b32 s33, s33, 8\ns_add_u32 s33, s33, 0x%x" % (STAMP_OFF + 0x100000))
        e("v_lshl_add_u32 v19, v1, 2, s33\nglobal_store_dword v19, %s, s[28:29]" % v(vFT))
    write_stamps(vT2, "s")
    e("s_endpgm")
    e.raw(retry)
    e.hist, e.vm = [], []
    if not w4:
        cm("wave 3: sum the B partials of the four waves and send them")
        e.label("L_w3")
        if not be:
            sumpub(DB_L, OP, vVO, AD2, 48, TG2)
        if pfirst:
            e("s_barrier")
        e("s_branch L_sdone" if stamps else "s_endpgm")

    e.hist, e.vm = [], []
    nst[0] = base_st
    e.raw(".p2align 6")
    cm("==== communication wave")
    e.label("L_comm")
    e("s_setprio %d\ns_memrealtime s[56:57]" % cpr)
    e(ids)
    e("v_lshlrev_b32 v2, 2, v1\nv_mov_b32 v3, 0\nds_write_b32 v2, v3 offset:%d" % FL)
    cZ, c16, cT, cU, cA, cO = 2, 3, 4, 5, 6, 7
    A0 = 8
    TG, TP = 60, 100
    e("v_mov_b32 %s, 0\nv_lshlrev_b32 %s, 4, v1" % (v(cZ), v(c16)))
    if warm:
        cm("pull a slice of this kernel's own code into the L2")
        e("s_getpc_b64 s[36:37]")
        e.label("L_pc0")
        e("s_sub_u32 s36, s36, L_pc0-%s\ns_subb_u32 s37, s37, 0" % KN)
    if warm and swarm:
        e("s_lshr_b32 s33, s3, 3\ns_mulk_i32 s33, %d\ns_min_u32 s33, s33, L_end-%s-%d\ns_add_u32 s36, s36, s33\ns_addc_u32 s37, s37, 0" % (128 * wl, KN, 128 * wl - 64))
    if warm and not swarm:
        e("s_lshr_b32 s33, s3, 3\ns_mulk_i32 s33, %d\nv_lshl_add_u32 %s, v1, 7, s33" % (128 * wl, v(cU)))
        e("v_min_u32 %s, L_end-%s, %s\ns_mov_b64 exec, 0x%x" % (v(cU), KN, v(cU), (1 << wl) - 1))
        e("v_mov_b32 %s, s37\nv_add_co_u32 %s, vcc, s36, %s\nv_addc_co_u32 %s, vcc, 0, %s, vcc" % (v(A0 + 7), v(A0 + 6), v(cU), v(A0 + 7), v(A0 + 7)))
        e("global_load_dword %s, %s, off" % (v(A0), v(A0 + 6, 2)))
    if touch:
        e("s_lshl_b32 s38, s31, 23\ns_add_u32 s39, s38, %d" % (28672 * 256))
        e("v_lshl_add_u32 %s, v1, 21, s38\nv_mov_b32 %s, s39" % (v(A0 + 12), v(A0 + 13)))
        e("s_lshl_b32 s33, s31, 3\ns_and_b32 s34, s32, 7\ns_add_u32 s33, s33, s34\ns_mul_i32 s33, s33, %d\nv_mov_b32 %s, s33" % (32 * 1152, v(A0 + 15)))
    e("s_cmp_ge_u32 s32, 8\ns_waitcnt lgkmcnt(0)\ns_cselect_b64 s[12:13], s[22:23], s[12:13]\ns_mov_b64 exec, 1")
    cm("workgroup 0 publishes the launch nonce")
    e("s_cmp_lg_u32 s3, 0\ns_cbranch_scc1 L_nolead")
    e("s_lshr_b64 s[56:57], s[56:57], 8\ns_mul_i32 s33, s56, 0x9e3779b1\ns_mul_i32 s34, s56, 0x85ebca6b\ns_add_u32 s34, s34, s57")

    for r in (33, 34):
        e("s_and_b32 s35, s%d, 0x7f\ns_lshr_b32 s%d, s%d, 7\ns_lshl_b32 s%d, s%d, 9\ns_lshl_b32 s35, s35, 1\ns_or_b32 s%d, s%d, s35\ns_or_b32 s%d, s%d, 1" % (
            r, r, r, r, r, r, r, r, r))
    jitter(4)
    e("v_mov_b32 v16, s33\nv_mov_b32 v17, s34\nv_mov_b32 v18, 0\nv_mov_b32 v19, 0")
    e("global_atomic_cmpswap_x2 %s, v[16:19], s[26:27] sc1" % v(cZ))
    e.label("L_nolead")
    if touch:
        e("global_load_dword %s, %s, s[16:17] nt\nglobal_load_dword %s, %s, s[18:19] nt" % (v(A0), v(A0 + 13), v(A0), v(A0 + 13)))
        e("global_load_dword %s, %s, s[12:13] nt\ns_mov_b64 exec, 15" % (v(A0), v(A0 + 15)))
        e("global_load_dword %s, %s, s[6:7] nt\nglobal_load_dword %s, %s, s[8:9] nt" % (v(A0), v(A0 + 12), v(A0), v(A0 + 12)))
        e("s_mov_b64 exec, 1")
    def pretouch(ex):
        if spre:
            e("s_lshl_b32 s33, s2, 11\ns_add_u32 s46, s28, s33\ns_addc_u32 s47, s29, 0\ns_lshl_b32 s33, s2, 7\ns_add_u32 s33, s33, 0x%x" % G_OFF)
            e("s_load_dword s48, s[28:29], s33\ns_add_u32 s33, s33, 64\ns_load_dword s48, s[28:29], s33")
            for k in range(32):
                e("s_load_dword s48, s[46:47], 0x%x" % (L1_OFF + 64 * k))
            return
        e("s_mov_b64 exec, 0xffff\ns_lshl_b32 s33, s2, 11\ns_add_u32 s33, s33, 0x%x\nv_lshl_add_u32 %s, v1, 7, s33" % (L1_OFF, v(cT)))
        e("s_lshl_b32 s33, s2, 7\ns_add_u32 s33, s33, 0x%x\nv_writelane_b32 %s, s33, 16\ns_mov_b64 exec, 0x1ffff" % (G_OFF, v(cT)))
        e("global_load_dword %s, %s, s[28:29] sc1\ns_mov_b64 exec, %d" % (v(A0 + 45), v(cT), ex))

    if warm and swarm:
        for k in range(2 * wl):
            e("s_load_dword s48, s[36:37], %d" % (64 * k))
    if pre1 == 2:
        pretouch(1)
    e("s_barrier")
    if raw:
        e("s_endpgm")
    cm("read the nonce")
    L, D = e.newlabel("gf"), e.newlabel("gfd")
    e("s_mov_b32 s35, %d" % SPIN)
    if nsl:
        e("s_sleep %d" % nsl)
    if npoll == 2:
        e("global_load_dwordx2 %s, %s, s[26:27] sc1\ns_sleep 12" % (v(A0 + 2, 2), v(cZ)))
    e.label(L)
    for k in range(npoll):
        e("global_load_dwordx2 %s, %s, s[26:27] sc1" % (v(A0 + 2 * npoll - 2 * k, 2), v(cZ)))
        e("s_waitcnt vmcnt(%d)" % (npoll - 1))
        e("v_readfirstlane_b32 s62, %s\nv_readfirstlane_b32 s63, %s" % (v(A0 + 2 + 2 * k), v(A0 + 3 + 2 * k)))
        e("s_and_b32 s34, s62, s63\ns_bitcmp1_b32 s34, 0\ns_cbranch_scc1 %s" % D)
    e("s_sub_u32 s35, s35, 1\ns_cbranch_scc0 %s" % L)
    e.label(D)
    e.vm = []
    e("s_mov_b64 exec, -1\nv_mov_b32 %s, s62\nv_mov_b32 %s, s63" % (v(A0 + 16), v(A0 + 17)))
    e("ds_write_b64 %s, %s offset:%d" % (v(cZ), v(A0 + 16, 2), F_N0))
    stamp()
    tagsel()
    tagreg(TP, 1, cT, chk=TG)
    e("s_lshl_b32 s33, s31, 12\ns_add_u32 s33, s33, 0x%x\ns_add_u32 s36, s28, s33\ns_addc_u32 s37, s29, 0" % Q_OFF)
    e("s_lshl_b32 s33, s32, 8\ns_add_u32 s38, s36, s33\ns_addc_u32 s39, s37, 0")
    e("s_getreg_b32 s60, hwreg(HW_REG_XCC_ID, 0, 4)\ns_lshl_b32 s33, s60, 24\nv_xor_b32 v103, s33, %s" % v(TP))
    cm("sum and send our 64 partial q values (the XCD id rides in a tag)")
    lds_wait(F_QP, "eq", 4, cZ, cT, sleep=csl)
    e("s_mov_b64 exec, 0xffff")
    R0 = A0 + 16
    for k in range(8):
        e("ds_read_b128 %s, %s offset:%d" % (v(R0 + 4 * k, 4), v(c16), QP + 256 * k))
    e("s_waitcnt lgkmcnt(0)")
    for stp in (16, 8, 4):
        for k in range(stp):
            e("v_add_f32 %s, %s, %s" % (v(R0 + k), v(R0 + k), v(R0 + stp + k)))
    tagput(R0, 103)
    e("global_store_dwordx4 %s, %s, s[38:39] %s\ns_mov_b64 exec, -1" % (v(c16), v(R0, 4), qsf) if not noq else "s_mov_b64 exec, -1")
    stamp()
    if ssp & 8:
        cm("first touch of the pages streamed later, so that their translations are there in time")
        e("s_lshl_b32 s33, s31, 23")
        for k in range(4):
            e("s_load_dword s48, s[8:9], s33" + ("\ns_add_u32 s33, s33, 0x200000" if k < 3 else ""))
        e("s_load_dword s48, s[16:17], s33\ns_load_dword s48, s[18:19], s33")
        e("s_lshl_b32 s33, s31, 3\ns_and_b32 s34, s32, 7\ns_add_u32 s33, s33, s34\ns_mul_i32 s33, s33, %d\ns_load_dword s48, s[12:13], s33" % (32 * 1152))
    if qpre:
        e("s_waitcnt vmcnt(0)\ns_load_dword s48, s[38:39], 0\ns_load_dword s48, s[38:39], 64\ns_load_dword s48, s[38:39], 128\ns_load_dword s48, s[38:39], 192")
    if pre1 == 3:
        pretouch(-1)
    QS = 64
    cm("fetch q of the head once the stream is far enough that it is normally complete")
    lds_wait(F_T1, "ge", 1, cZ, cT, sleep=max(1, 2 * csl))
    L, D = e.newlabel("qp"), e.newlabel("qd")
    e("s_mov_b32 s35, %d" % SPIN)
    if noq:
        for j in range(16):
            e("v_mov_b32 %s, s60" % v(QS + j))
        e("s_branch %s" % D)
    e.label(L)
    for j in range(4):
        e("global_load_dwordx4 %s, %s, s[36:37] offset:%d %s" % (v(QS + 4 * j, 4), v(c16), 1024 * j, qlf))
    e.waitvm()
    for j in range(4):
        for r in range(4):
            e("v_xor_b32 %s, %s, %s" % (v(QS + 4 * j + r), v(QS + 4 * j + r), v(TG + r)))
    e("v_or3_b32 %s, %s, %s, %s\nv_or_b32 %s, %s, %s" % (v(cU), v(QS + 3), v(QS + 7), v(QS + 11), v(cU), v(cU), v(QS + 15)))
    e("v_and_b32 %s, 0xf0, %s" % (v(cT), v(cU)))
    for j in range(4):
        e("v_or3_b32 %s, %s, %s, %s\nv_or_b32 %s, %s, %s" % (v(cT), v(cT), v(QS + 4 * j), v(QS + 4 * j + 1), v(cT), v(cT), v(QS + 4 * j + 2)))
    e("v_and_b32 %s, 0xff, %s\nv_cmp_ne_u32 vcc, 0, %s" % (v(cT), v(cT), v(cT)))
    e("s_cbranch_vccz %s\ns_sub_u32 s35, s35, 1\ns_cbranch_scc0 %s" % (D, L))
    e.label(D)
    e("v_xor_b32 %s, s60, %s" % (v(QS + 16), v(QS + 3)))
    for j in range(1, 4):
        e("v_bitop3_b32 %s, %s, %s, s60 bitop3:0xf6" % (v(QS + 16), v(QS + 16), v(QS + 4 * j + 3)))
    for j in range(4):
        e("v_and_b32 %s, -16, %s" % (v(QS + 4 * j + 3), v(QS + 4 * j + 3)))
    for pr in range(2):
        for r in range(4):
            e("v_add_f32 %s, %s, %s" % (v(A0 + 4 * pr + r), v(QS + 8 * pr + r), v(QS + 8 * pr + 4 + r)))
    e("v_lshlrev_b32 %s, 3, v1\nv_mov_b32 %s, 1" % (v(cO), v(cU)))
    for k in range(4):
        e("v_cvt_pk_bf16_f32 %s, %s, %s" % (v(A0 + 8 + k), v(A0 + 2 * k), v(A0 + 2 * k + 1)))
    e("ds_write_b64 %s, %s offset:%d\nds_write_b64 %s, %s offset:%d" % (v(cO), v(A0 + 8, 2), QB, v(cO), v(A0 + 10, 2), QB + 512))
    e("ds_write_b32 %s, %s offset:%d" % (v(cZ), v(cU), F_Q))
    e("v_and_b32 %s, 15, %s" % (v(QS + 16), v(QS + 16)))
    e("v_cmp_ne_u32 vcc, 0, %s\ns_nop 1\ns_cmp_eq_u64 vcc, 0\ns_cselect_b32 s61, 1, 0\nv_mov_b32 %s, s61" % (v(QS + 16), v(cU)))
    e("ds_write_b32 %s, %s offset:%d" % (v(cZ), v(cU), F_LOC))
    stamp()
    e("v_and_b32 %s, 1, v1\nv_bfe_u32 %s, v1, 1, 1\nv_lshlrev_b32 %s, 4, %s" % (v(cT), v(cU), v(cT), v(cT)))
    e("v_lshl_add_u32 %s, %s, 3, %s\nv_lshl_add_u32 %s, %s, 2, %s" % (v(A0 + 20), v(cU), v(cT), v(A0 + 21), v(cU), v(cT)))
    e("s_lshl_b32 s33, s2, 7\ns_add_u32 s33, s33, 0x%x\ns_add_u32 s38, s28, s33\ns_addc_u32 s39, s29, 0" % G_OFF)
    l1_out_addr(cA, cT, cU, 36, 0, TP)
    e("s_lshl_b32 s33, s3, %d\ns_add_u32 s33, s33, 0x%x\ns_add_u32 s40, s28, s33\ns_addc_u32 s41, s29, 0" % (11 + pb, L2_OFF + 4096))
    e("s_add_u32 s44, s40, 8192\ns_addc_u32 s45, s41, 0")
    if fpos >= 0:
        e("v_and_b32 %s, 15, v1\nv_lshlrev_b32 %s, 7, %s\nv_and_b32 %s, 48, v1" % (v(cT), v(cT), v(cT), v(cU)))
        e("s_lshl_b32 s33, s31, 11\ns_add_u32 s33, s33, 0x%x\nv_add3_u32 v106, %s, %s, s33" % (G_OFF + 64, v(cT), v(cU)))
    e("s_lshr_b32 s33, s3, 1\ns_lshl_b32 s33, s33, %d\ns_and_b32 s34, s3, 1\ns_lshl_b32 s34, s34, 3\ns_add_u32 s33, s33, s34" % (4 + pb))
    e("s_add_u32 s24, s24, s33\ns_addc_u32 s25, s25, 0\nv_mov_b32 %s, %s" % (v(cO), v(c16)))
    if trim & 2:
        e("v_and_b32 %s, 48, %s\nv_lshrrev_b32 %s, 4, v1\nv_lshl_add_u32 %s, %s, 1, %s" % (v(cO), v(c16), v(cT), v(cO), v(cT), v(cO)))
    def reference(n):
        cm("progress reference: mean time of the reporters at the milestone, time per unit")
        lds_wait(F_P, "ge", 4 * n + 1, cZ, cT, sleep=4)
        if rsh == 2:
            e("s_load_dwordx16 s[4:19], s[28:29], 0x%x" % (RP_OFF + 4352 * n))
        else:
            for k in range(nrep):
                e("s_load_dword s%d, s[28:29], 0x%x" % (4 + k, RP_OFF + 4352 * n + (k << rsh)))
        e("s_memrealtime s[58:59]\ns_waitcnt lgkmcnt(0)")
        e("s_add_u32 s20, s58, s62\ns_mov_b32 s21, %d\ns_mov_b32 s22, 0" % (cb * mdel // 10))
        for k in range(nrep):
            e("s_sub_u32 s33, s20, s%d\ns_cmp_lt_u32 s33, 2048\ns_cselect_b32 s21, s33, s21\ns_add_u32 s22, s22, s21" % (4 + k))
        e("s_lshr_b32 s22, s22, %d\ns_sub_u32 s22, s58, s22\ns_mov_b32 s21, %d" % (nrep.bit_length() - 1, cb * 16 // 10))
        if n and smar >= 0:
            e("s_sub_u32 s33, s22, s23\ns_mul_i32 s33, s33, %d\ns_lshr_b32 s33, s33, 8\ns_sub_u32 s33, s33, %d" % (
                4096 // (ms[n] - ms[n - 1]), smar * 16 // 10))
            e("s_max_i32 s21, s21, s33\ns_min_i32 s21, s21, %d" % (cb * 32 // 10))
        e("s_mov_b32 s23, s22\ns_mul_i32 s33, s21, %d\ns_lshr_b32 s33, s33, 4\ns_sub_u32 s22, s22, s33" % ms[n])
        e("v_mov_b32 v104, s22\nv_mov_b32 v105, s21\nds_write_b64 %s, v[104:105] offset:%d" % (v(cZ), F_REF))

    e("s_setprio 0")
    early = [n for n in range(len(ms)) if 8 * (ms[n] + mdel) + 4 <= 288 - gtrig] if ctl else []
    for n in early:
        reference(n)
    cm("touch the lines of the group exchange, then {max, sum} of the workgroup")
    if gst:
        e("s_and_b32 s50, s32, %d\ns_lshl2_add_u32 s50, s50, 1" % ((1 << gst) - 1))
    lds_wait(F_T2, "ge", "s50" if gst else 1, cZ, cT, sleep=8)
    if p2:
        with optional("s_cmp_ge_u32 s3, %d" % NF):
            if p2 == 3:
                e("v_lshlrev_b32 %s, 7, v1\nglobal_load_dword %s, %s, s[40:41] offset:-4096 sc1" % (v(cT), v(A0 + 46), v(cT)))
            else:
                for k in range(0, 8192, 128 // p2):
                    e("s_load_dword s48, s[40:41], %d glc" % (k - 4096))
    if ot:
        with optional("s_cmp_ge_u32 s3, %d" % NF):
            e("s_mov_b64 exec, 1\nglobal_load_dword %s, %s, s[24:25] %s\ns_mov_b64 exec, -1" % (v(A0 + 46), v(cZ), otf))
    if pre1 == 1:
        pretouch(-1)
        e.waitvm()
        if pdirty:
            with optional("s_cmp_lg_u32 s61, 1"):
                e("v_not_b32 %s, %s" % (v(cU), v(TP)))
                e("global_store_dword %s, %s, s[36:37]" % (v(cA), v(cU)))
                e("v_add_u32 %s, 0x4000, %s\nglobal_store_dword %s, %s, s[36:37]" % (v(cT), v(cA), v(cT), v(cU)))
    lds_wait(F_B1, "eq", 4, cZ, cT, sleep=1)
    for k in range(4):
        e("ds_read_b64 %s, %s offset:%d" % (v(A0 + 2 * k, 2), v(A0 + 20), MW + 32 * k))
    e("s_waitcnt lgkmcnt(0)")
    GN = 56
    e("v_max3_f32 %s, %s, %s, %s\nv_max_f32 %s, %s, %s" % (v(GN), v(A0), v(A0 + 2), v(A0 + 4), v(GN), v(GN), v(A0 + 6)))
    for k in range(4):
        e("v_sub_f32 %s, %s, %s" % (v(A0 + 2 * k), v(A0 + 2 * k), v(GN)))
    for k in range(4):
        e("v_exp_f32 %s, %s" % (v(A0 + 2 * k), v(A0 + 2 * k)))
    e("v_mul_f32 %s, %s, %s" % (v(GN + 2), v(A0), v(A0 + 1)))
    for k in range(1, 4):
        e("v_fma_f32 %s, %s, %s, %s" % (v(GN + 2), v(A0 + 2 * k), v(A0 + 2 * k + 1), v(GN + 2)))
    e("v_mov_b32 %s, s62\nv_mov_b32 %s, s63\nv_mov_b32 %s, 1" % (v(GN + 1), v(GN + 3), v(cU)))
    e("ds_write_b32 %s, %s offset:%d\nds_write_b32 %s, %s offset:%d" % (v(A0 + 21), v(GN), ML, v(cZ), v(cU), F_ML))
    stamp()
    if be:
        cm("sum the B partials of the four waves and send them")
        lds_wait(F_DB, "eq", 4, cZ, cT, sleep=2)
        e("s_add_u32 s46, s36, 16384\ns_addc_u32 s47, s37, 0\ns_waitcnt lgkmcnt(0)")
        sumpub(DB_L, A0, c16, cA, 46, TP)
    jitter(3)
    jitter(3)
    e("s_mov_b64 exec, 0xff")
    groupstore("global_store_dwordx4 %s, %s, s[38:39]" % (v(c16), v(GN, 4)))
    e("s_mov_b64 exec, -1")
    for n in range(len(early), len(ms) if ctl else 0):
        reference(n)
    if w4 and blate:
        lds_wait(F_DB, "eq", 4, cZ, cT, sleep=2)
        e("s_add_u32 s46, s36, 16384\ns_addc_u32 s47, s37, 0\ns_waitcnt lgkmcnt(0)")
        sumpub(DB_L, 112, c16, cA, 46, TP, False)
    elif w4:
        cm("sum the B partials of the four waves and send them")
        lds_wait(F_DB, "eq", 4, cZ, cT, sleep=2)
        e("s_add_u32 s46, s36, 16384\ns_addc_u32 s47, s37, 0\ns_waitcnt lgkmcnt(0)")
        sumpub(DB_L, A0, c16, cA, 46, TP)
    if wc:
        e("v_and_b32 v110, 7, v1\nv_lshlrev_b32 v111, 2, v110\nv_lshlrev_b32 v110, 7, v110")
        e("s_lshl_b32 s34, s31, 11\ns_lshr_b32 s35, s32, 2\ns_lshl_b32 s35, s35, 4\ns_add_u32 s34, s34, s35")
        e("s_add_u32 s34, s34, 0x%x\ns_add_u32 s52, s28, s34\ns_addc_u32 s53, s29, 0\ns_mov_b64 exec, 0xffff" % G_OFF)
        lg = "global_load_dwordx4 v[112:115], v110, s[52:53] sc1\nglobal_load_dwordx4 v[116:119], v110, s[52:53] offset:1024 sc1"
        e(lg, "g")
        weights(112, 116, cT, cU, lg)
        e("ds_write_b32 v111, v112 offset:%d\nds_write_b32 v111, v116 offset:%d\ns_mov_b64 exec, -1" % (WT, WT + 32))
    e("s_setprio 3")
    if warm and warm2:
        e("s_getpc_b64 s[42:43]")
        e.label("L_pc1")
        e("s_sub_u32 s42, s42, L_pc1-L_sdone+4096\ns_subb_u32 s43, s43, 0")
        e("v_lshlrev_b32 %s, 7, v1\nv_min_u32 %s, L_end-L_sdone+4096, %s" % (v(cU), v(cU), v(cU)))
        e("global_load_dword %s, %s, s[42:43]" % (v(A0 + 44), v(cU)))
    e("s_waitcnt lgkmcnt(0)\ns_barrier")
    if w4 and blate:
        groupstore("global_store_dwordx4 %s, %s, s[46:47]" % (v(cA), v(112, 4)))
    cm("sum the A partials of the four waves and send them")
    sumpub(DA_L, A0, c16, cA, 36, TP)
    if pfirst:
        e("s_barrier")
    stamp()
    e("s_cmp_ge_u32 s3, %d\ns_cbranch_scc1 L_cdone" % NF)
    cm("level 2 (workgroups 0..71): 16 output columns = sum over 128 row slices")
    F0 = 128
    if tpr:
        e("s_setprio 0")
    if fpos >= 0:
        NL, J = e.newlabel("nl"), e.newlabel("fj")
        e("s_cmp_lg_u32 s61, 1\ns_cbranch_scc1 %s" % NL)
        lds_wait(F_T3, "ge", 1, cZ, cT)
        L = e.newlabel("fp")
        e("s_mov_b32 s35, 64\ns_mov_b32 exec_hi, 0xffff")
        e.label(L)
        e("global_load_dwordx2 v[108:109], v106, s[28:29] sc1\ns_waitcnt vmcnt(0)")
        e("v_xor_b32 v108, s62, v108\nv_bitop3_b32 v108, v108, v109, s63 bitop3:0xf6\nv_cmp_ne_u32 vcc, 0, v108")
        e("s_cbranch_vccz %s\ns_sub_u32 s35, s35, 1\ns_cbranch_scc0 %s\ns_branch %s" % (J, L, J))
        e.label(NL)
        lds_wait(F_T3, "ge", 6, cZ, cT)
        e.label(J)
        e("s_mov_b64 exec, -1")
        e.vm = []
    elif fb:
        e("s_barrier")
    elif fdel:
        lds_wait(F_T3, "ge", fdel + w4, cZ, cT)
    if fsl:
        e("s_sleep %d" % fsl)
    L, D = e.newlabel("l2"), e.newlabel("l2d")
    e("s_mov_b32 s35, %d" % SPIN)
    e.label(L)
    NL2 = 2 << pb
    for k in range(NL2):
        e("global_load_dwordx4 %s, %s, s[%d:%d] offset:%d %s" % (v(F0 + 4 * k, 4), v(c16), 40 + k // 8 * 4, 41 + k // 8 * 4, 1024 * (k % 8) - 4096, l2lf))
    for k in range(NL2):
        x = F0 + 4 * k
        e("s_waitcnt vmcnt(%d)" % (NL2 - 1 - k))
        for r in range(4):
            e("v_xor_b32 %s, %s, %s" % (v(x + r), v(x + r), v(TG + r)))
        if k == 0:
            e("v_or_b32 %s, %s, %s\nv_or_b32 %s, %s, %s" % (v(cT), v(x), v(x + 1), v(cU), v(x + 2), v(x + 3)))
        else:
            e("v_or3_b32 %s, %s, %s, %s\nv_or3_b32 %s, %s, %s, %s" % (v(cT), v(cT), v(x), v(x + 1), v(cU), v(cU), v(x + 2), v(x + 3)))
            if trim & 1:
                for r in (0, 2):
                    e("v_pk_add_f32 %s, %s, %s" % (v(F0 + r, 2), v(F0 + r, 2), v(x + r, 2)))
            else:
                for r in range(4):
                    e("v_add_f32 %s, %s, %s" % (v(F0 + r), v(F0 + r), v(x + r)))
    e.vm = []
    e("v_or_b32 %s, %s, %s\nv_and_b32 %s, 0xff, %s\nv_cmp_ne_u32 vcc, 0, %s" % (v(cT), v(cT), v(cU), v(cT), v(cT), v(cT)))
    e("s_cbranch_vccz %s\ns_sub_u32 s35, s35, 1\ns_cbranch_scc0 %s" % (D, L))
    e.label(D)
    e.hist = []
    stamp()
    rr = [F0, F0 + 1, F0 + 2, F0 + 3]
    if trim & 2:
        e("v_permlane32_swap_b32 %s, %s\nv_permlane32_swap_b32 %s, %s" % (v(F0), v(F0 + 2), v(F0 + 1), v(F0 + 3)))
        e("v_pk_add_f32 %s, %s, %s" % (v(F0, 2), v(F0, 2), v(F0 + 2, 2)))
        e("v_permlane16_swap_b32 %s, %s\nv_add_f32 %s, %s, %s" % (v(F0), v(F0 + 1), v(F0), v(F0), v(F0 + 1)))
        dppred("v_add_f32", [F0], ["row_ror:4", "row_ror:8"])
        e("v_cvt_pk_bf16_f32 %s, %s, %s\ns_mov_b32 exec_lo, 0x000f000f\ns_mov_b32 exec_hi, 0x000f000f" % (v(A0), v(F0), v(F0)))
        e("global_store_short %s, %s, s[24:25] %s" % (v(cO), v(A0), outf))
    else:
        dppred("v_add_f32", rr, ["row_ror:%d" % (1 << k) for k in range(pb, 4)])
        xrow("v_add_f32", rr, [F0 + 4, F0 + 5, F0 + 6, F0 + 7])
        e("v_cvt_pk_bf16_f32 %s, %s, %s\nv_cvt_pk_bf16_f32 %s, %s, %s" % (v(A0), v(F0), v(F0 + 1), v(A0 + 1), v(F0 + 2), v(F0 + 3)))
        e("s_mov_b64 exec, %d\nglobal_store_dwordx2 %s, %s, s[24:25] %s" % ((1 << (1 << pb)) - 1, v(cO), v(A0, 2), outf))
    e.label("L_cdone")
    stamp()
    write_stamps(cT, "c")
    e.label("L_end")
    e("s_endpgm")
    e.raw('.section .rodata,"a"\n.p2align 6\n.amdhsa_kernel %s' % KN)
    e.raw("  .amdhsa_next_free_vgpr %d\n  .amdhsa_next_free_sgpr 102\n  .amdhsa_accum_offset %d" % (NV, (NV + 3) // 4 * 4))
    e.raw("  .amdhsa_group_segment_fixed_size 0\n  .amdhsa_kernarg_size 104\n  .amdhsa_user_sgpr_count 2")
    e.raw("  .amdhsa_user_sgpr_kernarg_segment_ptr 1\n  .amdhsa_system_sgpr_workgroup_id_x 1")
    e.raw("  .amdhsa_float_denorm_mode_32 3\n.end_amdhsa_kernel")
    txt = e.text()
    if nocomp:
        txt = "\n".join(l for l in txt.split("\n") if not l.strip().startswith(("v_mfma", "v_perm_b32", "v_add_f32_dpp", "v_mov_b32_dpp", "s_nop", "v_exp", "v_fma"))) + "\n"
    return txt


if __name__ == "__main__":
    for spec in sys.argv[1:]:
        name, _, kv = spec.partition(":")
        kw = {}
        for p in kv.split(","):
            if not p:
                continue
            k, val = p.split("=")
            val = val.replace("+", " ")
            kw[k] = int(val) if val.lstrip("-").isdigit() else ("" if val == "none" else val)
        path = name if "/" in name else "work/%s.s" % name
        open(path, "w").write(gen(**kw))
```

```python
import sys, struct, math, contextlib
sys.path.insert(0, "work")
from asmlib import Em

KN = "concat_heads__gqa_block_cached__sliding_block_cached__decode_kernel"
HDR = open("concat_heads__gqa_block_cached__sliding_block_cached__decode.s.ref").read().split("; Override launch")[0]

Q_OFF, G_OFF, X_OFF, RP_OFF, L1_OFF, L2_OFF = 0x0, 0x10000, 0x20000, 0x24000, 0x40000, 0xC0000
STAMP_OFF = 0x10000000
QP, QB, FL, ML, MW, DA_L, DB_L, W8_L, LDS_SZ = 0, 2048, 3072, 3328, 3392, 4096, 8192, 12288, 16384
WT = 3584
F_QP, F_Q, F_T1, F_T2, F_B1, F_ML, F_N0, F_N1, F_T3, F_LOC, F_REF, F_SLP, F_P, F_DB = [FL + 4 * i for i in range(14)]
AMAPS = {
    0: ([13, 15, 11, 16, 19, 22, 10, 20, 14, 18, 21, 17, 12], [0, 0, 0, 0, 1, 128, 64], [8, 0, 0, 0]),
    1: ([21, 15, 11, 16, 19, 10, 22, 20, 14, 18, 17, 12, 13], [0, 0, 0, 0, 1, 128, 64], [8, 0, 0, 1]),
    2: ([21, 10, 22, 19, 15, 13, 17, 11, 12, 18, 14, 16, 20], [32, 128, 0, 8, 64, 1, 0], [0, 0, 0, 0]),
    3: ([21, 10, 16, 22, 19, 17, 20, 14, 12, 13, 15, 18, 11], [128, 16, 0, 32, 0, 0, 32], [0, 4, 4, 1]),
    4: ([13, 14, 16, 22, 19, 17, 20, 10, 12, 21, 11, 18, 15], [8, 0, 0, 0, 256, 0, 8], [8, 4, 0, 0]),
    5: ([21, 17, 22, 16, 19, 10, 12, 14, 20, 18, 15, 13, 11], [0, 0, 16, 0, 0, 0, 4], [1, 1, 0, 1]),
    6: ([13, 11, 16, 22, 19, 17, 14, 12, 10, 21, 20, 18, 15], [0, 0, 0, 0, 0, 0, 1], [1, 0, 0, 2]),
    7: ([13, 14, 12, 16, 20, 22, 10, 19, 15, 11, 21, 18, 17], [0, 256, 8, 0, 1, 128, 0], [1, 0, 2, 8]),
    8: ([10, 12, 19, 15, 13, 21, 22, 16, 17, 11, 18, 14, 20], [2, 256, 0, 64, 2, 64, 64], [0, 0, 0, 4]),
    9: ([10, 12, 19, 15, 17, 22, 21, 16, 13, 20, 18, 14, 11], [128, 0, 0, 0, 256, 64, 128], [0, 4, 4, 0]),
    10: ([17, 15, 13, 19, 22, 10, 14, 21, 16, 20, 18, 11, 12], [512, 0, 0, 8, 64, 0, 256], [0, 8, 1, 2]),
    11: ([21, 14, 18, 22, 19, 17, 12, 11, 20, 13, 10, 16, 15], [0, 0, 8, 0, 1, 0, 8], [0, 4, 4, 4]),
    12: ([13, 14, 20, 15, 19, 22, 10, 12, 16, 11, 18, 21, 17], [0, 64, 8, 256, 1, 128, 0], [0, 0, 0, 0]),
    13: ([17, 21, 19, 16, 22, 10, 14, 13, 15, 20, 12, 11, 18], [0, 4, 0, 8, 64, 16, 256], [0, 2, 0, 1]),
    14: ([13, 10, 20, 16, 19, 14, 22, 12, 15, 11, 21, 18, 17], [0, 64, 0, 0, 1, 16, 0], [0, 4, 0, 0]),
}
BMAPS = {
    0: ([13, 11, 18, 12, 19, 14, 16, 15, 10, 17], [4, 16, 0, 1], [1, 0, 0, 0]),
    1: ([13, 11, 18, 19, 12, 17, 14, 16, 15, 10], [2, 16, 0, 1], [0, 0, 0, 0]),
    2: ([13, 12, 17, 19, 18, 10, 14, 16, 15, 11], [512, 16, 0, 1], [0, 0, 0, 0]),
}


def conv(perm, scr, rm):
    nt = len(scr)
    B, H = [256, 512] + [1 << b for b in perm], [0] * 4
    for i in range(nt):
        for j in range(10):
            if scr[i] >> j & 1:
                if j < 6:
                    B[2 + nt + j] ^= 1 << perm[i]
                else:
                    H[j - 6] ^= 1 << perm[i]
    for i in range(4):
        for k in range(4):
            if rm[i] >> k & 1:
                H[k] ^= B[4 + nt + i]
    return B, H


def bits(B, H):
    f = lambda l: [sum(1 << b for b in x) for x in l]
    return f(B), f(H)


def rank(vs):
    vs, r = list(vs), 0
    for b in range(8, 23):
        p = [i for i, x in enumerate(vs) if x >> b & 1]
        if p:
            r += 1
            q = vs.pop(p[0])
            vs = [x ^ q if x >> b & 1 else x for x in vs]
    return r


AMAPS = {k: conv(*x) for k, x in AMAPS.items()}
BMAPS = {k: conv(*x) for k, x in BMAPS.items()}
AMAPS[20] = bits([[8], [9], [8, 15, 16, 20], [13], [10, 12, 14], [16, 22], [19], [15, 17, 20], [14, 19], [8, 12, 17], [20], [11], [8, 14, 18], [21], [8, 9, 16]],
                 [[10, 13, 17, 18, 20, 21], [9], [8, 21], [8, 11]])
AMAPS[21] = bits([[12, 19], [8], [16], [13], [9, 20], [22], [19, 20], [14, 19], [10], [8, 15, 17], [9], [11], [16, 21], [14, 18], [17]],
                 [[10, 14], [22], [19, 21], [8, 9]])
CSC = struct.unpack("<I", struct.pack("<f", 128 ** -0.5 * math.log2(math.e)))[0]
SPIN = 1 << 19
MF = "v_mfma_f32_16x16x32_bf16"


DOC = r"""; ---------------------------------------------------------------------------------------------------------------------
;
; Arithmetic.  All products run on v_mfma_f32_16x16x32_bf16 with the data in the layout the coalesced load leaves:
;   P.V, x.wq, o.wo: the other operand is one-hot (one bf16 per lane, placed with v_perm_b32).
;   Stores are write-through (sc1); inside a group they stay in the L2 only when every member reported the same XCD.
; ---------------------------------------------------------------------------------------------------------------------"""


def v(a, n=1):
    return "v%d" % a if n == 1 else "v[%d:%d]" % (a, a + n - 1)


def gen(stamps=0, kvflags="nt", wflags="nt", warm=1, touch=0, W="5", L="4568", W0=5, Wc=5, boost=1, wqw=6,
        raw=0, fine=0, enc="", amap=14, bmap=2, hs="lo", qtrig=16, gtrig=80, gld=40, okeep=2, pre1=1, nsl=0, Wend=0, nend=0,
        ctl=2, cb=1063, t0=-24, t1=26, t2=75, mlist="5.9.15.21.28", mdel=2, l1f="auto", fdel=3, fack=1, outf="", order=2, xpos=2, pst=0, wl=10, olast=0, Wwo=7, fsl=0, l1c=1, stouch=0, pb=2, rsh=8, rf="sc1", nrep=8, swapt=0, smar=20, LP="", npump=0, rt=0, l1lf="sc1", l1sf="", noq=0, warm2=0, wob=0, wthr="", wearly=0, LW="", qsf="sc1", qlf="sc1", spre=0, qpre=0, swarm=0, fpos=-1, npoll=1, rcor=0, lcor=0, jit=0, nocomp=0, w4=0, g8a=12, g8d=3, wcap=99, tu=99, u0=-12, u1=14, u2=45, dbl=99, cpr=3, csl=0, trim=7, dg=0, pdirty=0, wskip=0, pfirst=0, wf=0, blate=0, gst=0, gsd=4, be=0, scp=22, wc=1, hb=0, sb=1, pend=0, qb=0, ot=0, otf="", p2=0, fb=0, tpr=0, wb=0, wbn=240, ssp=0, pad=0, np1=1, psl=0, pr2=0):
    if wf:
        w4, g8a = 1, -2
    NF = 288 >> pb
    W = str(W)
    LV0 = [int(c, 16) for c in str(L)]
    if ctl:
        W = "%x" % LV0[3]
    ms = [int(x) for x in str(mlist).split(".")]
    sl1 = sl2 = l2pad = 0
    l2q = 1
    l2sf = l2lf = "sc1"
    e = Em()
    e.raw(HDR.rstrip())
    e.raw("; @launch grid=(256,1,1) block=(320,1,1) lds=%d" % (LDS_SZ if wf else W8_L))
    e.raw(DOC)
    e.raw('.amdgcn_target "amdgcn-amd-amdhsa--gfx950"')
    if pad:
        e.raw(".text\n.fill %d, 4, 0xbf810000" % (64 * pad))
    e.raw(".text\n.globl %s\n.p2align 8\n.type %s,@function\n%s:" % (KN, KN, KN))
    nst = [0]
    cm = lambda t: e.raw("; " + t)

    def stamp(p=0):
        if stamps and (p <= pst) and not (pst and nst[0] >= 11):
            assert nst[0] < 12
            e("s_memrealtime s[%d:%d]" % (70 + 2 * nst[0], 71 + 2 * nst[0]))
            nst[0] += 1

    def write_stamps(vt, role):
        if not stamps:
            return
        if enc:
            e("s_waitcnt lgkmcnt(0)\ns_mov_b64 exec, 1\nv_mov_b32 %s, 0" % v(vt))
            if role == "c":
                e("s_sleep 127\ns_sleep 127")
                e("s_not_b32 s33, s70\nv_mov_b32 %s, s33\nglobal_atomic_umax %s, %s, s[26:27] offset:128" % (v(vt + 1), v(vt), v(vt + 1)))
            if enc[0] == role:
                idx = int(enc[1:-1])
                e("s_mov_b32 s33, s%d" % (70 + 2 * idx))
                if enc[-1] == "n":
                    e("s_not_b32 s33, s33")
                skip = e.newlabel("sk")
                if role == "s" and idx == 9:
                    e("s_cmp_eq_u32 s30, 3\ns_cbranch_scc1 %s" % skip)
                if role == "c" and idx == 6:
                    e("s_cmp_ge_u32 s3, 72\ns_cbranch_scc1 %s" % skip)
                if role == "s":
                    e("s_sleep 127\ns_sleep 127")
                e("v_mov_b32 %s, s33\nglobal_atomic_umax %s, %s, s[26:27] offset:192" % (v(vt + 1), v(vt), v(vt + 1)))
                e.label(skip)
            if role == "c":
                L1, L2, D = e.newlabel("e1"), e.newlabel("e2"), e.newlabel("ed")
                e("s_cmp_lg_u32 s2, 0\ns_cbranch_scc1 %s" % D)
                e.label(L1)
                e("s_sleep 8\ns_memrealtime s[60:61]\ns_waitcnt lgkmcnt(0)\ns_sub_u32 s33, s60, s70\ns_cmp_lt_u32 s33, 19000\ns_cbranch_scc1 %s" % L1)
                e("s_load_dword s62, s[26:27], 128 glc\ns_load_dword s63, s[26:27], 192 glc\ns_waitcnt lgkmcnt(0)")
                e("s_not_b32 s62, s62")
                if enc[-1] == "n":
                    e("s_not_b32 s63, s63")
                e("s_sub_u32 s63, s63, s62")
                if enc == "z":
                    e("s_mov_b32 s63, 0")
                e("s_min_u32 s63, s63, 20000\ns_lshl_b32 s63, s63, 2\ns_add_u32 s63, s63, 20000")
                e.label(L2)
                e("s_memrealtime s[60:61]\ns_waitcnt lgkmcnt(0)\ns_sub_u32 s33, s60, s62\ns_cmp_lt_u32 s33, s63\ns_cbranch_scc1 %s" % L2)
                e.label(D)
            return
        e("s_waitcnt lgkmcnt(0)")
        e("s_mul_i32 s33, s3, 6\ns_add_u32 s33, s33, s30\ns_lshl_b32 s33, s33, 6\ns_add_u32 s33, s33, 0x%x" % STAMP_OFF)
        e("s_mov_b64 exec, 1\nv_mov_b32 %s, s33" % v(vt))
        for i in range(16):
            e("v_mov_b32 %s, s%d" % (v(vt + 1), 70 + 2 * min(i, nst[0] - 1)))
            e("global_store_dword %s, %s, s[28:29] offset:%d" % (v(vt), v(vt + 1), 4 * i))

    def jitter(k):
        if jit >> k & 1:
            L = e.newlabel("jt")
            e("s_memtime s[100:101]\ns_waitcnt lgkmcnt(0)\ns_mul_i32 s100, s100, 0x9e3779b1\ns_lshr_b32 s100, s100, 27")
            e.label(L)
            e("s_sleep 16\ns_sub_u32 s100, s100, 1\ns_cbranch_scc0 %s" % L)

    def lds_wait(flag, cmp, val, vz, vt, sleep=0):
        if raw:
            return
        L, D = e.newlabel("lw"), e.newlabel("lwd")
        e("s_mov_b32 s35, %d" % (SPIN * 16))
        e.label(L)
        e("ds_read_b32 %s, %s offset:%d\ns_waitcnt lgkmcnt(0)\nv_readfirstlane_b32 s34, %s" % (v(vt), v(vz), flag, v(vt)))
        e("s_cmp_%s_u32 s34, %s\ns_cbranch_scc1 %s" % (cmp, val, D))
        if sleep:
            e("s_sleep %d" % sleep)
        e("s_sub_u32 s35, s35, 1\ns_cbranch_scc0 %s" % L)
        e.label(D)

    @contextlib.contextmanager
    def optional(skipcmp):
        J = e.newlabel("opt")
        e("%s\ns_cbranch_scc1 %s" % (skipcmp, J))
        hist, vm = list(e.hist), list(e.vm)
        yield
        e("s_nop 1")
        e.label(J)
        e.hist, e.vm = hist, vm

    def xrow(op, r, t):
        for sw in ("v_permlane16_swap_b32", "v_permlane32_swap_b32"):
            for a, b in zip(r, t):
                e("v_mov_b32 %s, %s" % (v(b), v(a)))
            for a, b in zip(r, t):
                e("%s %s, %s" % (sw, v(a), v(b)))
            for a, b in zip(r, t):
                e("%s %s, %s, %s" % (op, v(a), v(a), v(b)))

    def dppred(op, r, pats):
        for p in pats:
            for a in r:
                e("%s_dpp %s, %s, %s %s row_mask:0xf bank_mask:0xf" % (op, v(a), v(a), v(a), p))

    def tagsel():
        for r in range(4):
            e("s_mov_b32 s%d, 0x%08x" % (64 + r, 0x07060500 + r))

    def tagreg(dst, bit, tmp, put=None, chk=None):
        e("v_and_b32 %s, %d, v1\nv_cmp_ne_u32 vcc, 0, %s\nv_mov_b32 %s, s62\nv_mov_b32 %s, s63" % (v(tmp), bit, v(tmp), v(dst), v(tmp)))
        e("v_cndmask_b32 %s, %s, %s, vcc" % (v(dst), v(dst), v(tmp)))
        if chk is not None:
            for r in (3, 2, 1, 0):
                e("v_bfe_u32 %s, %s, %d, 8" % (v(chk + r), v(dst), 8 * r))

    def tagput(x, t):
        for r in range(4):
            e("v_perm_b32 %s, %s, %s, s%d" % (v(x + r), v(x + r), v(t), 64 + r))

    def tagcheck(regs, t, a0, a1):
        for k, x in enumerate(regs):
            for r in range(4):
                e("v_xor_b32 %s, %s, %s" % (v(x + r), v(x + r), v(t + r)))
            if k == 0:
                e("v_or_b32 %s, %s, %s\nv_or_b32 %s, %s, %s" % (v(a0), v(x), v(x + 1), v(a1), v(x + 2), v(x + 3)))
            else:
                e("v_or3_b32 %s, %s, %s, %s\nv_or3_b32 %s, %s, %s, %s" % (v(a0), v(a0), v(x), v(x + 1), v(a1), v(a1), v(x + 2), v(x + 3)))
        e("v_or_b32 %s, %s, %s\nv_and_b32 %s, 0xff, %s\nv_cmp_ne_u32 vcc, 0, %s" % (v(a0), v(a0), v(a1), v(a0), v(a0), v(a0)))

    def groupstore(txt):
        if l1f != "auto":
            e(txt + " " + l1f)
            return
        A, J = e.newlabel("gs"), e.newlabel("gsj")
        e("s_cmp_eq_u32 s61, 1\ns_cbranch_scc1 %s\n%s sc1\ns_branch %s" % (A, txt, J))
        e.label(A)
        e(txt + " " + l1sf)
        e.label(J)

    def l1_out_addr(dst, t0, t1, sb, pr, tg):
        if l1c:
            e("v_lshlrev_b32 %s, 8, v1" % v(dst))
            e("s_lshl_b32 s33, s31, 15\ns_lshl_b32 s34, s32, 4\ns_add_u32 s33, s33, s34\ns_add_u32 s33, s33, 0x%x" % (L1_OFF + 16384 * pr))
            e("s_add_u32 s%d, s28, s33\ns_addc_u32 s%d, s29, 0" % (sb, sb + 1))
            e("s_bitcmp1_b32 s32, 0\ns_cselect_b32 s33, s63, s62\nv_mov_b32 %s, s33" % v(tg))
            return
        e("v_lshrrev_b32 %s, 3, v1\nv_lshlrev_b32 %s, 11, %s\nv_and_b32 %s, 7, v1\nv_lshl_add_u32 %s, %s, 4, %s" % (
            v(t0), v(t0), v(t0), v(t1), v(dst), v(t1), v(t0)))
        e("s_lshl_b32 s33, s31, 15\ns_lshl_b32 s34, s32, 7\ns_add_u32 s33, s33, s34\ns_add_u32 s33, s33, 0x%x" % (L1_OFF + 16384 * pr))
        e("s_add_u32 s%d, s28, s33\ns_addc_u32 s%d, s29, 0" % (sb, sb + 1))

    def sumpub(lds, a0, l16, adr, sb, t, send=True):
        for k in range(4):
            e("ds_read_b128 %s, %s offset:%d" % (v(a0 + 4 * k, 4), v(l16), lds + 1024 * k))
        e("s_waitcnt lgkmcnt(2)" if not stamps else "s_waitcnt lgkmcnt(0)")
        for k in range(4):
            e("v_add_f32 %s, %s, %s" % (v(a0 + k), v(a0 + k), v(a0 + 4 + k)))
        e("s_waitcnt lgkmcnt(0)")
        for k in range(4):
            e("v_add_f32 %s, %s, %s" % (v(a0 + 8 + k), v(a0 + 8 + k), v(a0 + 12 + k)))
        for k in range(4):
            e("v_add_f32 %s, %s, %s" % (v(a0 + k), v(a0 + k), v(a0 + 8 + k)))
        tagput(a0, t)
        jitter(1)
        if not send:
            return
        groupstore("global_store_dwordx4 %s, %s, s[%d:%d]" % (v(adr), v(a0, 4), sb, sb + 1))

    e("s_load_dwordx16 s[4:19], s[0:1], 0\ns_load_dwordx8 s[20:27], s[0:1], 64\ns_load_dwordx2 s[28:29], s[0:1], 96")
    stamp()
    cm("s30 = wave, s31 = kv head, s32 = split; later s3 = workgroup id, s2 = head*16 + split")
    e("v_readfirstlane_b32 s30, v0\nv_and_b32 v1, 63, v0\ns_and_b32 s31, s2, 15\ns_lshr_b32 s32, s2, 4")
    e("s_cmp_ge_u32 s32, 16\ns_cbranch_scc1 L_end")
    e("s_lshr_b32 s30, s30, 6\ns_cmp_eq_u32 s30, 4\ns_cbranch_scc1 L_comm")
    ids = "s_mov_b32 s3, s2\ns_lshl_b32 s2, s31, 4\ns_or_b32 s2, s2, s32"
    base_st = nst[0]

    def wavebase(dst, cfg, const):
        B, H = cfg
        assert rank(B) == len(B) and max(B + H) < 1 << (8 + len(B))
        masks = {b: sum(((x >> b) & 1) << j for j, x in enumerate(B[-6:] + H)) for b in range(8, 23)}
        e("s_lshl_b32 s%d, s31, 23" % dst)
        if const:
            e("s_or_b32 s%d, s%d, 0x%x" % (dst, dst, const))
        for b, m in sorted(masks.items()):
            if m == 0:
                continue
            if m & (m - 1) == 0:
                e("s_bfe_u32 s33, s41, 0x%x" % (0x10000 + m.bit_length() - 1))
            else:
                e("s_and_b32 s33, s41, 0x%x\ns_bcnt1_i32_b32 s33, s33\ns_and_b32 s33, s33, 1" % m)
            e("s_lshl_b32 s33, s33, %d\ns_or_b32 s%d, s%d, s33" % (b, dst, dst))

    def tmap(cfg, n):
        r = 0
        for i, x in enumerate(cfg[0][2:-6]):
            r ^= x if n >> i & 1 else 0
        return r

    vZ, vKO, vVO, vT0, vT1, vT2, vT3 = 2, 3, 4, 5, 6, 7, 8
    vMR, vLR, vMB, vLB, vPB, vFA, vDL, vFT = 9, 10, 11, 12, 13, 14, 15, 16
    vM0, vAD, vWO, vRF, vNX = 17, 18, 19, 252, 254
    SLO, SHI = 20, 24
    QB0, QB1 = 28, 32
    DA0, DBc = 36, 40
    GR, PI0, PI1 = 44, 48, 52
    DA1 = PI0
    BC = 56
    DQ, TT, SS = 64, 80, 84
    OP = 92
    RING = 124
    NV = 255
    slot = lambda i: RING + 32 * (i if i < 4 else i % 2)
    WO = slot(2)
    K0, NW = (24, 9) if wf else (32, 0)
    if wf:
        slot = lambda i: OP if i == 2 else RING + 32 * (i if i < 2 else (i + 1) % 2)

    cm("==== streaming waves.  q projection: 72 rows x 64 columns of wq per wave")
    e("s_and_b32 s33, s32, 4\ns_add_u32 s33, s33, s30\ns_mulk_i32 s33, 72")
    e("v_lshrrev_b32 %s, 4, v1\nv_mad_u32_u24 %s, %s, 18, s33\nv_bfe_u32 %s, v1, 3, 1\nv_add_u32 %s, %s, %s" % (
        v(vT3), v(vT3), v(vT3), v(vT0), v(vT0), v(vT0), v(vT3)))
    e("s_and_b32 s34, s32, 3\ns_lshl2_add_u32 s34, s31, s34\ns_lshl_b32 s34, s34, 7")
    e("v_and_b32 %s, 7, v1\nv_lshlrev_b32 %s, 4, %s\nv_add_u32 %s, s34, %s" % (v(vT1), v(vT1), v(vT1), v(vT2), v(vT1)))
    e("v_lshl_add_u32 %s, %s, 13, %s" % (v(vFA), v(vT0), v(vT2)))
    e("s_bitset0_b32 s32, 31\ns_movk_i32 s35, 0x4000\ns_cmp_ge_u32 s32, 8".split("\n", 1)[1])
    e("s_waitcnt lgkmcnt(0)")
    e("s_cselect_b64 s[36:37], s[20:21], s[10:11]")
    stamp(1)
    WQ = RING if wf else slot(2)
    XR = WQ + 40

    def ldwq(t):
        e("global_load_dwordx4 %s, %s, s[36:37] %s" % (v(WQ + 4 * t, 4), v(vFA), wflags), "wq%d" % t)
        if t < 8:
            e("v_add_u32 %s, %s, %s" % (v(vFA), "s35" if t < wqw else "0x4000", v(vFA)))

    for t in range(wqw):
        ldwq(t)
        if t == 0 and ssp & 1:
            e("s_cselect_b64 s[38:39], s[14:15], s[4:5]\ns_load_dword s46, s[38:39], 0")
        if t == xpos:
            e("s_cselect_b64 s[38:39], s[14:15], s[4:5]\nv_lshlrev_b32 %s, 1, %s" % (v(vT3), v(vT3)))
            for k in range(3):
                e("global_load_dwordx3 %s, %s, s[38:39] offset:%d" % (v(XR + 4 * k, 3), v(vT3), 12 * k), "x")
    e("s_cselect_b64 s[10:11], s[22:23], s[12:13]")
    if stouch:
        e("s_lshl2_add_u32 s33, s31, s30\ns_lshl_b32 s33, s33, 21\nv_mov_b32 %s, s33\ns_mov_b64 exec, 1" % v(vT2))
        e("global_load_dword %s, %s, s[6:7] nt\ns_mov_b64 exec, -1" % (v(GR), v(vT2)), "t")
    if ssp & 2:
        e("s_lshl2_add_u32 s33, s31, s30\ns_lshl_b32 s33, s33, 21\ns_load_dword s46, s[6:7], s33")
    if ssp & 4:
        e("s_load_dword s46, s[8:9], s33\ns_or_b32 s33, s33, 0x600000\ns_load_dword s46, s[16:17], s33\ns_load_dword s46, s[18:19], s33")
    e(ids)
    if swapt:
        e("s_bitcmp1_b32 s31, %d" % (swapt - 1))
        e("s_cselect_b64 s[46:47], s[16:17], s[6:7]\ns_cselect_b64 s[16:17], s[6:7], s[16:17]\ns_mov_b64 s[6:7], s[46:47]")
        e("s_cselect_b64 s[46:47], s[18:19], s[8:9]\ns_cselect_b64 s[18:19], s[8:9], s[18:19]\ns_mov_b64 s[8:9], s[46:47]")
    stamp(1)
    cm("lane offsets inside a 1 KiB load (K: 64-byte quads, V: linear) and the address map of problem A")
    e("v_lshlrev_b32 %s, 4, v1" % v(vVO))
    e("v_lshrrev_b32 %s, 4, v1\nv_lshlrev_b32 %s, 6, %s" % (v(vKO), v(vKO), v(vKO)))
    e("v_and_b32 %s, 3, v1\nv_lshl_add_u32 %s, %s, 4, %s" % (v(vT3), v(vKO), v(vT3), v(vKO)))
    e("s_lshl_b32 s41, s2, 2\ns_or_b32 s41, s41, s30")
    if rt:
        e("s_mov_b64 s[46:47], s[16:17]\ns_mov_b64 s[48:49], s[18:19]\ns_lshl_b32 s33, s3, 2\ns_or_b32 s33, s33, s30\ns_lshl_b32 s33, s33, 3")
        e("s_add_u32 s4, s28, 0x180000\ns_addc_u32 s5, s29, 0\ns_load_dwordx16 s[12:27], s[4:5], 0x2000\ns_load_dwordx2 s[44:45], s[4:5], s33\ns_load_dwordx2 s[94:95], s[4:5], 0x2040\ns_waitcnt lgkmcnt(0)")
        e("s_and_b32 s44, s44, 0x7ffff00\ns_and_b32 s45, s45, 0x7ffff00")
        e("s_and_b32 s26, s26, 0x7fff00\ns_and_b32 s27, s27, 0x7fff00\ns_and_b32 s94, s94, 0xfff00\ns_and_b32 s95, s95, 0xfff00")
        for k in range(11):
            e("s_and_b32 s%d, s%d, 0x%x" % (12 + k, 12 + k, 0x7fff00 if k < 7 else 0xfff00))
    else:
        wavebase(45, AMAPS[amap], 0)

    def segstart(dst, kind):
        lb = (AMAPS[amap] if kind[0] == "A" else BMAPS[bmap])[0][:2]
        lb = ["0x%x" % x for x in lb] if not rt else (["s26", "s27"] if kind[0] == "A" else ["s94", "s95"])
        if kind[1] == "K":
            e("v_xor_b32 %s, s%d, %s" % (v(dst), 45 if kind[0] == "A" else 44, v(vKO)))
        else:
            e("v_and_b32 %s, 0xf0, %s\nv_xor_b32 %s, s%d, %s" % (v(dst), v(vVO), v(dst), 45 if kind[0] == "A" else 44, v(dst)))
        for k in range(2):
            e("v_bfe_i32 %s, v1, %d, 1\nv_and_b32 %s, %s, %s\nv_xor_b32 %s, %s, %s" % (
                v(vT2), (2 if kind[1] == "K" else 4) + k, v(vT2), lb[k], v(vT2), v(dst), v(dst), v(vT2)))

    segstart(vAD, "AK")
    AK, AV = [("AK", u) for u in range(16)], [("AV", u) for u in range(16)]
    BB = [("BK", 0), ("BK", 1), ("BV", 0), ("BV", 1)]
    seq = AK + AV + BB if order == 1 else AK + BB + AV
    pos = {x: i for i, x in enumerate(seq)}
    breg = {"BK": 16, "BV": 18, "AK": 6, "AV": 8}
    if rt:
        breg.update(BK=46, BV=48)
    fdone = set()
    nxt = [None]
    NG = 2 if w4 else 3
    wok = lambda k: (k % NG) * 4 + k // NG
    NKV = 8 * len(seq)
    NLD = NKV if wf else NKV + 4 * NG
    st = {"next": -NW, "free": 0 if wf else 16, "landed": -1}

    def fstamp(n):
        if n % 2 == 1 and n // 2 + 1 < 64 and n not in fdone:
            fdone.add(n)
            e("s_memrealtime s[68:69]\ns_waitcnt lgkmcnt(0)\nv_writelane_b32 %s, s68, %d" % (v(vFT), n // 2 + 1))

    def issue_upto(n):
        n = min(n, st["free"], NLD)
        inwo = False
        while st["next"] < n:
            q = st["next"]
            i, j = q // 8, q % 8
            if q == -1:
                e("global_load_dwordx4 %s, %s, s[14:15] %s" % (v(WO + 32, 4), v(vWO), wflags), "u%d" % q)
            elif 0 <= i < len(seq):
                kind, u = seq[i]
                b = breg[kind]
                a = vAD
                cfg, nn, last = (AMAPS[amap], 8 * u + j, 127) if kind[0] == "A" else (BMAPS[bmap], 8 * u + j, 15)
                e("global_load_dwordx4 %s, %s, s[%d:%d] %s" % (v(slot(i) + 4 * j, 4), v(a), b, b + 1, kvflags), "u%d" % q)
                if nn < last and rt:
                    e("v_xor_b32 %s, s%d, %s" % (v(a), (12 if kind[0] == "A" else 19) + ((nn + 1) & -(nn + 1)).bit_length() - 1, v(a)))
                elif nn < last:
                    e("v_xor_b32 %s, 0x%x, %s" % (v(a), tmap(cfg, nn) ^ tmap(cfg, nn + 1), v(a)))
                elif i + 1 < len(seq):
                    assert nxt == [seq[i + 1][0]]
                    e("v_mov_b32 %s, %s" % (v(a), v(vNX)))
            else:
                k = q + NW if q < 0 else q - NKV
                if not inwo and not w4:
                    e("s_mov_b64 exec, s[50:51]")
                    inwo = True
                if k >= 12 - wskip:
                    e("s_mov_b64 exec, 1")
                k = wok(k)
                e("global_load_dwordx4 %s, %s, s[10:11] offset:%d %s" % (v(WO + 4 * k, 4), v(vWO), (k % 4) * 1152 + (k // 4) * 128, wflags), "u%d" % q)
            st["next"] += 1
        if inwo:
            e("s_mov_b64 exec, -1")

    thr = [t1]

    def setflags():
        e("s_cmp_gt_i32 s57, %s\ns_cselect_b64 vcc, -1, 0\ns_cselect_b32 s33, s98, s99\ns_cmp_gt_i32 s57, s33" % ("s24" if rt else thr[0]))

    def throttle(q):
        F, M, E = e.newlabel("tf"), e.newlabel("tm"), e.newlabel("te")
        LV = list(LV0)
        if LW and st["next"] >= NKV:
            LV[:3] = [int(c, 16) for c in str(LW)]
        if q >= NKV:
            LV = [int(c, 16) for c in str(wthr)] + [99]
        elif LP:
            pats = str(LP).split("x")[1 if seq[q // 8][0][1] == "V" else 0].split(".")
            LV[:3] = [int(c) for c in pats[q % len(pats)]]
        h = list(e.hist)
        e("s_cbranch_vccnz %s" % F)
        if LV[0] != LV[1]:
            e("s_cbranch_scc1 %s\ns_waitcnt vmcnt(%d)" % (M, LV[0] - 1))
            e.label(M)
        e("s_waitcnt vmcnt(%d)" % (LV[1] - 1))
        e.label(F)
        if LV[2] != LV[3]:
            e("s_cbranch_scc1 %s\ns_waitcnt vmcnt(%d)" % (E, LV[2] - 1))
            e.label(E)
        e.hist = h

    def pump():
        if ctl:
            want(st["next"] - LV0[3])

    def want(q, w=None):
        assert q < st["next"]
        if w is None:
            w = Wend if (nend and q >= NKV - nend) else int(W[q % len(W)], 16)
            if ctl and not (nend and q >= NKV - nend):
                while st["next"] < min(q + 1 + w, st["free"], NLD):
                    throttle(q)
                    e.waitvm("u%d" % q)
                    issue_upto(st["next"] + 1)
        e.waitvm("u%d" % q)
        st["landed"] = max(st["landed"], q)
        issue_upto(q + 1 + w)
        if fine == 1 and q // 8 not in fdone:
            fdone.add(q // 8)
            e("s_memrealtime s[68:69]\ns_waitcnt lgkmcnt(0)\nv_writelane_b32 %s, s68, %d" % (v(vFT), q // 8 + 1))
        if fine == 2:
            fstamp(q + 9)
        if fine == 3 and q >= NKV - 48 and q not in fdone:
            fdone.add(q)
            e("s_memrealtime s[68:69]\ns_waitcnt lgkmcnt(0)\nv_writelane_b32 %s, s68, %d" % (v(vFT), q - NKV + 49))

    def setup_wo():
        cm("wo rows of this workgroup: 32 rows x 192 columns per wave (waves 0..2)")
        e("v_lshrrev_b32 %s, 3, v1\nv_mul_u32_u24 %s, 4608, %s\nv_and_b32 %s, 7, v1" % (v(vT2), v(vT2), v(vT2), v(vT3)))
        e("v_lshl_add_u32 %s, %s, 4, %s" % (v(vWO), v(vT3), v(vT2)))
        e("s_lshl_b32 s34, s31, 3\ns_and_b32 s35, s32, 7\ns_add_u32 s56, s34, s35")
        if w4:
            e("s_mul_i32 s34, s56, %d\ns_lshl_b32 s35, s30, 8\ns_add_u32 s34, s34, s35" % (32 * 1152))
            e("s_add_u32 s10, s10, s34\ns_addc_u32 s11, s11, 0\ns_add_u32 s14, s10, 1024\ns_addc_u32 s15, s11, 0")
            if wf:
                e("s_mul_i32 s35, s30, %d\ns_add_u32 s14, s14, s35\ns_addc_u32 s15, s15, 0" % (1152 - 256))
            e("s_cmp_eq_u32 s30, 0\ns_cselect_b32 s50, -1, 0x00ff00ff\ns_mov_b32 s51, 0x00ff00ff")
            return
        e("s_mul_i32 s34, s56, %d\ns_min_u32 s35, s30, 2\ns_mul_i32 s35, s35, 384\ns_add_u32 s34, s34, s35" % (32 * 1152))
        e("s_add_u32 s10, s10, s34\ns_addc_u32 s11, s11, 0")
        e("s_cmp_lt_u32 s30, 3\ns_cselect_b64 s[50:51], -1, 1")

    if wf:
        setup_wo()
    issue_upto(W0 - 9 - NW)
    cm("v_perm selectors that build the one-hot MFMA operand")
    e("v_mov_b32 %s, 0" % v(vZ))
    e("v_and_b32 %s, 1, v1\nv_cmp_eq_u32 vcc, 1, %s" % (v(vT2), v(vT2)))
    e("v_mov_b32 %s, 0x0c0c0100\nv_mov_b32 %s, 0x01000c0c" % (v(BC), v(BC + 1)))
    e("v_mov_b32 %s, 0x0c0c0302\nv_mov_b32 %s, 0x03020c0c\nv_mov_b32 %s, 0x0c0c0c0c" % (v(BC + 2), v(BC + 3), v(BC + 4)))
    e("v_cndmask_b32 %s, %s, %s, vcc\nv_cndmask_b32 %s, %s, %s, vcc" % (v(BC), v(BC), v(BC + 1), v(BC + 2), v(BC + 2), v(BC + 3)))
    e("v_bfe_u32 %s, v1, 1, 2" % v(vT2))
    for i in range(4):
        e("v_cmp_eq_u32 vcc, %d, %s" % (i, v(vT2)))
        e("v_cndmask_b32 %s, %s, %s, vcc\nv_cndmask_b32 %s, %s, %s, vcc" % (v(SLO + i), v(BC + 4), v(BC), v(SHI + i), v(BC + 4), v(BC + 2)))
    e("v_and_b32 %s, 8, v1\nv_cmp_ne_u32 vcc, 0, %s" % (v(vT2), v(vT2)))
    for i in range(4):
        e("v_cndmask_b32 %s, %s, %s, vcc" % (v(BC + i), v(SLO + i), v(SHI + i)))
    e("v_lshrrev_b32 %s, 5, v1\nv_lshlrev_b32 %s, 8, %s" % (v(vT2), v(vT2), v(vT2)))
    e("v_lshl_add_u32 %s, %s, 1, %s" % (v(vT2), v(vT1), v(vT2)))
    e("v_and_b32 %s, 16, v1\ns_lshl_b32 s34, s30, 9\nv_add3_u32 %s, %s, %s, s34" % (v(vT3), v(vT2), v(vT2), v(vT3)))
    e("s_mov_b32 s40, 0x%x" % CSC)
    stamp(1)
    stamp(1)
    cm("x . wq while the first K loads go out")
    nwq = [wqw]
    for t in range(xpos + 1):
        e.waitvm("wq%d" % t)
        if t in (0, 2, 5):
            stamp(1)
        if t + wqw < 9:
            ldwq(t + wqw)
            nwq[0] += 1
        issue_upto(t + 1 + W0 - 9 - NW)
    e("s_barrier")
    e.waitvm("x")
    stamp(1)
    for t in range(9):
        o = OP + 4 * (t % 8)
        for i in range(4):
            xr = XR + 4 * (t // 3) + t % 3
            e("v_perm_b32 %s, %s, %s, %s" % (v(o + i), v(xr), v(xr), v(BC + i)))
        e.waitvm("wq%d" % t)
        if t + wqw < 9 and t + wqw >= nwq[0]:
            ldwq(t + wqw)
        issue_upto(t + 1 + W0 - 9 - NW)
        if fine == 2:
            fstamp(t)
        e("%s %s, %s, %s, %s" % (MF, v(DA0, 4), v(o, 4), v(WQ + 4 * t, 4), "0" if t == 0 else v(DA0, 4)))
    jitter(0)
    issue_upto(st["next"] + qb)
    e("s_mov_b32 exec_lo, 0x00ff00ff\ns_mov_b32 exec_hi, 0xff00ff00\nv_mov_b32 %s, 1" % v(vT3))
    e("ds_write_b128 %s, %s offset:%d" % (v(vT2), v(DA0, 4), QP))
    e("s_mov_b64 exec, 1\nds_add_u32 %s, %s offset:%d\ns_mov_b64 exec, -1" % (v(vZ), v(vT3), F_QP))
    stamp()
    st["free"] = K0
    if not rt:
        wavebase(44, BMAPS[bmap], 28672 * 256)
    e("v_and_b32 %s, 1, v1\nv_lshlrev_b32 %s, 8, %s" % (v(vT0), v(vT0), v(vT0)))
    e("v_lshrrev_b32 %s, 2, v1\nv_lshl_add_u32 %s, %s, 4, %s" % (v(vT2), v(vT0), v(vT2), v(vT0)))
    e("s_mov_b32 s42, 0xcccccccc\ns_mov_b32 s43, 0xcccccccc")
    e("v_and_b32 %s, 15, v1\nv_lshlrev_b32 %s, 5, %s" % (v(vT2), v(vT2), v(vT2)))
    e("v_and_b32 %s, 16, v1\nv_add_u32 %s, %s, %s" % (v(vT3), v(vT2), v(vT2), v(vT3)))
    e("v_and_b32 %s, 32, v1\nv_lshlrev_b32 %s, 4, %s\ns_lshl_b32 s34, s30, 10" % (v(vT3), v(vT3), v(vT3)))
    e("v_add3_u32 %s, %s, %s, s34" % (v(vDL), v(vT2), v(vT3)))
    e("v_lshrrev_b32 %s, 5, v1\nv_lshlrev_b32 %s, 4, %s" % (v(vT1), v(vT1), v(vT1)))
    def signal(flag):
        e("v_mov_b32 %s, 1\ns_mov_b64 exec, 1\nds_add_u32 %s, %s offset:%d\ns_mov_b64 exec, -1" % (v(vT3), v(vZ), v(vT3), flag))

    cm("fill the four-unit ring with K while q is exchanged")
    q = -NW
    while st["next"] < K0:
        want(q, W0 + (pend if st["next"] + 1 + pend >= K0 else 0))
        if q == qtrig + K0 - 32:
            signal(F_T1)
        q += 1
    catch = list(range(q + pend, K0))
    stamp()
    cm("wait for q")
    lds_wait(F_Q, "eq", 1, vZ, vT2)
    stamp()

    def catchup(n):
        for _ in range(n):
            if catch:
                want(catch.pop(0), Wc)

    def loadq(pr):
        e("ds_read_b128 %s, %s offset:%d\ns_waitcnt lgkmcnt(0)" % (v(QB0, 4), v(vT0), QB + 512 * pr))
        for i in range(4):
            e("v_cndmask_b32 %s, 0, %s, s[42:43]" % (v(QB1 + i), v(QB0 + i)))
        for i in range(4):
            e("v_cndmask_b32 %s, %s, 0, s[42:43]" % (v(QB0 + i), v(QB0 + i)))

    def mfK(i, j):
        r, t = j // 2, j % 2
        e("%s %s, %s, %s, %s" % (MF, v(DQ + 4 * r, 4), v(slot(i) + 4 * j, 4), v(QB1 if t else QB0, 4), v(DQ + 4 * r, 4) if t else "0"))

    def redK(rs, dst):
        for k in range(1, 4):
            for r in rs:
                c = (r + k) % 4
                src1 = DQ + 4 * r + r if k == 1 else TT + r
                e("v_add_f32_dpp %s, %s, %s row_ror:%d row_mask:0xf bank_mask:0x%x" % (
                    v(TT + r if k < 3 else dst), v(DQ + 4 * r + c), v(src1), 4 * ((r - c) % 4), 0xf if k < 3 else 1 << r))

    def finalize(n, m, l, pp, first):
        t = vT2
        if n == 2:
            e("v_max_f32 %s, %s, %s" % (v(t), v(SS), v(SS + 1)))
        else:
            e("v_max3_f32 %s, %s, %s, %s" % (v(t), v(SS), v(SS + 1), v(SS + 2)))
            e("v_max3_f32 %s, %s, %s, %s" % (v(t + 1), v(SS + 3), v(SS + 4), v(SS + 5)))
            e("v_max3_f32 %s, %s, %s, %s" % (v(t), v(t), v(SS + 6), v(SS + 7)))
            e("v_max_f32 %s, %s, %s" % (v(t), v(t), v(t + 1)))
        dppred("v_max_f32", [t], ["row_ror:2", "row_ror:4", "row_ror:8"])
        xrow("v_max_f32", [t], [t + 1])
        if first:
            e("v_mul_f32 %s, s40, %s" % (v(m), v(t)))
        else:
            e("v_mul_f32 %s, s40, %s\nv_max_f32 %s, %s, %s" % (v(t), v(t), v(t), v(t), v(m)))
            e("v_sub_f32 %s, %s, %s\nv_exp_f32 %s, %s\nv_mov_b32 %s, %s" % (v(t + 1), v(m), v(t), v(t + 1), v(t + 1), v(m), v(t)))
            e("v_mul_f32 %s, %s, %s" % (v(l), v(l), v(t + 1)))
        if n == 8 and npump >= 1:
            pump()
        for k in range(n):
            e("v_fma_f32 %s, %s, s40, -%s" % (v(SS + k), v(SS + k), v(m)))
        for k in range(n):
            e("v_exp_f32 %s, %s" % (v(SS + k), v(SS + k)))
        if n == 8 and npump >= 2:
            pump()
        for k in range(n // 2):
            e("v_cvt_pk_bf16_f32 %s, %s, %s" % (v(pp + k), v(SS + 2 * k), v(SS + 2 * k + 1)))
        for k in range(n):
            if first and k == 0:
                continue
            e("v_add_f32 %s, %s, %s" % (v(l), v(SS + k), v(SS) if (first and k == 1) else v(l)))

    def headsum(l):
        dppred("v_add_f32", [l], ["row_ror:2", "row_ror:4", "row_ror:8"])
        xrow("v_add_f32", [l], [vT2])

    def to_dlayout(dst, src):
        e("v_mov_b32_dpp %s, %s quad_perm:[0,0,0,0] row_mask:0x3 bank_mask:0xf" % (v(dst), v(src)))
        e("v_mov_b32_dpp %s, %s quad_perm:[1,1,1,1] row_mask:0xc bank_mask:0xf" % (v(dst), v(src)))

    def bc(j, pp, half):
        e("v_mov_b32_dpp %s, %s row_newbcast:%d row_mask:0xf bank_mask:0x%x" % (v(BC + j), v(pp), 2 * j + half, 0xc if half else 0x3))

    def perms(j, hi, lo_i=0, hi_i=4):
        for i in range(lo_i, hi_i):
            e("v_perm_b32 %s, %s, %s, %s" % (v(OP + 4 * j + i), v(BC + j), v(BC + j), v((SHI if hi else SLO) + i)))

    def prep_step(j, pp, hi):
        if j == 0:
            bc(0, pp, 0); bc(1, pp, 0); e("s_nop 0"); bc(0, pp, 1); bc(1, pp, 1)
            perms(0, hi)
            return
        if j < 7:
            bc(j + 1, pp, 0)
        perms(j, hi, 0, 2)
        if j < 7:
            bc(j + 1, pp, 1)
        perms(j, hi, 2, 4)

    def mfV(i, j, acc, first):
        e("%s %s, %s, %s, %s" % (MF, v(acc, 4), v(OP + 4 * j, 4), v(slot(i) + 4 * j, 4), "0" if first else v(acc, 4)))

    e("ds_read_b64 %s, %s offset:%d" % (v(GR, 2), v(vZ), F_N0))
    loadq(0)
    e("v_readfirstlane_b32 s62, %s\nv_readfirstlane_b32 s63, %s" % (v(GR), v(GR + 1)))
    if ctl:
        e("s_xor_b32 s55, s30, 1\ns_lshr_b32 s33, s3, %d\ns_or_b32 s55, s55, s33" % (nrep.bit_length() - 1))
        e("s_mov_b32 s98, %s\ns_mov_b32 s99, %s\ns_mov_b32 s57, 0" % (("s25", "s23") if rt else (t2, t0)))
        setflags()
    stamp()

    hooks = {}

    def at(q, f):
        hooks.setdefault(q, []).append(f)

    def send(c):
        cm("256 scores -> running max, probabilities (bf16 pairs), partial sum")
        issue_upto(st["next"] + boost)
        finalize(8, vMR, vLR, PI1 if c else PI0, c == 0)
        if c == 0:
            to_dlayout(vM0, vMR)
        stamp()

    def rec():
        cm("{max, sum} of this wave to LDS")
        headsum(vLB)
        e("v_mov_b32 %s, %s\nv_mov_b32 %s, %s\nv_mov_b32 %s, %s\nv_mov_b32 %s, %s" % (
            v(GR), v(vMR), v(GR + 1), v(vLR), v(GR + 2), v(vMB), v(GR + 3), v(vLB)))
        e("s_lshl_b32 s34, s30, 5\nv_add_u32 %s, s34, %s\ns_mov_b64 exec, 3" % (v(vT2), v(vVO)))
        e("ds_write_b128 %s, %s offset:%d" % (v(vT2), v(GR, 4), MW))
        signal(F_B1)

    TG1, TG2, AD1, AD2, AD3 = WO + 48, WO + 52, WO + 53, WO + 54, WO + 55

    def scales():
        cm("rescale to the maxima of the workgroup")
        issue_upto(st["next"] + sb)
        lds_wait(F_ML, "eq", 1, vZ, vT2)
        e("ds_read_b64 %s, %s offset:%d" % (v(GR, 2), v(vT1), ML))
        for k in range(4) if wf else ():
            e("ds_read_b128 %s, %s offset:%d" % (v(WO + 32 + 4 * k, 4), v(vVO), W8_L + 1024 * k))
        to_dlayout(vT2, vMB)
        to_dlayout(vFA, vMR)
        e("s_waitcnt lgkmcnt(0)")
        e("v_sub_f32 %s, %s, %s\nv_sub_f32 %s, %s, %s\nv_sub_f32 %s, %s, %s" % (
            v(vFA), v(vFA), v(GR), v(vT2), v(vT2), v(GR + 1), v(vT3), v(vM0), v(GR)))
        e("v_exp_f32 %s, %s\nv_exp_f32 %s, %s\nv_exp_f32 %s, %s" % (v(vFA), v(vFA), v(vT2), v(vT2), v(vT3), v(vT3)))
        for r in range(4):
            e("v_mul_f32 %s, %s, %s" % (v(DA0 + r), v(DA0 + r), v(vT3)))
        if order == 1:
            for r in range(4):
                e("v_fma_f32 %s, %s, %s, %s" % (v(DA0 + r), v(DA1 + r), v(vFA), v(DA0 + r)))
            e("v_mov_b32 %s, %s" % (v(vFA), v(vT2)))
            e("ds_write_b128 %s, %s offset:%d" % (v(vDL), v(DA0, 4), DA_L))
        else:
            for r in range(4):
                e("v_mul_f32 %s, %s, %s" % (v(DBc + r), v(DBc + r), v(vT2)))
            e("ds_write_b128 %s, %s offset:%d" % (v(vDL), v(DBc, 4), DB_L))
            if w4 or be:
                signal(F_DB)

    def setup_tail1():
        cm("addresses and tags of the level-1 inbox")
        tagsel()
        tagreg(TG1, 1 if l1c else 8, vT2, chk=TG1)
        if np1 > 1:
            e("s_movk_i32 s43, 0xff")
        e("v_and_b32 %s, 7, v1\nv_lshlrev_b32 %s, 7, %s\nv_lshrrev_b32 %s, 3, v1" % (v(vT2), v(vT2), v(vT2), v(vT3)))
        if l1c:
            e("v_lshrrev_b32 %s, 3, %s\nv_lshl_add_u32 %s, %s, 8, %s" % (v(AD1), v(vT2), v(AD1), v(vT3), v(AD1)))
        else:
            e("v_lshl_add_u32 %s, %s, 4, %s" % (v(AD1), v(vT3), v(vT2)))
        e("s_lshl_b32 s34, s2, 11\ns_add_u32 s34, s34, 0x%x\ns_add_u32 s46, s28, s34\ns_addc_u32 s47, s29, 0" % L1_OFF)
        if wc:
            e("v_lshrrev_b32 %s, 5, %s" % (v(AD3), v(vT2)))
            return
        e("v_mov_b32 %s, %s" % (v(AD3), v(vT2)))
        e("s_lshl_b32 s34, s31, 11\ns_lshr_b32 s35, s32, 2\ns_lshl_b32 s35, s35, 4\ns_add_u32 s34, s34, s35")
        e("s_add_u32 s34, s34, 0x%x\ns_add_u32 s52, s28, s34\ns_addc_u32 s53, s29, 0" % G_OFF)

    def setup_tail2():
        cm("address and tag of the level-2 outbox (wave 3: level-1 outbox of problem B)")
        tagreg(TG2, 1, vT2)
        e("v_and_b32 %s, 8, v1\nv_cmp_ne_u32 vcc, 0, %s\nv_lshrrev_b32 %s, 5, v1" % (v(vT2), v(vT2), v(vT3)))
        e("v_cndmask_b32 %s, %s, %d, vcc" % (v(vT3), v(vT3), 8 if w4 else 2))
        if pb < 3:
            e("v_bfe_u32 %s, v1, %d, %d\nv_lshl_add_u32 %s, %s, %d, %s" % (v(vT2), pb, 3 - pb, v(vT2), v(vT3), 3 - pb, v(vT2)))
        else:
            e("v_mov_b32 %s, %s" % (v(vT2), v(vT3)))
        e("v_bfe_u32 %s, v1, 4, 1\nv_lshl_add_u32 %s, %s, 1, %s\nv_lshlrev_b32 %s, %d, %s" % (v(vT3), v(vT2), v(vT2), v(vT3), v(vT2), 11 + pb, v(vT2)))
        e("v_and_b32 %s, %d, v1\nv_lshl_add_u32 %s, %s, 4, %s" % (v(vT3), (1 << pb) - 1, v(AD2), v(vT3), v(vT2)))
        e("s_lshr_b32 s34, s32, 3\ns_mul_i32 s34, s34, 9\ns_mul_i32 s35, s30, %d\ns_add_u32 s34, s34, s35\ns_lshl_b32 s34, s34, 15" % NG)
        e("s_lshl_b32 s35, s56, %d\ns_add_u32 s34, s34, s35\ns_add_u32 s34, s34, 0x%x" % (4 + pb, L2_OFF))
        e("s_add_u32 s48, s28, s34\ns_addc_u32 s49, s29, 0")
        if w4 or be:
            return
        with optional("s_cmp_lg_u32 s30, 3"):
            tagreg(TG2, 1, vT2)
            l1_out_addr(AD2, vT2, vT3, 48, 1, TG2)
        e("ds_read_b32 %s, %s offset:%d\ns_waitcnt lgkmcnt(0)\nv_readfirstlane_b32 s61, %s" % (v(vT2), v(vZ), F_LOC, v(vT2)))
        if fpos >= 0:
            e("s_lshl_b32 s33, s2, 7\ns_lshl_b32 s34, s30, 4\ns_add_u32 s33, s33, s34\ns_add_u32 s33, s33, 0x%x" % (G_OFF + 64))
            e("s_add_u32 s4, s28, s33\ns_addc_u32 s5, s29, 0\nv_mov_b32 %s, s62\nv_mov_b32 %s, s63\nv_mov_b32 %s, 1" % (v(QB0), v(QB0 + 1), v(QB0 + 2)))

    at(8 * 8 + 1, lambda: send(0))
    at(8 * 16 + 1, lambda: send(1))
    hsum = lambda: headsum(vLR)
    at(8 * 17 + 2, hsum)
    at(8 * pos[("BV", 0)] + 1, rec)
    if wf:
        at(8 * 4 + 2, lambda: e("s_lshl_b32 s33, s30, 10\nv_add_u32 %s, s33, %s\nds_write_b128 %s, %s offset:%d" % (v(vT2), v(vVO), v(vT2), v(WO + 32, 4), W8_L)))
    else:
        at(8 * 22 + 2, setup_wo)

    def prepnext(kind):
        segstart(vNX, kind)
        nxt[0] = kind
    for i in range(1, len(seq)):
        if seq[i][0] != seq[i - 1][0]:
            at(8 * i - 20, lambda kind=seq[i][0]: prepnext(kind))

    def ldg8(rg):
        with optional("s_cmp_lg_u32 s30, 0"):
            e("global_load_dwordx4 %s, %s, s[14:15] offset:%d %s" % (v(WO + 32 + 4 * rg, 4), v(vWO), rg * 1152, wflags))
    for rg in range(4) if (w4 and g8a > 0) else ():
        at(NKV - g8a + g8d * rg, lambda rg=rg: ldg8(rg))
    for qq in (70, 140, 150, 230, 280) if jit else ():
        at(qq, lambda: jitter(5))
    at(8 * 28, stamp)
    at(NKV - (7 if order == 1 else scp), scales)
    at(8 * 24 + 2, setup_tail1)
    at(8 * 26 + 2, setup_tail2)
    for k in range(1 << gst):
        at(NKV - gtrig + gsd * k, lambda: signal(F_T2))
    GA, GB = WO + 56, WO + 60
    ldg = "global_load_dwordx4 %s, %s, s[52:53] sc1\nglobal_load_dwordx4 %s, %s, s[52:53] offset:1024 sc1" % (v(GA, 4), v(AD3), v(GB, 4), v(AD3))
    ldg = ldg.replace("sc1", l1lf)
    red8 = ["quad_perm:[1,0,3,2]", "quad_perm:[2,3,0,1]", "row_half_mirror"]

    def weights(GA=GA, GB=GB, vT2=vT2, vT3=vT3, ldg=ldg):
        cm("softmax weights of the 16 splits")
        L, D = e.newlabel("g1"), e.newlabel("g1d")
        e.waitvm("g")
        e("s_mov_b32 s35, %d" % SPIN)
        e.label(L)
        e("v_xor_b32 %s, s62, %s\nv_xor_b32 %s, s63, %s" % (v(vT2), v(GA + 1), v(vT3), v(GA + 3)))
        e("v_bitop3_b32 %s, %s, %s, s62 bitop3:0xf6\nv_bitop3_b32 %s, %s, %s, s63 bitop3:0xf6" % (v(vT2), v(vT2), v(GB + 1), v(vT3), v(vT3), v(GB + 3)))
        e("v_or_b32 %s, %s, %s\nv_cmp_ne_u32 vcc, 0, %s\ns_cbranch_vccz %s" % (v(vT2), v(vT2), v(vT3), v(vT2), D))
        h, vm = list(e.hist), list(e.vm)
        if not raw:
            e(ldg + "\ns_waitcnt vmcnt(0)\ns_sub_u32 s35, s35, 1\ns_cbranch_scc0 %s" % L)
        e.label(D)
        e.hist, e.vm = h, vm
        e("v_max_f32 %s, %s, %s" % (v(vT2), v(GA), v(GB)))
        dppred("v_max_f32", [vT2], red8)
        e("v_sub_f32 %s, %s, %s\nv_sub_f32 %s, %s, %s" % (v(GA), v(GA), v(vT2), v(GB), v(GB), v(vT2)))
        e("v_exp_f32 %s, %s\nv_exp_f32 %s, %s" % (v(GA), v(GA), v(GB), v(GB)))
        e("v_mul_f32 %s, %s, %s\nv_fma_f32 %s, %s, %s, %s" % (v(vT2), v(GA), v(GA + 2), v(vT2), v(GB), v(GB + 2), v(vT2)))
        dppred("v_add_f32", [vT2], red8)
        e("v_rcp_f32 %s, %s" % (v(vT2), v(vT2)))
        e("v_mul_f32 %s, %s, %s\nv_mul_f32 %s, %s, %s" % (v(GA), v(GA), v(vT2), v(GB), v(GB), v(vT2)))

    if gld and not wc:
        at(NKV - gld, lambda: e(ldg, "g"))
        if wearly:
            at(NKV - gld + 11, weights)

    def ppof(kind, u):
        return (vPB, u) if kind == "BV" else ((PI1 if u >= 8 else PI0) + (u % 8) // 2, u % 2)

    reddone = set()

    def red(qq):
        if qq >= 0 and seq[qq // 8][0][1] == "K" and qq not in reddone:
            reddone.add(qq)
            redK([(qq % 8) // 2], SS + seq[qq // 8][1] % 8)

    for q in range(NKV):
        i, j = q // 8, q % 8
        kind, u = seq[i]
        if j == 0:
            cm("---- unit %d: %s %s %d" % (i, kind[0], "keys" if kind[1] == "K" else "values", u))
        if (kind, u, j) == ("BK", 0, 0):
            issue_upto(st["next"] + hb)
            loadq(1)
        if (kind, u, j) == ("BV", 0, 0):
            want(q)
            red(q - 1)
            finalize(2, vMB, vLB, vPB, True)
            want(q + 1)
            for k in range(8):
                prep_step(k, vPB, False)
            if npump:
                want(q + 2)
        if q < K0:
            want(q, 0 if q < catch[0] else Wc)
        else:
            want(q)
        if kind[1] == "K":
            mfK(i, j)
        else:
            mfV(i, j, DBc if kind == "BV" else (DA1 if u >= 8 else DA0), u % 8 == 0 and j == 0)
        st["free"] = min(K0 + 1 + q if q < 16 else max(K0 + 16, q + 17), NKV + wcap)
        if q < K0 and q % (K0 // 5) == 0 and len(catch) > 1:
            catchup(1)
        if j % 2 == 1:
            red(q - 2)
        if i + 1 < len(seq) and seq[i + 1][0][1] == "V" and seq[i + 1] != ("BV", 0):
            prep_step(j, *ppof(*seq[i + 1]))
        hk = hooks.pop(q, [])
        if hb and any(f in (rec, setup_tail1, setup_tail2, hsum) for f in hk):
            issue_upto(st["next"] + hb)
        for f in hk:
            f()
        if ctl and q >= K0:
            dirty = bool(hk)
            use = i > ms[0] + mdel
            if i == tu and j == 6:
                e("s_mov_b32 s98, %d\ns_mov_b32 s99, %d" % (u2, u0))
                thr[0] = u1
            if i >= dbl and j == 0:
                e("s_memrealtime s[96:97]")
            if i >= dbl and j == 2:
                e("s_waitcnt lgkmcnt(0)\ns_sub_u32 s57, s96, s54\ns_mul_i32 s33, s59, %d\ns_lshr_b32 s33, s33, 5\ns_cselect_b32 s57, s57, 0\ns_sub_u32 s57, s57, s33" % (2 * i - 1))
                dirty = True
            if j == 4 and i - mdel in ms:
                signal(F_P)
            if j == 4 and (use or i in ms):
                e("s_memrealtime s[58:59]")
                if use:
                    e("ds_read_b64 %s, %s offset:%d" % (v(vRF, 2), v(vZ), F_REF))
            if j == 6 and (use or i in ms):
                e("s_waitcnt lgkmcnt(0)")
                per = cb / 80.0
                cor = "s_cmp_gt_i32 s60, %d\ns_cselect_b32 s33, 0, %d\ns_cmp_gt_i32 s60, %d\ns_cselect_b32 s33, %d, s33\ns_cmp_gt_i32 s60, %d\ns_cselect_b32 s33, %d, s33\ns_add_u32 s58, s58, s33"
                cork = lambda k: cor % (t0, round(k * per * (LV0[0] - LV0[1])), t1, round(k * per * (LV0[2] - LV0[1])), t2, round(k * per * (LV0[3] - LV0[1])))
                if (rcor and i in ms) or lcor:
                    e("s_mov_b32 s60, s57")
                if lcor:
                    e(cork(lcor / 10.0))
                if use:
                    e("v_readfirstlane_b32 s54, %s\nv_readfirstlane_b32 s59, %s\ns_sub_u32 s57, s58, s54" % (v(vRF), v(vRF + 1)))
                    e("s_mul_i32 s33, s59, %d\ns_lshr_b32 s33, s33, 4\ns_cselect_b32 s57, s57, 0\ns_sub_u32 s57, s57, s33" % i)
                if fine == 1 and i % 2 == 0:
                    e("v_writelane_b32 %s, s57, %d" % (v(vFT), 41 + i // 2))
                if i in ms:
                    with optional("s_cmp_lg_u32 s55, 0"):
                        if rcor:
                            e(cork(1 - lcor / 10.0))
                        e("s_add_u32 s58, s58, s62\ns_lshl_b32 s33, s3, %d\ns_add_u32 s33, s33, %d" % (rsh, RP_OFF + 4352 * ms.index(i)))
                        e("v_mov_b32 %s, s33\nv_mov_b32 %s, s58\ns_mov_b64 exec, 1" % (v(vT2), v(vT3)))
                        e("global_store_dword %s, %s, s[28:29] %s\ns_mov_b64 exec, -1" % (v(vT2), v(vT3), rf))
                dirty = True
            if dirty:
                setflags()
    assert not hooks, hooks.keys()
    stamp()
    if order == 1:
        for r in range(4):
            e("v_mul_f32 %s, %s, %s" % (v(DBc + r), v(DBc + r), v(vFA)))
        e("ds_write_b128 %s, %s offset:%d" % (v(vDL), v(DBc, 4), DB_L))
    else:
        for r in range(4):
            e("v_fma_f32 %s, %s, %s, %s" % (v(DA0 + r), v(DA1 + r), v(vFA), v(DA0 + r)))
        e("ds_write_b128 %s, %s offset:%d" % (v(vDL), v(DA0, 4), DA_L))
    def ldg8all():
        with optional("s_cmp_lg_u32 s30, 0"):
            for rg in range(4):
                e("global_load_dwordx4 %s, %s, s[14:15] offset:%d %s" % (v(WO + 32 + 4 * rg, 4), v(vWO), rg * 1152, wflags))
    if w4 and g8a == -1:
        ldg8all()
    if wob:
        issue_upto(NLD)
    e("s_waitcnt lgkmcnt(0)\ns_barrier")
    st["free"] = NLD
    if w4 and g8a == 0:
        ldg8all()
    if not w4:
        e("s_cmp_eq_u32 s30, 3\ns_cbranch_scc1 L_w3")
    if pfirst:
        if not wearly:
            weights()
        e("s_barrier")
    if not gld and not wc:
        e(ldg, "g")
    if olast:
        st["free"] = NLD - olast
        issue_upto(NKV + Wwo)
    elif wthr:
        setflags()
        while st["next"] < NLD:
            throttle(NKV)
            issue_upto(st["next"] + 1)
    else:
        issue_upto(NLD)
    if wc:
        e("ds_read_b32 %s, %s offset:%d\nds_read_b32 %s, %s offset:%d\ns_waitcnt lgkmcnt(0)" % (v(GA), v(AD3), WT, v(GB), v(AD3), WT + 32))
    elif not wearly and not pfirst:
        weights()
    if fine == 3:
        for q in range(NKV, NLD):
            want(q, 0)
    cm("level 1: o[32] of our wo rows = weighted sum over the splits, then o . wo")
    X, Y = OP, OP + 4
    ldo = "global_load_dwordx4 %s, %s, s[46:47] sc1\nglobal_load_dwordx4 %s, %s, s[46:47] offset:%d sc1" % (v(X, 4), v(AD1), v(Y, 4), v(AD1), 128 if l1c else 1024)
    ldo = ldo.replace("sc1", l1lf)
    L, D = e.newlabel("l1"), e.newlabel("l1d")
    if olast:
        q = NKV
        while q + Wwo <= NLD - olast + okeep:
            want(q, Wwo)
            q += 1
        e(ldo + "\ns_mov_b32 s35, %d" % SPIN, "o")
        st["free"] = NLD
        issue_upto(NLD)
        e.waitvm("o")
    else:
        e.waitvm("u%d" % (NLD - 1 - okeep))
        if dg:
            e("s_memrealtime s[72:73]")
        e(ldo + "\ns_mov_b32 s35, %d" % SPIN)
        e.waitvm()
        if dg:
            e("s_memrealtime s[74:75]")
    if trim & 8:
        G = [RING, RING + 4, RING + 8]
        Z, R, O = RING + 12, RING + 16, OP + 24
        RT = e.newlabel("l1r")
        e.label(L)
        stamp()
        for x in (X, Y):
            for r in range(4):
                e("v_xor_b32 %s, %s, %s" % (v(x + r), v(x + r), v(TG1 + r)))
        for r in (0, 2):
            e("v_pk_mul_f32 %s, %s, %s op_sel_hi:[1,0]" % (v(O + r, 2), v(X + r, 2), v(GA, 2)))
        for r in (0, 2):
            e("v_pk_fma_f32 %s, %s, %s, %s op_sel_hi:[1,0,1]" % (v(O + r, 2), v(Y + r, 2), v(GB, 2), v(O + r, 2)))
        dppred("v_add_f32", [O, O + 1, O + 2, O + 3], red8)
        e("v_cvt_pk_bf16_f32 %s, %s, %s\nv_cvt_pk_bf16_f32 %s, %s, %s" % (v(BC), v(O), v(O + 1), v(BC + 1), v(O + 2), v(O + 3)))
        mf = lambda g, rg: e("%s %s, %s, %s, %s" % (MF, v(G[g], 4), v(OP + 8 + 4 * rg, 4), v(WO + 4 * (4 * g + rg), 4), "0" if rg == 0 else v(G[g], 4)))
        for rg in range(5):
            if rg < 4:
                for i in range(4):
                    e("v_perm_b32 %s, %s, %s, %s" % (v(OP + 8 + 4 * rg + i), v(BC + rg // 2), v(BC + rg // 2), v((SHI if rg % 2 else SLO) + i)))
            if rg > 0:
                mf(0, rg - 1)
                mf(1, rg - 1)
        chk = ["v_or3_b32 %s, %s, %s, %s\nv_or3_b32 %s, %s, %s, %s" % (v(vT2), v(X), v(X + 1), v(X + 2), v(vT3), v(X + 3), v(Y), v(Y + 1)),
               "v_or3_b32 %s, %s, %s, %s\nv_or_b32 %s, %s, %s" % (v(vT2), v(vT2), v(Y + 2), v(Y + 3), v(vT2), v(vT2), v(vT3)),
               "v_and_b32 %s, 0xff, %s\nv_cmp_ne_u32 vcc, 0, %s" % (v(vT2), v(vT2), v(vT2)), ""]
        for rg in range(4):
            mf(2, rg)
            e(chk[rg])
        if not raw:
            e("s_cbranch_vccnz %s" % RT)
        e.label(D)
        for r in range(4):
            e("v_permlane32_swap_b32 %s, %s" % (v(G[0] + r), v(G[1] + r)))
        for r in range(4):
            e("v_add_f32_dpp %s, %s, %s row_ror:8 row_mask:0xf bank_mask:0x3" % (v(R + r), v(G[1] + r), v(G[0] + r)))
        for r in range(4):
            e("v_permlane32_swap_b32 %s, %s" % (v(G[2] + r), v(Z + r)))
        for r in range(4):
            e("v_add_f32_dpp %s, %s, %s row_ror:8 row_mask:0xf bank_mask:0xc" % (v(R + r), v(G[2] + r), v(Z + r)))
        ready = lambda p: None
        retry = [ldo, "s_waitcnt vmcnt(0)", "v_xor_b32 %s, %s, %s" % (v(vT2), v(X), v(TG1))]
        retry += ["v_bitop3_b32 %s, %s, %s, %s bitop3:0xf6" % (v(vT2), v(vT2), v(X + k), v(TG1 + k % 4)) for k in range(1, 8)]
        retry += ["v_and_b32 %s, 0xff, %s\nv_cmp_ne_u32 vcc, 0, %s\ns_cbranch_vccz %s" % (v(vT2), v(vT2), v(vT2), L)]
        retry += ["s_sub_u32 s35, s35, 1\ns_cbranch_scc0 %s\ns_branch %s" % (RT, D)]
        retry = RT + ":\n  " + "\n".join(retry).replace("\n", "\n  ")
    else:
        retry = ""
        if np1 > 1:
            PS = [RING + 32 + 8 * k for k in range(np1)]
            ldp = lambda k: e(ldo.replace(v(X, 4), v(PS[k], 4)).replace(v(Y, 4), v(PS[k] + 4, 4)))
            tagcheck([X, Y], TG1, vT2, vT3)
            e("s_cbranch_vccz %s" % D)
            for k in range(np1 - 1):
                ldp(k)
                if psl:
                    e("s_nop %d" % psl)
            e.label(L)
            for k in range(np1):
                ldp((k + np1 - 1) % np1)
                e("s_waitcnt vmcnt(%d)" % (2 * (np1 - 1)))
                for r in range(8):
                    e("v_xor_b32 %s, %s, %s" % (v(X + r), v(PS[k] + r), v(TG1 + r % 4)))
                e("v_or3_b32 %s, %s, %s, %s\nv_or3_b32 %s, %s, %s, %s" % (v(vT2), v(X), v(X + 1), v(X + 2), v(vT3), v(X + 3), v(Y), v(Y + 1)))
                e("v_or3_b32 %s, %s, %s, %s\nv_bitop3_b32 %s, %s, %s, s43 bitop3:0xa8" % (v(vT2), v(vT2), v(Y + 2), v(Y + 3), v(vT2), v(vT2), v(vT3)))
                e("v_cmp_ne_u32 vcc, 0, %s\ns_cbranch_vccz %s" % (v(vT2), D))
            e("s_sub_u32 s35, s35, 1\ns_cbranch_scc0 %s" % L)
            e.label(D)
            vm = []
        else:
            e.label(L)
            tagcheck([X, Y], TG1, vT2, vT3)
            e("s_cbranch_vccz %s" % D)
            vm = list(e.vm)
            if not raw:
                e(ldo + "\ns_waitcnt vmcnt(0)\ns_sub_u32 s35, s35, 1\ns_cbranch_scc0 %s" % L)
            e.label(D)
        e.hist, e.vm = [], vm
        stamp()

        def ready(p):
            if p == fpos:
                e("s_mov_b64 exec, 1\nglobal_store_dwordx2 %s, %s, s[4:5]" % (v(vZ), v(QB0, 2)), "fl")
                e("ds_add_u32 %s, %s offset:%d\ns_mov_b64 exec, -1" % (v(vZ), v(QB0 + 2), F_T3))

        ready(0)
        if trim & 4:
            for r in (0, 2):
                e("v_pk_mul_f32 %s, %s, %s op_sel_hi:[1,0]" % (v(X + r, 2), v(X + r, 2), v(GA, 2)))
            for r in (0, 2):
                e("v_pk_fma_f32 %s, %s, %s, %s op_sel_hi:[1,0,1]" % (v(X + r, 2), v(Y + r, 2), v(GB, 2), v(X + r, 2)))
        else:
            for r in range(4):
                e("v_mul_f32 %s, %s, %s" % (v(X + r), v(X + r), v(GA)))
            for r in range(4):
                e("v_fma_f32 %s, %s, %s, %s" % (v(X + r), v(Y + r), v(GB), v(X + r)))
        dppred("v_add_f32", [X, X + 1, X + 2, X + 3], ["quad_perm:[1,0,3,2]", "quad_perm:[2,3,0,1]", "row_half_mirror"])
        e("v_cvt_pk_bf16_f32 %s, %s, %s\nv_cvt_pk_bf16_f32 %s, %s, %s" % (v(BC), v(X), v(X + 1), v(BC + 1), v(X + 2), v(X + 3)))
        ready(1)
        G = [RING, RING + 4, RING + 8]
        Z, R = RING + 12, RING + 16
        for rg in range(5):
            if rg < 4:
                for i in range(4):
                    e("v_perm_b32 %s, %s, %s, %s" % (v(OP + 8 + 4 * rg + i), v(BC + rg // 2), v(BC + rg // 2), v((SHI if rg % 2 else SLO) + i)))
            if rg > 0:
                for g in range(3):
                    e.waitvm("u%d" % (NKV + NG * (rg - 1) + g))
                    e("%s %s, %s, %s, %s" % (MF, v(G[g], 4), v(OP + 4 + 4 * rg, 4), v(WO + 4 * (4 * g + rg - 1), 4), "0" if rg == 1 else v(G[g], 4)))
        ready(2)
        for r in range(4):
            e("v_permlane32_swap_b32 %s, %s" % (v(G[0] + r), v(G[1] + r)))
        for r in range(4):
            e("v_permlane32_swap_b32 %s, %s" % (v(G[2] + r), v(Z + r)))
        for r in range(4):
            e("v_add_f32_dpp %s, %s, %s row_ror:8 row_mask:0xf bank_mask:0x3" % (v(R + r), v(G[1] + r), v(G[0] + r)))
        for r in range(4):
            e("v_add_f32_dpp %s, %s, %s row_ror:8 row_mask:0xf bank_mask:0xc" % (v(R + r), v(G[2] + r), v(Z + r)))
    tagput(R, TG2)
    jitter(2)
    e("s_mov_b64 exec, s[50:51]" if w4 else "s_mov_b32 exec_hi, 0x00ff00ff")
    e("global_store_dwordx4 %s, %s, s[48:49] %s" % (v(AD2), v(R, 4), l2sf))
    stamp()
    if wb:
        with optional("s_lshl_b32 s33, s30, 8\ns_add_u32 s33, s33, s3\ns_cmp_lt_u32 s33, %d" % (512 + wbn)):
            if wb == 2:
                e("s_waitcnt vmcnt(0)")
            e("buffer_wbl2 sc1")
    ready(3)
    if fdel:
        if fack:
            e("s_waitcnt vmcnt(0)")
        if fb:
            e("s_barrier")
        else:
            signal(F_T3)
    e.label("L_sdone")
    if fine:
        e("s_mov_b64 exec, -1\ns_waitcnt lgkmcnt(0)\nv_writelane_b32 %s, s70, 0" % v(vFT))
        if fine == 1:
            e("s_getreg_b32 s33, hwreg(HW_REG_HW_ID)\nv_writelane_b32 %s, s33, 40" % v(vFT))
        e("s_lshl_b32 s33, s3, 2\ns_add_u32 s33, s33, s30\ns_lshl_b32 s33, s33, 8\ns_add_u32 s33, s33, 0x%x" % (STAMP_OFF + 0x100000))
        e("v_lshl_add_u32 v19, v1, 2, s33\nglobal_store_dword v19, %s, s[28:29]" % v(vFT))
    write_stamps(vT2, "s")
    e("s_endpgm")
    e.raw(retry)
    e.hist, e.vm = [], []
    if not w4:
        cm("wave 3: sum the B partials of the four waves and send them")
        e.label("L_w3")
        if not be:
            sumpub(DB_L, OP, vVO, AD2, 48, TG2)
        if pfirst:
            e("s_barrier")
        e("s_branch L_sdone" if stamps else "s_endpgm")

    e.hist, e.vm = [], []
    nst[0] = base_st
    e.raw(".p2align 6")
    cm("==== communication wave")
    e.label("L_comm")
    e("s_setprio %d\ns_memrealtime s[56:57]" % cpr)
    e(ids)
    e("v_lshlrev_b32 v2, 2, v1\nv_mov_b32 v3, 0\nds_write_b32 v2, v3 offset:%d" % FL)
    cZ, c16, cT, cU, cA, cO = 2, 3, 4, 5, 6, 7
    A0 = 8
    TG, TP = 60, 100
    e("v_mov_b32 %s, 0\nv_lshlrev_b32 %s, 4, v1" % (v(cZ), v(c16)))
    if warm:
        cm("pull a slice of this kernel's own code into the L2")
        e("s_getpc_b64 s[36:37]")
        e.label("L_pc0")
        e("s_sub_u32 s36, s36, L_pc0-%s\ns_subb_u32 s37, s37, 0" % KN)
    if warm and swarm:
        e("s_lshr_b32 s33, s3, 3\ns_mulk_i32 s33, %d\ns_min_u32 s33, s33, L_end-%s-%d\ns_add_u32 s36, s36, s33\ns_addc_u32 s37, s37, 0" % (128 * wl, KN, 128 * wl - 64))
    if warm and not swarm:
        e("s_lshr_b32 s33, s3, 3\ns_mulk_i32 s33, %d\nv_lshl_add_u32 %s, v1, 7, s33" % (128 * wl, v(cU)))
        e("v_min_u32 %s, L_end-%s, %s\ns_mov_b64 exec, 0x%x" % (v(cU), KN, v(cU), (1 << wl) - 1))
        e("v_mov_b32 %s, s37\nv_add_co_u32 %s, vcc, s36, %s\nv_addc_co_u32 %s, vcc, 0, %s, vcc" % (v(A0 + 7), v(A0 + 6), v(cU), v(A0 + 7), v(A0 + 7)))
        e("global_load_dword %s, %s, off" % (v(A0), v(A0 + 6, 2)))
    if touch:
        e("s_lshl_b32 s38, s31, 23\ns_add_u32 s39, s38, %d" % (28672 * 256))
        e("v_lshl_add_u32 %s, v1, 21, s38\nv_mov_b32 %s, s39" % (v(A0 + 12), v(A0 + 13)))
        e("s_lshl_b32 s33, s31, 3\ns_and_b32 s34, s32, 7\ns_add_u32 s33, s33, s34\ns_mul_i32 s33, s33, %d\nv_mov_b32 %s, s33" % (32 * 1152, v(A0 + 15)))
    e("s_cmp_ge_u32 s32, 8\ns_waitcnt lgkmcnt(0)\ns_cselect_b64 s[12:13], s[22:23], s[12:13]\ns_mov_b64 exec, 1")
    cm("workgroup 0 publishes the launch nonce")
    e("s_cmp_lg_u32 s3, 0\ns_cbranch_scc1 L_nolead")
    e("s_lshr_b64 s[56:57], s[56:57], 8\ns_mul_i32 s33, s56, 0x9e3779b1\ns_mul_i32 s34, s56, 0x85ebca6b\ns_add_u32 s34, s34, s57")

    for r in (33, 34):
        e("s_and_b32 s35, s%d, 0x7f\ns_lshr_b32 s%d, s%d, 7\ns_lshl_b32 s%d, s%d, 9\ns_lshl_b32 s35, s35, 1\ns_or_b32 s%d, s%d, s35\ns_or_b32 s%d, s%d, 1" % (
            r, r, r, r, r, r, r, r, r))
    jitter(4)
    e("v_mov_b32 v16, s33\nv_mov_b32 v17, s34\nv_mov_b32 v18, 0\nv_mov_b32 v19, 0")
    e("global_atomic_cmpswap_x2 %s, v[16:19], s[26:27] sc1" % v(cZ))
    e.label("L_nolead")
    if touch:
        e("global_load_dword %s, %s, s[16:17] nt\nglobal_load_dword %s, %s, s[18:19] nt" % (v(A0), v(A0 + 13), v(A0), v(A0 + 13)))
        e("global_load_dword %s, %s, s[12:13] nt\ns_mov_b64 exec, 15" % (v(A0), v(A0 + 15)))
        e("global_load_dword %s, %s, s[6:7] nt\nglobal_load_dword %s, %s, s[8:9] nt" % (v(A0), v(A0 + 12), v(A0), v(A0 + 12)))
        e("s_mov_b64 exec, 1")
    def pretouch(ex):
        if spre:
            e("s_lshl_b32 s33, s2, 11\ns_add_u32 s46, s28, s33\ns_addc_u32 s47, s29, 0\ns_lshl_b32 s33, s2, 7\ns_add_u32 s33, s33, 0x%x" % G_OFF)
            e("s_load_dword s48, s[28:29], s33\ns_add_u32 s33, s33, 64\ns_load_dword s48, s[28:29], s33")
            for k in range(32):
                e("s_load_dword s48, s[46:47], 0x%x" % (L1_OFF + 64 * k))
            return
        e("s_mov_b64 exec, 0xffff\ns_lshl_b32 s33, s2, 11\ns_add_u32 s33, s33, 0x%x\nv_lshl_add_u32 %s, v1, 7, s33" % (L1_OFF, v(cT)))
        e("s_lshl_b32 s33, s2, 7\ns_add_u32 s33, s33, 0x%x\nv_writelane_b32 %s, s33, 16\ns_mov_b64 exec, 0x1ffff" % (G_OFF, v(cT)))
        e("global_load_dword %s, %s, s[28:29] sc1\ns_mov_b64 exec, %d" % (v(A0 + 45), v(cT), ex))

    if warm and swarm:
        for k in range(2 * wl):
            e("s_load_dword s48, s[36:37], %d" % (64 * k))
    if pre1 == 2:
        pretouch(1)
    e("s_barrier")
    if raw:
        e("s_endpgm")
    cm("read the nonce")
    L, D = e.newlabel("gf"), e.newlabel("gfd")
    e("s_mov_b32 s35, %d" % SPIN)
    if nsl:
        e("s_sleep %d" % nsl)
    if npoll == 2:
        e("global_load_dwordx2 %s, %s, s[26:27] sc1\ns_sleep 12" % (v(A0 + 2, 2), v(cZ)))
    e.label(L)
    for k in range(npoll):
        e("global_load_dwordx2 %s, %s, s[26:27] sc1" % (v(A0 + 2 * npoll - 2 * k, 2), v(cZ)))
        e("s_waitcnt vmcnt(%d)" % (npoll - 1))
        e("v_readfirstlane_b32 s62, %s\nv_readfirstlane_b32 s63, %s" % (v(A0 + 2 + 2 * k), v(A0 + 3 + 2 * k)))
        e("s_and_b32 s34, s62, s63\ns_bitcmp1_b32 s34, 0\ns_cbranch_scc1 %s" % D)
    e("s_sub_u32 s35, s35, 1\ns_cbranch_scc0 %s" % L)
    e.label(D)
    e.vm = []
    e("s_mov_b64 exec, -1\nv_mov_b32 %s, s62\nv_mov_b32 %s, s63" % (v(A0 + 16), v(A0 + 17)))
    e("ds_write_b64 %s, %s offset:%d" % (v(cZ), v(A0 + 16, 2), F_N0))
    stamp()
    tagsel()
    tagreg(TP, 1, cT, chk=TG)
    e("s_lshl_b32 s33, s31, 12\ns_add_u32 s33, s33, 0x%x\ns_add_u32 s36, s28, s33\ns_addc_u32 s37, s29, 0" % Q_OFF)
    e("s_lshl_b32 s33, s32, 8\ns_add_u32 s38, s36, s33\ns_addc_u32 s39, s37, 0")
    e("s_getreg_b32 s60, hwreg(HW_REG_XCC_ID, 0, 4)\ns_lshl_b32 s33, s60, 24\nv_xor_b32 v103, s33, %s" % v(TP))
    cm("sum and send our 64 partial q values (the XCD id rides in a tag)")
    lds_wait(F_QP, "eq", 4, cZ, cT, sleep=csl)
    e("s_mov_b64 exec, 0xffff")
    R0 = A0 + 16
    for k in range(8):
        e("ds_read_b128 %s, %s offset:%d" % (v(R0 + 4 * k, 4), v(c16), QP + 256 * k))
    e("s_waitcnt lgkmcnt(0)")
    for stp in (16, 8, 4):
        for k in range(stp):
            e("v_add_f32 %s, %s, %s" % (v(R0 + k), v(R0 + k), v(R0 + stp + k)))
    tagput(R0, 103)
    e("global_store_dwordx4 %s, %s, s[38:39] %s\ns_mov_b64 exec, -1" % (v(c16), v(R0, 4), qsf) if not noq else "s_mov_b64 exec, -1")
    stamp()
    if ssp & 8:
        cm("first touch of the pages streamed later, so that their translations are there in time")
        e("s_lshl_b32 s33, s31, 23")
        for k in range(4):
            e("s_load_dword s48, s[8:9], s33" + ("\ns_add_u32 s33, s33, 0x200000" if k < 3 else ""))
        e("s_load_dword s48, s[16:17], s33\ns_load_dword s48, s[18:19], s33")
        e("s_lshl_b32 s33, s31, 3\ns_and_b32 s34, s32, 7\ns_add_u32 s33, s33, s34\ns_mul_i32 s33, s33, %d\ns_load_dword s48, s[12:13], s33" % (32 * 1152))
    if qpre:
        e("s_waitcnt vmcnt(0)\ns_load_dword s48, s[38:39], 0\ns_load_dword s48, s[38:39], 64\ns_load_dword s48, s[38:39], 128\ns_load_dword s48, s[38:39], 192")
    if pre1 == 3:
        pretouch(-1)
    QS = 64
    cm("fetch q of the head once the stream is far enough that it is normally complete")
    lds_wait(F_T1, "ge", 1, cZ, cT, sleep=max(1, 2 * csl))
    L, D = e.newlabel("qp"), e.newlabel("qd")
    e("s_mov_b32 s35, %d" % SPIN)
    if noq:
        for j in range(16):
            e("v_mov_b32 %s, s60" % v(QS + j))
        e("s_branch %s" % D)
    e.label(L)
    for j in range(4):
        e("global_load_dwordx4 %s, %s, s[36:37] offset:%d %s" % (v(QS + 4 * j, 4), v(c16), 1024 * j, qlf))
    e.waitvm()
    for j in range(4):
        for r in range(4):
            e("v_xor_b32 %s, %s, %s" % (v(QS + 4 * j + r), v(QS + 4 * j + r), v(TG + r)))
    e("v_or3_b32 %s, %s, %s, %s\nv_or_b32 %s, %s, %s" % (v(cU), v(QS + 3), v(QS + 7), v(QS + 11), v(cU), v(cU), v(QS + 15)))
    e("v_and_b32 %s, 0xf0, %s" % (v(cT), v(cU)))
    for j in range(4):
        e("v_or3_b32 %s, %s, %s, %s\nv_or_b32 %s, %s, %s" % (v(cT), v(cT), v(QS + 4 * j), v(QS + 4 * j + 1), v(cT), v(cT), v(QS + 4 * j + 2)))
    e("v_and_b32 %s, 0xff, %s\nv_cmp_ne_u32 vcc, 0, %s" % (v(cT), v(cT), v(cT)))
    e("s_cbranch_vccz %s\ns_sub_u32 s35, s35, 1\ns_cbranch_scc0 %s" % (D, L))
    e.label(D)
    e("v_xor_b32 %s, s60, %s" % (v(QS + 16), v(QS + 3)))
    for j in range(1, 4):
        e("v_bitop3_b32 %s, %s, %s, s60 bitop3:0xf6" % (v(QS + 16), v(QS + 16), v(QS + 4 * j + 3)))
    for j in range(4):
        e("v_and_b32 %s, -16, %s" % (v(QS + 4 * j + 3), v(QS + 4 * j + 3)))
    for pr in range(2):
        for r in range(4):
            e("v_add_f32 %s, %s, %s" % (v(A0 + 4 * pr + r), v(QS + 8 * pr + r), v(QS + 8 * pr + 4 + r)))
    e("v_lshlrev_b32 %s, 3, v1\nv_mov_b32 %s, 1" % (v(cO), v(cU)))
    for k in range(4):
        e("v_cvt_pk_bf16_f32 %s, %s, %s" % (v(A0 + 8 + k), v(A0 + 2 * k), v(A0 + 2 * k + 1)))
    e("ds_write_b64 %s, %s offset:%d\nds_write_b64 %s, %s offset:%d" % (v(cO), v(A0 + 8, 2), QB, v(cO), v(A0 + 10, 2), QB + 512))
    e("ds_write_b32 %s, %s offset:%d" % (v(cZ), v(cU), F_Q))
    e("v_and_b32 %s, 15, %s" % (v(QS + 16), v(QS + 16)))
    e("v_cmp_ne_u32 vcc, 0, %s\ns_nop 1\ns_cmp_eq_u64 vcc, 0\ns_cselect_b32 s61, 1, 0\nv_mov_b32 %s, s61" % (v(QS + 16), v(cU)))
    e("ds_write_b32 %s, %s offset:%d" % (v(cZ), v(cU), F_LOC))
    stamp()
    e("v_and_b32 %s, 1, v1\nv_bfe_u32 %s, v1, 1, 1\nv_lshlrev_b32 %s, 4, %s" % (v(cT), v(cU), v(cT), v(cT)))
    e("v_lshl_add_u32 %s, %s, 3, %s\nv_lshl_add_u32 %s, %s, 2, %s" % (v(A0 + 20), v(cU), v(cT), v(A0 + 21), v(cU), v(cT)))
    e("s_lshl_b32 s33, s2, 7\ns_add_u32 s33, s33, 0x%x\ns_add_u32 s38, s28, s33\ns_addc_u32 s39, s29, 0" % G_OFF)
    l1_out_addr(cA, cT, cU, 36, 0, TP)
    e("s_lshl_b32 s33, s3, %d\ns_add_u32 s33, s33, 0x%x\ns_add_u32 s40, s28, s33\ns_addc_u32 s41, s29, 0" % (11 + pb, L2_OFF + 4096))
    e("s_add_u32 s44, s40, 8192\ns_addc_u32 s45, s41, 0")
    if fpos >= 0:
        e("v_and_b32 %s, 15, v1\nv_lshlrev_b32 %s, 7, %s\nv_and_b32 %s, 48, v1" % (v(cT), v(cT), v(cT), v(cU)))
        e("s_lshl_b32 s33, s31, 11\ns_add_u32 s33, s33, 0x%x\nv_add3_u32 v106, %s, %s, s33" % (G_OFF + 64, v(cT), v(cU)))
    e("s_lshr_b32 s33, s3, 1\ns_lshl_b32 s33, s33, %d\ns_and_b32 s34, s3, 1\ns_lshl_b32 s34, s34, 3\ns_add_u32 s33, s33, s34" % (4 + pb))
    e("s_add_u32 s24, s24, s33\ns_addc_u32 s25, s25, 0\nv_mov_b32 %s, %s" % (v(cO), v(c16)))
    if trim & 2:
        e("v_and_b32 %s, 48, %s\nv_lshrrev_b32 %s, 4, v1\nv_lshl_add_u32 %s, %s, 1, %s" % (v(cO), v(c16), v(cT), v(cO), v(cT), v(cO)))
    def reference(n):
        cm("progress reference: mean time of the reporters at the milestone, time per unit")
        lds_wait(F_P, "ge", 4 * n + 1, cZ, cT, sleep=4)
        if rsh == 2:
            e("s_load_dwordx16 s[4:19], s[28:29], 0x%x" % (RP_OFF + 4352 * n))
        else:
            for k in range(nrep):
                e("s_load_dword s%d, s[28:29], 0x%x" % (4 + k, RP_OFF + 4352 * n + (k << rsh)))
        e("s_memrealtime s[58:59]\ns_waitcnt lgkmcnt(0)")
        e("s_add_u32 s20, s58, s62\ns_mov_b32 s21, %d\ns_mov_b32 s22, 0" % (cb * mdel // 10))
        for k in range(nrep):
            e("s_sub_u32 s33, s20, s%d\ns_cmp_lt_u32 s33, 2048\ns_cselect_b32 s21, s33, s21\ns_add_u32 s22, s22, s21" % (4 + k))
        e("s_lshr_b32 s22, s22, %d\ns_sub_u32 s22, s58, s22\ns_mov_b32 s21, %d" % (nrep.bit_length() - 1, cb * 16 // 10))
        if n and smar >= 0:
            e("s_sub_u32 s33, s22, s23\ns_mul_i32 s33, s33, %d\ns_lshr_b32 s33, s33, 8\ns_sub_u32 s33, s33, %d" % (
                4096 // (ms[n] - ms[n - 1]), smar * 16 // 10))
            e("s_max_i32 s21, s21, s33\ns_min_i32 s21, s21, %d" % (cb * 32 // 10))
        e("s_mov_b32 s23, s22\ns_mul_i32 s33, s21, %d\ns_lshr_b32 s33, s33, 4\ns_sub_u32 s22, s22, s33" % ms[n])
        e("v_mov_b32 v104, s22\nv_mov_b32 v105, s21\nds_write_b64 %s, v[104:105] offset:%d" % (v(cZ), F_REF))

    e("s_setprio 0")
    early = [n for n in range(len(ms)) if 8 * (ms[n] + mdel) + 4 <= 288 - gtrig] if ctl else []
    for n in early:
        reference(n)
    cm("touch the lines of the group exchange, then {max, sum} of the workgroup")
    if gst:
        e("s_and_b32 s50, s32, %d\ns_lshl2_add_u32 s50, s50, 1" % ((1 << gst) - 1))
    lds_wait(F_T2, "ge", "s50" if gst else 1, cZ, cT, sleep=8)
    if p2:
        with optional("s_cmp_ge_u32 s3, %d" % NF):
            if p2 == 3:
                e("v_lshlrev_b32 %s, 7, v1\nglobal_load_dword %s, %s, s[40:41] offset:-4096 sc1" % (v(cT), v(A0 + 46), v(cT)))
            else:
                for k in range(0, 8192, 128 // p2):
                    e("s_load_dword s48, s[40:41], %d glc" % (k - 4096))
    if ot:
        with optional("s_cmp_ge_u32 s3, %d" % NF):
            e("s_mov_b64 exec, 1\nglobal_load_dword %s, %s, s[24:25] %s\ns_mov_b64 exec, -1" % (v(A0 + 46), v(cZ), otf))
    if pre1 == 1:
        pretouch(-1)
        e.waitvm()
        if pdirty:
            with optional("s_cmp_lg_u32 s61, 1"):
                e("v_not_b32 %s, %s" % (v(cU), v(TP)))
                e("global_store_dword %s, %s, s[36:37]" % (v(cA), v(cU)))
                e("v_add_u32 %s, 0x4000, %s\nglobal_store_dword %s, %s, s[36:37]" % (v(cT), v(cA), v(cT), v(cU)))
    lds_wait(F_B1, "eq", 4, cZ, cT, sleep=1)
    for k in range(4):
        e("ds_read_b64 %s, %s offset:%d" % (v(A0 + 2 * k, 2), v(A0 + 20), MW + 32 * k))
    e("s_waitcnt lgkmcnt(0)")
    GN = 56
    e("v_max3_f32 %s, %s, %s, %s\nv_max_f32 %s, %s, %s" % (v(GN), v(A0), v(A0 + 2), v(A0 + 4), v(GN), v(GN), v(A0 + 6)))
    for k in range(4):
        e("v_sub_f32 %s, %s, %s" % (v(A0 + 2 * k), v(A0 + 2 * k), v(GN)))
    for k in range(4):
        e("v_exp_f32 %s, %s" % (v(A0 + 2 * k), v(A0 + 2 * k)))
    e("v_mul_f32 %s, %s, %s" % (v(GN + 2), v(A0), v(A0 + 1)))
    for k in range(1, 4):
        e("v_fma_f32 %s, %s, %s, %s" % (v(GN + 2), v(A0 + 2 * k), v(A0 + 2 * k + 1), v(GN + 2)))
    e("v_mov_b32 %s, s62\nv_mov_b32 %s, s63\nv_mov_b32 %s, 1" % (v(GN + 1), v(GN + 3), v(cU)))
    e("ds_write_b32 %s, %s offset:%d\nds_write_b32 %s, %s offset:%d" % (v(A0 + 21), v(GN), ML, v(cZ), v(cU), F_ML))
    stamp()
    if be:
        cm("sum the B partials of the four waves and send them")
        lds_wait(F_DB, "eq", 4, cZ, cT, sleep=2)
        e("s_add_u32 s46, s36, 16384\ns_addc_u32 s47, s37, 0\ns_waitcnt lgkmcnt(0)")
        sumpub(DB_L, A0, c16, cA, 46, TP)
    jitter(3)
    jitter(3)
    e("s_mov_b64 exec, 0xff")
    groupstore("global_store_dwordx4 %s, %s, s[38:39]" % (v(c16), v(GN, 4)))
    e("s_mov_b64 exec, -1")
    for n in range(len(early), len(ms) if ctl else 0):
        reference(n)
    if w4 and blate:
        lds_wait(F_DB, "eq", 4, cZ, cT, sleep=2)
        e("s_add_u32 s46, s36, 16384\ns_addc_u32 s47, s37, 0\ns_waitcnt lgkmcnt(0)")
        sumpub(DB_L, 112, c16, cA, 46, TP, False)
    elif w4:
        cm("sum the B partials of the four waves and send them")
        lds_wait(F_DB, "eq", 4, cZ, cT, sleep=2)
        e("s_add_u32 s46, s36, 16384\ns_addc_u32 s47, s37, 0\ns_waitcnt lgkmcnt(0)")
        sumpub(DB_L, A0, c16, cA, 46, TP)
    if wc:
        e("v_and_b32 v110, 7, v1\nv_lshlrev_b32 v111, 2, v110\nv_lshlrev_b32 v110, 7, v110")
        e("s_lshl_b32 s34, s31, 11\ns_lshr_b32 s35, s32, 2\ns_lshl_b32 s35, s35, 4\ns_add_u32 s34, s34, s35")
        e("s_add_u32 s34, s34, 0x%x\ns_add_u32 s52, s28, s34\ns_addc_u32 s53, s29, 0\ns_mov_b64 exec, 0xffff" % G_OFF)
        lg = "global_load_dwordx4 v[112:115], v110, s[52:53] sc1\nglobal_load_dwordx4 v[116:119], v110, s[52:53] offset:1024 sc1"
        e(lg, "g")
        weights(112, 116, cT, cU, lg)
        e("ds_write_b32 v111, v112 offset:%d\nds_write_b32 v111, v116 offset:%d\ns_mov_b64 exec, -1" % (WT, WT + 32))
    e("s_setprio 3")
    if warm and warm2:
        e("s_getpc_b64 s[42:43]")
        e.label("L_pc1")
        e("s_sub_u32 s42, s42, L_pc1-L_sdone+4096\ns_subb_u32 s43, s43, 0")
        e("v_lshlrev_b32 %s, 7, v1\nv_min_u32 %s, L_end-L_sdone+4096, %s" % (v(cU), v(cU), v(cU)))
        e("global_load_dword %s, %s, s[42:43]" % (v(A0 + 44), v(cU)))
    e("s_waitcnt lgkmcnt(0)\ns_barrier")
    if w4 and blate:
        groupstore("global_store_dwordx4 %s, %s, s[46:47]" % (v(cA), v(112, 4)))
    cm("sum the A partials of the four waves and send them")
    sumpub(DA_L, A0, c16, cA, 36, TP)
    if pfirst:
        e("s_barrier")
    stamp()
    e("s_cmp_ge_u32 s3, %d\ns_cbranch_scc1 L_cdone" % NF)
    cm("level 2 (workgroups 0..71): 16 output columns = sum over 128 row slices")
    F0 = 128
    if tpr:
        e("s_setprio 0")
    if fpos >= 0:
        NL, J = e.newlabel("nl"), e.newlabel("fj")
        e("s_cmp_lg_u32 s61, 1\ns_cbranch_scc1 %s" % NL)
        lds_wait(F_T3, "ge", 1, cZ, cT)
        L = e.newlabel("fp")
        e("s_mov_b32 s35, 64\ns_mov_b32 exec_hi, 0xffff")
        e.label(L)
        e("global_load_dwordx2 v[108:109], v106, s[28:29] sc1\ns_waitcnt vmcnt(0)")
        e("v_xor_b32 v108, s62, v108\nv_bitop3_b32 v108, v108, v109, s63 bitop3:0xf6\nv_cmp_ne_u32 vcc, 0, v108")
        e("s_cbranch_vccz %s\ns_sub_u32 s35, s35, 1\ns_cbranch_scc0 %s\ns_branch %s" % (J, L, J))
        e.label(NL)
        lds_wait(F_T3, "ge", 6, cZ, cT)
        e.label(J)
        e("s_mov_b64 exec, -1")
        e.vm = []
    elif fb:
        e("s_barrier")
    elif fdel:
        lds_wait(F_T3, "ge", fdel + w4, cZ, cT)
    if fsl:
        e("s_sleep %d" % fsl)
    L, D = e.newlabel("l2"), e.newlabel("l2d")
    e("s_mov_b32 s35, %d" % SPIN)
    e.label(L)
    NL2 = 2 << pb
    if dg:
        e("s_cmp_eq_u32 s35, %d\ns_memrealtime s[74:75]\ns_waitcnt lgkmcnt(0)\ns_cselect_b32 s72, s74, s72" % SPIN)
    for k in range(NL2):
        e("global_load_dwordx4 %s, %s, s[%d:%d] offset:%d %s" % (v(F0 + 4 * k, 4), v(c16), 40 + k // 8 * 4, 41 + k // 8 * 4, 1024 * (k % 8) - 4096, l2lf))
    tails = []
    if pr2:
        e("s_movk_i32 s43, 0xff")
        for k in range(NL2):
            x, A, B, C = F0 + 4 * k, e.newlabel("r2"), e.newlabel("r2x"), e.newlabel("r2c")
            e.label(A)
            e("s_waitcnt vmcnt(%d)" % (NL2 - 1 - k))
            for r in range(4):
                e("v_xor_b32 %s, %s, %s" % (v(x + r), v(x + r), v(TG + r)))
            e("v_or3_b32 %s, %s, %s, %s\nv_bitop3_b32 %s, %s, %s, s43 bitop3:0xa8" % (v(cT), v(x), v(x + 1), v(x + 2), v(cT), v(cT), v(x + 3)))
            e("v_cmp_ne_u32 vcc, 0, %s\ns_cbranch_vccnz %s" % (v(cT), B))
            e.label(C)
            if k:
                for r in (0, 2):
                    e("v_pk_add_f32 %s, %s, %s" % (v(F0 + r, 2), v(F0 + r, 2), v(x + r, 2)))
            t = [B + ":", "  s_sub_u32 s35, s35, 1", "  s_cbranch_scc1 " + D]
            t += ["  global_load_dwordx4 %s, %s, s[40:41] offset:%d %s" % (v(F0 + 4 * m, 4), v(c16), 1024 * m - 4096, l2lf) for m in range(k, NL2)]
            tails.append("\n".join(t + ["  s_branch " + A]))
        e("s_nop 1")
        e.vm = []
    else:
        for k in range(NL2):
            x = F0 + 4 * k
            e("s_waitcnt vmcnt(%d)" % (NL2 - 1 - k))
            if dg and k == 0:
                e("s_memrealtime s[76:77]")
            if dg and k == NL2 - 1:
                e("s_memrealtime s[78:79]")
            for r in range(4):
                e("v_xor_b32 %s, %s, %s" % (v(x + r), v(x + r), v(TG + r)))
            if k == 0:
                e("v_or_b32 %s, %s, %s\nv_or_b32 %s, %s, %s" % (v(cT), v(x), v(x + 1), v(cU), v(x + 2), v(x + 3)))
            else:
                e("v_or3_b32 %s, %s, %s, %s\nv_or3_b32 %s, %s, %s, %s" % (v(cT), v(cT), v(x), v(x + 1), v(cU), v(cU), v(x + 2), v(x + 3)))
                if trim & 1:
                    for r in (0, 2):
                        e("v_pk_add_f32 %s, %s, %s" % (v(F0 + r, 2), v(F0 + r, 2), v(x + r, 2)))
                else:
                    for r in range(4):
                        e("v_add_f32 %s, %s, %s" % (v(F0 + r), v(F0 + r), v(x + r)))
        e.vm = []
        e("v_or_b32 %s, %s, %s\nv_and_b32 %s, 0xff, %s\nv_cmp_ne_u32 vcc, 0, %s" % (v(cT), v(cT), v(cU), v(cT), v(cT), v(cT)))
        e("s_cbranch_vccz %s\ns_sub_u32 s35, s35, 1\ns_cbranch_scc0 %s" % (D, L))
    e.label(D)
    e.hist = []
    stamp()
    rr = [F0, F0 + 1, F0 + 2, F0 + 3]
    if trim & 2:
        e("v_permlane32_swap_b32 %s, %s\nv_permlane32_swap_b32 %s, %s" % (v(F0), v(F0 + 2), v(F0 + 1), v(F0 + 3)))
        e("v_pk_add_f32 %s, %s, %s" % (v(F0, 2), v(F0, 2), v(F0 + 2, 2)))
        e("v_permlane16_swap_b32 %s, %s\nv_add_f32 %s, %s, %s" % (v(F0), v(F0 + 1), v(F0), v(F0), v(F0 + 1)))
        dppred("v_add_f32", [F0], ["row_ror:4", "row_ror:8"])
        e("v_cvt_pk_bf16_f32 %s, %s, %s\ns_mov_b32 exec_lo, 0x000f000f\ns_mov_b32 exec_hi, 0x000f000f" % (v(A0), v(F0), v(F0)))
        e("global_store_short %s, %s, s[24:25] %s" % (v(cO), v(A0), outf))
    else:
        dppred("v_add_f32", rr, ["row_ror:%d" % (1 << k) for k in range(pb, 4)])
        xrow("v_add_f32", rr, [F0 + 4, F0 + 5, F0 + 6, F0 + 7])
        e("v_cvt_pk_bf16_f32 %s, %s, %s\nv_cvt_pk_bf16_f32 %s, %s, %s" % (v(A0), v(F0), v(F0 + 1), v(A0 + 1), v(F0 + 2), v(F0 + 3)))
        e("s_mov_b64 exec, %d\nglobal_store_dwordx2 %s, %s, s[24:25] %s" % ((1 << (1 << pb)) - 1, v(cO), v(A0, 2), outf))
    e.label("L_cdone")
    stamp()
    write_stamps(cT, "c")
    if tails:
        e("s_endpgm")
        e.raw("\n".join(tails))
    e.label("L_end")
    e("s_endpgm")
    e.raw('.section .rodata,"a"\n.p2align 6\n.amdhsa_kernel %s' % KN)
    e.raw("  .amdhsa_next_free_vgpr %d\n  .amdhsa_next_free_sgpr 102\n  .amdhsa_accum_offset %d" % (NV, (NV + 3) // 4 * 4))
    e.raw("  .amdhsa_group_segment_fixed_size 0\n  .amdhsa_kernarg_size 104\n  .amdhsa_user_sgpr_count 2")
    e.raw("  .amdhsa_user_sgpr_kernarg_segment_ptr 1\n  .amdhsa_system_sgpr_workgroup_id_x 1")
    e.raw("  .amdhsa_float_denorm_mode_32 3\n.end_amdhsa_kernel")
    txt = e.text()
    if nocomp:
        txt = "\n".join(l for l in txt.split("\n") if not l.strip().startswith(("v_mfma", "v_perm_b32", "v_add_f32_dpp", "v_mov_b32_dpp", "s_nop", "v_exp", "v_fma"))) + "\n"
    return txt


if __name__ == "__main__":
    for spec in sys.argv[1:]:
        name, _, kv = spec.partition(":")
        kw = {}
        for p in kv.split(","):
            if not p:
                continue
            k, val = p.split("=")
            val = val.replace("+", " ")
            kw[k] = int(val) if val.lstrip("-").isdigit() else ("" if val == "none" else val)
        path = name if "/" in name else "work/%s.s" % name
        open(path, "w").write(gen(**kw))
```
